```python
import torch

def _softmax(x, axis=-1):
    return torch.softmax(x, dim=axis)

def _gelu(x):
    return torch.nn.functional.gelu(x, approximate='tanh')

def _silu(x):
    return torch.nn.functional.silu(x)

def _sigmoid(x):
    return torch.sigmoid(x)

def _layernorm(x, axis=-1, eps=1e-05):
    m = x.mean(dim=axis, keepdim=True)
    v = x.var(dim=axis, keepdim=True, unbiased=False)
    return (x - m) / torch.sqrt(v + eps)

def _scatter_add(tgt, idx, src, axis=0):
    return tgt.clone().index_add_(axis, idx, src)

def _segment_sum(src, seg, n):
    out = torch.zeros((n,) + src.shape[1:], dtype=src.dtype)
    return out.index_add_(0, seg, src)

def _pad(x, pw):
    flat = tuple((v for pair in reversed(pw) for v in pair))
    return torch.nn.functional.pad(x, flat)
kernel_name = 'interleave_layers__spectral_gfnet__memory_aug_recurrent_mem_tr__prompt'

def setup_inputs():

    _w = lambda a: (lambda t: t.to(torch.bfloat16) if t.is_floating_point() else t)(torch.as_tensor(a))

    def _A_setup():
        B, S, D = (1, 2048, 448)
        Df = D // 2 + 1
        return {'x': _w((lambda *s: torch.randn(*s, dtype=torch.bfloat16) * 0.05)(B, S, D)), 'w_r': _w((lambda *s: torch.randn(*s, dtype=torch.bfloat16) * 0.4)(S, Df) * 0.02), 'w_i': _w((lambda *s: torch.randn(*s, dtype=torch.bfloat16) * 0.4)(S, Df) * 0.02)}
    _A_in = _A_setup()

    def _B_setup():
        B, S, Dm = (1, 2048, 448)
        H, Dh = (16, 256)
        M, seg = (8, 32)
        seg = min(seg, S)
        S = S // seg * seg
        return {'x': _w((lambda *s: torch.randn(*s, dtype=torch.bfloat16) * 0.05)(B, S, Dm)), 'mem0': _w((lambda *s: torch.randn(*s, dtype=torch.bfloat16) * 0.2)(B, M, Dm)), 'Wq': _w((lambda *s: torch.randn(*s, dtype=torch.bfloat16) * 1.6)(Dm, H, Dh) * Dm ** (-0.5)), 'Wk': _w((lambda *s: torch.randn(*s, dtype=torch.bfloat16) * 1.6)(Dm, H, Dh) * Dm ** (-0.5)), 'Wv': _w((lambda *s: torch.randn(*s, dtype=torch.bfloat16) * 0.2)(Dm, H, Dh) * Dm ** (-0.5)), 'Wo': _w((lambda *s: torch.randn(*s, dtype=torch.bfloat16) * 0.2)(H, Dh, Dm) * (H * Dh) ** (-0.5)), 'seg_len': seg}
    _B_in = _B_setup()
    return {'A_x': _A_in['x'], 'A_w_r': _A_in['w_r'], 'A_w_i': _A_in['w_i'], 'B_x': _B_in['x'], 'B_mem0': _B_in['mem0'], 'B_Wq': _B_in['Wq'], 'B_Wk': _B_in['Wk'], 'B_Wv': _B_in['Wv'], 'B_Wo': _B_in['Wo'], 'B_seg_len': _B_in['seg_len']}

def reference(A_x, A_w_r, A_w_i, B_x, B_mem0, B_Wq, B_Wk, B_Wv, B_Wo, B_seg_len):

    def _A_ref(x, w_r, w_i):
        B, S, D = x.shape
        X = (lambda x, axes=(-2, -1): torch.fft.rfft2(x.float(), dim=axes))(x, axes=(-2, -1))
        W = w_r + 1j * w_i
        X = X * W
        y = (lambda x, s, axes=(-2, -1): torch.fft.irfft2(x, s=s, dim=axes).to(torch.bfloat16))(X, (S, D), axes=(-2, -1))
        return y

    def _B_ref(x, mem0, Wq, Wk, Wv, Wo, seg_len):
        B, S, Dm = x.shape
        H, Dh = (Wq.shape[1], Wq.shape[2])
        M = mem0.shape[1]
        scale = Dh ** (-0.5)
        n_seg = S // seg_len
        L = M + seg_len
        idx = torch.arange(L)
        mask = (idx[:, None] < M) | (idx[:, None] >= idx[None, :])
        mem = mem0
        outs = []
        for s in range(n_seg):
            xs = x[:, s * seg_len:(s + 1) * seg_len, :].clone()
            h = torch.concatenate([mem, xs], axis=1)
            q = torch.einsum('btd,dhe->bhte', h, Wq)
            k = torch.einsum('btd,dhe->bhte', h, Wk)
            v = torch.einsum('btd,dhe->bhte', h, Wv)
            scores = torch.einsum('bhqe,bhke->bhqk', q, k) * scale
            scores = torch.where(mask[None, None], scores, -1000000000.0)
            p = _softmax(scores, axis=-1)
            o = torch.einsum('bhqk,bhke->bhqe', p, v)
            o = torch.einsum('bhte,hed->btd', o, Wo)
            mem = o[:, :M, :].clone()
            outs.append(o[:, M:, :])
        return torch.concatenate(outs, axis=1)
    x = A_x
    x = x + _A_ref(_layernorm(x, axis=-1), A_w_r, A_w_i)
    x = x + _B_ref(_layernorm(x, axis=-1), B_mem0, B_Wq, B_Wk, B_Wv, B_Wo, B_seg_len)
    x = x + _A_ref(_layernorm(x, axis=-1), A_w_r, A_w_i)
    x = x + _B_ref(_layernorm(x, axis=-1), B_mem0, B_Wq, B_Wk, B_Wv, B_Wo, B_seg_len)
    return x
```

```python
class Em:
    def __init__(self):
        self.lines = []
        self.lgkm = []
        self.vm = []
    def __call__(self, s):
        for l in s.strip("\n").split("\n"):
            self.lines.append("  " + l.strip())
    def label(self, name):
        self.lines.append(name + ":")
    def raw(self, s):
        self.lines.append(s)
    def text(self):
        return "\n".join(self.lines) + "\n"
    def ds(self, s, tag=None):
        self(s); self.lgkm.append(tag)
    def wait_lgkm(self, tag):
        idx = None
        for i, t in enumerate(self.lgkm):
            if t == tag: idx = i
        if idx is None: return
        n = len(self.lgkm) - 1 - idx
        n = min(n, 15)
        self(f"s_waitcnt lgkmcnt({n})")
        self.lgkm = self.lgkm[len(self.lgkm) - n:] if n > 0 else []
    def wait_lgkm_all(self):
        self("s_waitcnt lgkmcnt(0)"); self.lgkm = []
    def vmem(self, s, tag=None):
        self(s); self.vm.append(tag)
    def wait_vm(self, tag):
        idx = None
        for i, t in enumerate(self.vm):
            if t == tag: idx = i
        if idx is None: return
        n = len(self.vm) - 1 - idx
        n = min(n, 63)
        self(f"s_waitcnt vmcnt({n})")
        self.vm = self.vm[len(self.vm) - n:] if n > 0 else []
    def wait_vm_all(self):
        self("s_waitcnt vmcnt(0)"); self.vm = []
    def nop(self, n):
        while n > 0:
            k = min(n, 16)
            self(f"s_nop {k-1}")
            n -= k
def vr(base, n=1):
    return f"v{base}" if n == 1 else f"v[{base}:{base+n-1}]"
def ar(base, n=1):
    return f"a{base}" if n == 1 else f"a[{base}:{base+n-1}]"
def reg(r, n=1):
    return vr(r[1], n) if r[0] == 'v' else ar(r[1], n)
```

```python
import sys
from asmlib import Em
import k_prep
HDR = """; Kernarg: 13 pointers (see layout in .s.ref)
"""
def build(launches, gens):
    e = Em()
    out = HDR
    for (name, grid, block, lds) in launches:
        out += f"; @launch kernel={name} grid=({grid},1,1) block=({block},1,1) lds={lds}\n"
    e.raw('.amdgcn_target "amdgcn-amd-amdhsa--gfx950"\n.text')
    for g in gens: g(e)
    return out + e.text()
if __name__ == "__main__":
    txt = build([("prep_kernel", k_prep.N_WG, 256, k_prep.LDS)], [k_prep.gen])
    open("prep_test.s","w").write(txt)
```

```python
from asmlib import *
import wsmap as W
KA = dict(x=0, wr=8, wi=16, bx=24, mem0=32, wq=40, wk=48, wv=56, wo=64, seg=72, out=80, dbg=88, ws=96)
def kernel_head(e, name):
    e.raw(f".globl {name}\n.p2align 8\n.type {name},@function\n{name}:")
def kernel_desc(name, vgpr, accum, sgpr=102):
    return f""".section .rodata,"a"
.p2align 6
.amdhsa_kernel {name}
  .amdhsa_next_free_vgpr {vgpr}
  .amdhsa_next_free_sgpr {sgpr}
  .amdhsa_accum_offset {accum}
  .amdhsa_group_segment_fixed_size 0
  .amdhsa_kernarg_size 104
  .amdhsa_user_sgpr_count 2
  .amdhsa_user_sgpr_kernarg_segment_ptr 1
  .amdhsa_system_sgpr_workgroup_id_x 1
.end_amdhsa_kernel
.text
"""
def load_ptr(e, sreg, key):
    e(f"s_load_dwordx2 s[{sreg}:{sreg+1}], s[0:1], {KA[key]}")
def ws_ptr(e, dst, ws, off):
    e(f"s_add_u32 s{dst}, s{ws}, {off}")
    e(f"s_addc_u32 s{dst+1}, s{ws+1}, 0")
def lane_wave(e, vlane, swave, vtmp):
    e(f"v_and_b32 v{vlane}, 63, v0")
    e(f"v_lshrrev_b32 v{vtmp}, 6, v0")
    e("s_nop 1")
    e(f"v_readfirstlane_b32 s{swave}, v{vtmp}")
    e("s_nop 3")
```

```python
import sys
import build, k_prep, k_fft, k_b
def launches():
    A = lambda L: [(f"fa{L}_kernel", 256, 256, k_fft.FA_LDS), ("fb_kernel", 225, 64, 0)]
    B = lambda L: [(f"b{L}_kernel", 256, 256, k_b.B_LDS)]
    return [("prep_kernel", 256, 256, k_prep.LDS)] + A(0) + B(0) + A(1) + B(1)
def text(L=None):
    return build.build(L or launches(), [k_prep.gen, k_fft.gen_fa, k_fft.gen_fb, k_b.gen])
if __name__ == "__main__":
    out = sys.argv[1] if len(sys.argv) > 1 else "full.s"
    open(out, "w").write(text())
```

```python
from common import *
import k_fft
NSTEP = 63
MEM_STRIDE, P_STRIDE, U_SEG, TILE, HEAD_IMG = W.MEM_STRIDE, W.P_STRIDE, W.U_SEG, W.TILE, W.HEAD_IMG
XSEG = 28672
C_TICK, C_WIN, C_SLOT, C_XALL, C_URDY, C_RDY2 = 0, 1024, 1152, 1280, 2048, 4096
sWS=4; sW=6; sXP=8; sUP=10; sMEM=12; sP=14; sCN=16; sMX=18; sZM=20
sROLE=22; sWAVE=23; sSTEP=24; sTMO=25; sT0=26; sT1=27; sT2=28; sTGT=29
sM56=30; sEVEN=32; sOUT=34; sRES=36; sPX=38; sMXI=52; sPREV=54; sM57=56; sLAY=60; sXCC=40; sSEG=41; sBUF=42; sH=43; sJ=44; sT3=45; sT4=46; sSV=48
vLANE=1; vL16=2; vIDX=3
FAIL="b_fail"
DIAG=[False]
OPT={}
sDBG=70
def dstamp(e, slot, role, regs, sreg=None, step=None):
    if not DIAG[0]: return
    dstamp.n += 1; lab = f".Lds{dstamp.n}"
    e(f"s_cmp_lg_u32 s{sROLE}, {role}"); e(f"s_cbranch_scc1 {lab}")
    if step is not None:
        e(f"s_cmp_lg_u32 s{sSTEP}, {step}"); e(f"s_cbranch_scc1 {lab}")
    if sreg is None:
        e("s_memrealtime s[72:73]"); e("s_waitcnt lgkmcnt(0)"); sreg = 72
    e(f"s_mov_b64 s[74:75], exec"); e("s_mov_b64 exec, 1")
    e(f"v_mov_b32 v{regs[0]}, s{sreg}"); e(f"v_mov_b32 v{regs[1]}, {slot*4}")
    e(f"global_store_dword v{regs[1]}, v{regs[0]}, s[{sDBG}:{sDBG+1}]")
    e("s_waitcnt vmcnt(0)")
    e("s_mov_b64 exec, s[74:75]")
    e.label(lab)
dstamp.n = 0
def tr(e, k):
    st = OPT.get('trace')
    if st is None: return
    tr.n += 1
    e(f"s_cmp_lg_u32 s{sSTEP}, {st}"); e(f"s_cbranch_scc1 .Ltr{tr.n}")
    e(f"s_memtime s[{78+2*k}:{79+2*k}]")
    e.label(f".Ltr{tr.n}")
tr.n = 0
def tr_init(e):
    if OPT.get('trace') is None: return
    for k in range(78, 94): e(f"s_mov_b32 s{k}, 0")
    e("s_mov_b32 s94, 0"); e("s_mov_b32 s95, 0")
    e("s_memrealtime s[96:97]"); e("s_memtime s[98:99]"); e("s_waitcnt lgkmcnt(0)")
    for k in range(8):
        e("s_mov_b32 s100, s96"); e("s_mov_b32 s101, s98")
        e("s_memrealtime s[96:97]"); e("s_memtime s[98:99]"); e("s_waitcnt lgkmcnt(0)")
        e("s_cmp_lg_u32 s96, s100"); e("s_cselect_b32 s100, 1, 0"); e("s_cmp_eq_u32 s94, 0"); e("s_cselect_b32 s100, s100, 0")
        e("s_cmp_lg_u32 s100, 0"); e("s_cselect_b32 s94, s96, s94"); e("s_cselect_b32 s95, s98, s95")
def tr_dump(e, regs):
    if OPT.get('trace') is None: return
    a, d = regs
    e("s_waitcnt vmcnt(0) lgkmcnt(0)")
    e(f"s_lshl_b32 s{sT0}, s{sROLE}, 2"); e(f"s_add_u32 s{sT0}, s{sT0}, s{sWAVE}"); e(f"s_lshl_b32 s{sT0}, s{sT0}, 6")
    e(f"s_add_u32 s{sT0}, s{sT0}, {W.TRACE}")
    e("s_mov_b64 exec, 1")
    for k in range(10):
        src = 78+2*k if k < 8 else (94 if k == 8 else 95)
        e(f"v_mov_b32 v{a}, s{sT0}"); e(f"v_mov_b32 v{d}, s{src}")
        e(f"global_store_dword v{a}, v{d}, s[{sWS}:{sWS+1}] offset:{4*k}")
    e("s_waitcnt vmcnt(0)")
RT_TILE=768
S_WT=0; S_RT=3*TILE; S_FLAG=S_RT+28*RT_TILE
V_LMEM=0; V_RED=8192; V_WT=16384
B_LDS = V_WT + 8*TILE
def blocks_regs(na, vstart=None, nv=0): return [('a', 8*i) for i in range(na)] + [('v', vstart+8*i) for i in range(nv)]
def tmo(e):
    e(f"s_sub_u32 s{sTMO}, s{sTMO}, 1"); e(f"s_cbranch_scc1 {FAIL}")
def zero4(a): return [f"v_mov_b64 v[{a}:{a+1}], 0", f"v_mov_b64 v[{a+2}:{a+3}], 0"]
def sentinel_tree(regs, t):
    out = []; rs = list(regs)
    out.append(f"v_max3_u32 v{t}, v{rs[0]}, v{rs[1]}, v{rs[2]}"); rs = rs[3:]
    while len(rs) >= 2:
        out.append(f"v_max3_u32 v{t}, v{t}, v{rs[0]}, v{rs[1]}"); rs = rs[2:]
    if rs: out.append(f"v_max_u32 v{t}, v{t}, v{rs[0]}")
    out.append(f"v_cmp_eq_u32 vcc, -1, v{t}")
    return out
def bell_wait(e, vaddr, sbase, regs, lab, nl):
    d = len(regs)
    ld = lambda r: e(f"global_load_dword v{r}, v{vaddr}, s[{sbase}:{sbase+1}] sc1")
    e(f"s_mov_b64 exec, {hex((1<<nl)-1) if nl <= 6 else (f's[{sM56}:{sM56+1}]' if nl == 56 else f's[{sM57}:{sM57+1}]')}")
    for r in regs[:-1]:
        ld(r); e.nop(OPT.get('stag', 64) // d)
    e.label(lab)
    for k in range(d):
        ld(regs[(k-1) % d])
        e(f"s_waitcnt vmcnt({d-1})")
        e(f"v_cmp_eq_u32 vcc, -1, v{regs[k]}")
        if k == d-1: tmo(e)
        e(f"s_cbranch_vccz {lab}_ok")
    e(f"s_branch {lab}")
    e.label(f"{lab}_ok")
    e("s_mov_b64 exec, -1")
def load_weights(e, blocks, tiles, vtmp, soff=None):
    n = 0; bi = 0
    for toff in tiles:
        for t in range(7):
            b = blocks[bi]; bi += 1
            e(f"v_add_u32 v{vtmp}, {toff + t*2048}, v{vL16}")
            if soff is not None: e(f"v_add_u32 v{vtmp}, s{soff}, v{vtmp}")
            e(f"global_load_dwordx4 {reg(b,4)}, v{vtmp}, s[{sW}:{sW+1}]")
            e(f"global_load_dwordx4 {reg((b[0], b[1]+4),4)}, v{vtmp}, s[{sW}:{sW+1}] offset:1024")
            n += 2
            if n % 32 == 0: e("s_waitcnt vmcnt(32)")
    e("s_waitcnt vmcnt(0)")
def load_lds_tiles(e, tiles, ldsoffs, stg, v0_, v1_):
    for toff, lo in zip(tiles, ldsoffs):
        for k in range(14):
            e(f"v_add_u32 v{v0_}, {toff + k*1024}, v{vL16}")
            e(f"global_load_dwordx4 v[{stg+4*k}:{stg+4*k+3}], v{v0_}, s[{sW}:{sW+1}]")
        e(f"v_add_u32 v{v1_}, {lo}, v{vL16}")
        e("s_waitcnt vmcnt(0)")
        for k in range(14):
            e(f"ds_write_b128 v{v1_}, v[{stg+4*k}:{stg+4*k+3}] offset:{k*1024}")
        e("s_waitcnt lgkmcnt(0)")
def bell2_addr(e, vBL, last=55):
    e(f"v_min_u32 v{vBL}, {last}, v{vLANE}")
    e(f"v_lshlrev_b32 v{vBL}, 2, v{vBL}")
    e(f"s_and_b32 s{sT0}, s{sROLE}, 7")
    e(f"s_lshl_b32 s{sT0}, s{sT0}, 8")
    e(f"s_add_u32 s{sT0}, s{sT0}, {8192-3072}")
    e(f"v_add_u32 v{vBL}, s{sT0}, v{vBL}")
def rt_write_addr(e, vRTW, t0, t1, t2):
    e(f"v_and_b32 v{t0}, 15, v{vLANE}")
    e(f"v_lshrrev_b32 v{t1}, 4, v{vLANE}")
    e(f"v_lshrrev_b32 v{t2}, 2, v{t0}")
    e(f"v_xor_b32 v{t1}, v{t1}, v{t2}")
    e(f"v_lshlrev_b32 v{t1}, 3, v{t1}")
    e(f"v_lshl_add_u32 v{t1}, v{t0}, 5, v{t1}")
    e(f"v_lshrrev_b32 v{t2}, 3, v{t0}")
    e(f"v_lshl_add_u32 v{vRTW}, v{t2}, 7, v{t1}")
    e(f"v_add_u32 v{vRTW}, {S_RT}, v{vRTW}")
def adv(e, s, n):
    e(f"s_add_u32 s{s}, s{s}, {n}"); e(f"s_addc_u32 s{s+1}, s{s+1}, 0")
def gload(am, t):
    return f"global_load_dwordx4 v[{am+4*t}:{am+4*t+3}], v{vL16}, s[{sMEM}:{sMEM+1}] offset:{t*1024-3072} sc1"
PACE_N, PACE_NOP = 4, 12
def direct_gather(e, am):
    for t in range(PACE_N):
        e(gload(am, t))
        if t+1 < PACE_N: e.nop(PACE_NOP)
def kmajor(e, am, accs, wregs, vtmp):
    chk = sentinel_tree([am+k for k in range(28)], vtmp)
    ci = 0; issued = PACE_N
    for t in range(7):
        e(f"s_waitcnt vmcnt({issued-1-t})")
        for j in range(4):
            e(f"v_smfmac_f32_16x16x64_bf16 v[{accs[j]}:{accs[j]+3}], v[{am+4*t}:{am+4*t+3}], {reg(wregs(j,t),8)}, v{vIDX}")
            if j == 0 and issued < 7:
                e(gload(am, issued)); issued += 1
            elif ci < len(chk) and (ci == len(chk)-1 and t == 6 or (ci < len(chk)-1 and min(2*ci+2, 27) < 4*(t+1))):
                e(chk[ci]); ci += 1
    while ci < len(chk): e(chk[ci]); ci += 1

S_TILES = {0:[4,7,10,13,16,19,22,25], 1:[5,8,11,14,17,20,23,26], 2:[6,9,12,15,18,21,24,27], 3:[0,1,2,3]}
FLAG_AFTER = {1:0, 2:1, 3:2, 5:3, 6:4}
NCP = 5
def score_producer(e, w):
    uid = f"sp{w}"
    tiles = S_TILES[w]
    blocks = blocks_regs(32, 120, 17)
    load_lds_tiles(e, [tiles[0]*TILE], [S_WT + w*TILE], 60, 4, 5)
    load_weights(e, blocks, [t*TILE for t in tiles[1:]], 4)
    vFV, vBL, vRTW, vFA = 0, 1, 4, 5
    vC = [6, 8]; vBR = [6, 7, 8, 9, 10, 11][:OPT.get('pdepth', 3)]
    am = 12; acc = [40, 44, 48, 52, 56, 116]; stg = 60
    rt_write_addr(e, vRTW, 8, 9, 10)
    e(f"v_lshlrev_b32 v{vFA}, 2, v{vLANE}")
    e(f"v_add_u32 v{vFA}, {S_FLAG + 256*w}, v{vFA}")
    e(f"v_mov_b32 v{vFV}, 0")
    for cp in range(NCP): e(f"ds_write_b32 v{vFA}, v{vFV} offset:{cp*1024}")
    bell2_addr(e, vBL)
    def stage():
        for k in range(14): e(f"ds_read_b128 v[{stg+4*k}:{stg+4*k+3}], v{vL16} offset:{S_WT + w*TILE + k*1024}")
    stage()
    for a in acc:
        for l in zero4(a): e(l)
    e("s_waitcnt lgkmcnt(0)"); e("s_barrier")
    e.label(f"b_{uid}_step")
    e(f"v_add_u32 v{vFV}, 1, v{vFV}")
    bell_wait(e, vBL, sMEM, vBR, f"b_{uid}_bell", 56)
    tr(e, 0)
    e.label(f"b_{uid}_gather")
    direct_gather(e, am); tmo(e)
    kmajor(e, am, acc[:4], lambda j,t: ('v', stg+8*t) if j == 0 else blocks[(j-1)*7+t], vC[0])
    defer = OPT.get('defer', 1)
    if not defer: e(f"s_cbranch_vccnz b_{uid}_redo")
    tr(e, 1)
    accof = {0:acc[0],1:acc[1],2:acc[2],3:acc[3],4:acc[4],5:acc[5],6:acc[0],7:acc[1]}
    def wr(j, c):
        a = accof[j]
        l = [f"v_cvt_pk_bf16_f32 v{c}, v{a}, v{a+1}", f"v_cvt_pk_bf16_f32 v{c+1}, v{a+2}, v{a+3}",
             f"ds_write_b64 v{vRTW}, v[{c}:{c+1}] offset:{tiles[j]*RT_TILE}"]
        if j in FLAG_AFTER: l.append(f"ds_write_b32 v{vFA}, v{vFV} offset:{FLAG_AFTER[j]*1024}")
        return l
    if OPT.get('burst', 1):
        e.nop(3)
        w01 = wr(0, vC[0]) + wr(1, vC[1])
        for l in w01[:-1]: e(l)
        if defer: e(f"s_cbranch_vccnz b_{uid}_redo")
        e(w01[-1])
        Q = {4: wr(2, vC[0]) + wr(3, vC[1]),
             5: zero4(acc[0]) + wr(4, vC[0]),
             6: zero4(acc[1]) + wr(5, vC[1]),
             7: [None, None] + wr(6, vC[0])}
    else:
        Q = {4: ["s_nop 0"] + wr(0, vC[0]) + wr(1, vC[1]) + wr(2, vC[0]),
             5: wr(3, vC[1]) + zero4(acc[0]) + wr(4, vC[0]),
             6: zero4(acc[1]) + wr(5, vC[1]),
             7: [None, None] + wr(6, vC[0])}
    for r in range(4, 8):
        q = Q[r]; n = len(q); qi = 0
        for t in range(7):
            if not (OPT.get('abl_r') and r in OPT['abl_r']):
                e(f"v_smfmac_f32_16x16x64_bf16 v[{accof[r]}:{accof[r]+3}], v[{am+4*t}:{am+4*t+3}], {reg(blocks[(r-1)*7+t],8)}, v{vIDX}")
            upto = -(-n*(t+1) // 7) if n > 7 else min(n, t+1)
            while qi < upto:
                if q[qi]: e(q[qi])
                qi += 1
            if defer and r == 4 and t == 1 and not OPT.get('burst', 1): e(f"s_cbranch_vccnz b_{uid}_redo")
    tr(e, 2)
    e.nop(8)
    for l in wr(7, vC[0])[:3]: e(l)
    e("s_waitcnt lgkmcnt(0)"); e("s_barrier")
    tr(e, 3)
    stage()
    for a in acc:
        for l in zero4(a): e(l)
    adv(e, sMEM, MEM_STRIDE)
    e(f"s_add_u32 s{sSTEP}, s{sSTEP}, 1")
    e(f"s_cmp_lt_u32 s{sSTEP}, {NSTEP}")
    e("s_waitcnt lgkmcnt(0)")
    e(f"s_cbranch_scc1 b_{uid}_step")
    tr_dump(e, (8, 9))
    e("s_endpgm")
    e.label(f"b_{uid}_redo")
    e.nop(8)
    for a in acc[:5]:
        for l in zero4(a): e(l)
    e(f"s_branch b_{uid}_gather")

def score_swave(e):
    uid = "sw"
    tiles = S_TILES[3]
    blocks = blocks_regs(28)
    dstamp(e, 0, 0, (102,103), sreg=96); dstamp(e, 1, 0, (102,103))
    load_weights(e, blocks, [t*TILE for t in tiles], 4)
    dstamp(e, 2, 0, (102,103))
    vX = 144; vB = [60, 76, 92]; vS = 108
    vFV, vBL2, vRTW, vTR0, vTR1, vFA = 0, 1, 4, 5, 6, 7
    vC = [8, 56]; vPX, vPM = 10, 11
    am = 12; acc = [40, 44, 48, 52]
    vBL, vF = 122, 123
    vXA = [120, 121, 104, 105]; vBR = [124, 125, 100, 101][:OPT.get('sdepth', 3)]
    vV, vE, vM, vT, vR, vL, vML, vF2, vO = 126, 132, 138, 139, 140, 141, 142, 143, 58
    vHF = 106
    T, A0, A1, A2, A3, G, N15 = 60, 61, 62, 63, 64, 65, 66
    rt_write_addr(e, vRTW, A0, A1, A2)
    e(f"v_and_b32 v{N15}, 15, v{vLANE}")
    e(f"v_lshrrev_b32 v{G}, 4, v{vLANE}")
    e(f"v_lshrrev_b32 v{A0}, 2, v{N15}")
    e(f"v_mul_u32_u24 v{A1}, 384, v{G}")
    e(f"v_lshl_add_u32 v{A1}, v{A0}, 5, v{A1}")
    e(f"v_and_b32 v{A2}, 3, v{N15}")
    e(f"v_lshlrev_b32 v{A3}, 1, v{G}")
    e(f"v_and_b32 v{A3}, 3, v{A3}")
    e(f"v_xor_b32 v{T}, v{A2}, v{A3}")
    e(f"v_lshl_add_u32 v{vTR0}, v{T}, 3, v{A1}")
    e(f"v_add_u32 v{vTR0}, {S_RT}, v{vTR0}")
    e(f"v_xor_b32 v{T}, 1, v{T}")
    e(f"v_lshl_add_u32 v{vTR1}, v{T}, 3, v{A1}")
    e(f"v_add_u32 v{vTR1}, {S_RT + 4*32}, v{vTR1}")
    e(f"v_and_b32 v{A0}, 3, v{vLANE}")
    e(f"v_min_u32 v{A0}, 2, v{A0}")
    e(f"v_lshlrev_b32 v{vFA}, 8, v{A0}")
    e(f"v_add_u32 v{vFA}, {S_FLAG}, v{vFA}")
    e(f"s_lshl_b32 s{sT0}, s{sROLE}, 9")
    e(f"v_lshrrev_b32 v{A1}, 3, v{N15}")
    e(f"v_and_b32 v{A0}, 7, v{vLANE}")
    e(f"v_lshrrev_b32 v{A3}, 1, v{G}")
    e(f"v_and_b32 v{T}, 1, v{G}")
    e(f"v_lshlrev_b32 v{A2}, 4, v{A0}")
    e(f"v_lshl_add_u32 v{A2}, v{A3}, 8, v{A2}")
    e(f"v_lshl_add_u32 v{A2}, v{T}, 3, v{A2}")
    e(f"v_lshl_add_u32 v{vPX}, v{A1}, 2, v{A2}")
    e(f"v_add_u32 v{vPX}, s{sT0}, v{vPX}")
    e(f"s_lshr_b32 s{sT0}, s{sROLE}, 1"); e(f"s_lshl_b32 s{sT0}, s{sT0}, 8")
    e(f"s_and_b32 s{sT1}, s{sROLE}, 1"); e(f"s_lshl_b32 s{sT1}, s{sT1}, 2")
    e(f"s_add_u32 s{sT0}, s{sT0}, s{sT1}"); e(f"s_add_u32 s{sT0}, s{sT0}, 8192")
    e(f"v_lshlrev_b32 v{A2}, 4, v{A0}")
    e(f"v_lshl_add_u32 v{A2}, v{A3}, 7, v{A2}")
    e(f"v_lshl_add_u32 v{vPM}, v{T}, 3, v{A2}")
    e(f"v_add_u32 v{vPM}, s{sT0}, v{vPM}")
    e(f"s_lshr_b32 s{sT0}, s{sROLE}, 2"); e(f"s_lshl_b32 s{sT0}, s{sT0}, 9")
    e(f"s_and_b32 s{sT1}, s{sROLE}, 3"); e(f"s_lshl_b32 s{sT1}, s{sT1}, 2")
    e(f"s_add_u32 s{sT0}, s{sT0}, s{sT1}"); e(f"s_add_u32 s{sT0}, s{sT0}, 10240")
    e(f"v_and_b32 v{A0}, 3, v{vLANE}")
    e(f"v_lshlrev_b32 v{vBL}, 7, v{A0}")
    e(f"v_add_u32 v{vBL}, s{sT0}, v{vBL}")
    bell2_addr(e, vBL2)
    for k in range(4): e(f"v_add_u32 v{vXA[k]}, {8192*k + 4096}, v{vL16}")
    def xloads():
        for u in range(14):
            for kt in range(2):
                o = kt*14336 + u*1024
                e(f"global_load_dwordx4 v[{vX+kt*56+4*u}:{vX+kt*56+4*u+3}], v{vXA[o//8192]}, s[{sXP}:{sXP+1}] offset:{o%8192-4096}")
    if OPT.get('cnt'):
        for t in range(64, 70): e(f"s_mov_b32 s{t}, 0")
    wait_xall_wave(e, 100, 101, "b_sw_xall")
    xloads()
    for a in acc + [vS]:
        for l in zero4(a): e(l)
    e(f"v_mov_b32 v{vFV}, 0"); e(f"v_mov_b32 v{vHF}, 0.5")
    e("s_waitcnt vmcnt(0)"); e("s_barrier")
    BUF = [60, 68, 76]; FLG = [84, 85, 86]
    CP = {0: None, 1: 0, 2: 1, 3: 2, 4: 3, 5: 4, 6: None}
    def reads(t):
        buf = BUF[t % 3]
        l = [f"ds_read_b32 v{FLG[t % 3]}, v{vFA} offset:{CP[t]*1024}"] if CP[t] is not None else []
        for hh in range(2):
            u = 2*t+hh
            l.append(f"ds_read_b64_tr_b16 v[{buf+4*hh}:{buf+4*hh+1}], v{vTR0} offset:{2*RT_TILE*u}")
            l.append(f"ds_read_b64_tr_b16 v[{buf+4*hh+2}:{buf+4*hh+3}], v{vTR1} offset:{2*RT_TILE*u}")
        return l
    def mfmas(t):
        buf = BUF[t % 3]
        l = [f"v_smfmac_f32_16x16x64_bf16 v[{vS}:{vS+3}], v[{am+4*t}:{am+4*t+3}], v[{buf}:{buf+7}], v{vIDX}"]
        for hh in range(2):
            u = 2*t+hh
            for kt in (1,2):
                a_ = f"v[{vX+(kt-1)*56+4*u}:{vX+(kt-1)*56+4*u+3}]"
                c = "0" if u == 0 else f"v[{vS+4*kt}:{vS+4*kt+3}]"
                l.append(f"v_mfma_f32_16x16x32_bf16 v[{vS+4*kt}:{vS+4*kt+3}], {a_}, v[{buf+4*hh}:{buf+4*hh+3}], {c}")
        return l
    retries = []
    e.label(f"b_{uid}_step")
    for k,st in enumerate((0,1,2,OPT.get('s0',10),32,OPT.get('s1',62))): dstamp(e, 4+k, 0, (102,103), step=st)
    if DIAG[0]:
        for k,st in enumerate((OPT.get('s0',10),OPT.get('s1',62))):
            e(f"s_cmp_lg_u32 s{sSTEP}, {st}"); e(f"s_cbranch_scc1 .Lmt{k}")
            e("s_memtime s[98:99]"); e("s_waitcnt lgkmcnt(0)")
            dstamp(e, 21+k, 0, (102,103), sreg=98)
            e.label(f".Lmt{k}")
    e(f"v_add_u32 v{vFV}, 1, v{vFV}")
    e(f"s_add_u32 s{sTGT}, s{sSTEP}, 1")
    bell_wait(e, vBL2, sMEM, vBR, f"b_{uid}_bell", 56)
    tr(e, 0)
    e.label(f"b_{uid}_gather")
    direct_gather(e, am); tmo(e)
    kmajor(e, am, acc, lambda j,t: blocks[j*7+t], vC[0])
    defer = OPT.get('defer', 1)
    if not defer: e(f"s_cbranch_vccnz b_{uid}_redo")
    tr(e, 1)
    e.nop(3 if not defer else 4)
    for j in range(4):
        a = acc[j]; c = vC[j % 2]
        e(f"v_cvt_pk_bf16_f32 v{c}, v{a}, v{a+1}")
        e(f"v_cvt_pk_bf16_f32 v{c+1}, v{a+2}, v{a+3}")
        e(f"ds_write_b64 v{vRTW}, v[{c}:{c+1}] offset:{tiles[j]*RT_TILE}")
        if defer and j == 1: e(f"s_cbranch_vccnz b_{uid}_redo")
    def chk(t): return f"v_cmp_gt_u32 vcc, s{sTGT}, v{FLG[t % 3]}"
    def retry(t):
        lab = f"b_{uid}_cp{t}"
        e(f"s_cbranch_vccnz {lab}_retry"); e.label(f"{lab}_ok"); retries.append((lab, t))
    def batch(t, rd, mid=None, midpos=2):
        i = 0
        for j, m_ in enumerate(mfmas(t)):
            e(m_)
            for _ in range(2 if 'smfmac' not in m_ else 1):
                if i < len(rd): e(rd[i]); i += 1
            if mid and j == midpos:
                for l in mid(i): e(l)
        while i < len(rd): e(rd[i]); i += 1
    for l in reads(0): e(l)
    for l in reads(1): e(l)
    e("s_waitcnt lgkmcnt(0)"); e(chk(1)); retry(1)
    tr(e, 2)
    batch(0, reads(2))
    batch(1, reads(3), lambda i: [f"s_waitcnt lgkmcnt({i})", chk(2)]); retry(2)
    if OPT.get('d45', 0):
        batch(2, reads(4), lambda i: [f"s_waitcnt lgkmcnt({i})", chk(3)]); retry(3)
        batch(3, reads(5), lambda i: [f"s_waitcnt lgkmcnt({i})", chk(4)]); retry(4)
        batch(4, [], lambda i: ["s_waitcnt lgkmcnt(0)", chk(5)]); retry(5)
    else:
        batch(2, [], lambda i: ["s_waitcnt lgkmcnt(0)", chk(3)]); retry(3)
        batch(3, reads(4), lambda i: ["s_waitcnt lgkmcnt(0)", chk(4)], midpos=3); retry(4)
        batch(4, reads(5), lambda i: ["s_waitcnt lgkmcnt(0)", chk(5)], midpos=3); retry(5)
    tr(e, 3)
    e("s_barrier")
    tr(e, 4)
    batch(5, reads(6))
    e("s_waitcnt lgkmcnt(0)")
    batch(6, [])
    def ring1():
        e("s_mov_b64 exec, 15")
        e(f"global_store_dword v{vBL}, v{vFV}, s[{sP}:{sP+1}]")
        e("s_mov_b64 exec, -1")
    tr(e, 5)
    T0, T1, T2 = vS, vS+4, vS+8
    D = "row_ror:8"
    if OPT.get('sm3', 1):
        e(f"v_permlane32_swap_b32 v{T0}, v{T0+2}")
        e(f"v_permlane32_swap_b32 v{T0+1}, v{T0+3}")
        e(f"v_add_f32 v{T0}, v{T0}, v{T0+2}"); e(f"v_add_f32 v{T0+1}, v{T0+1}, v{T0+3}")
        e.nop(1)
        e(f"v_add_f32_dpp v{vV+4}, v{T0}, v{T0} {D} row_mask:0xf bank_mask:0xf")
        e(f"v_add_f32_dpp v{vV+5}, v{T0+1}, v{T0+1} {D} row_mask:0xf bank_mask:0xf")
        for r in range(4): e(f"v_add_f32_dpp v{vV+r}, v{T1+r}, v{T1+r} {D} row_mask:0xf bank_mask:0x3")
        for r in range(4): e(f"v_add_f32_dpp v{vV+r}, v{T2+r}, v{T2+r} {D} row_mask:0xf bank_mask:0xc")
    else:
        e.nop(8)
        e(f"v_permlane32_swap_b32 v{T0}, v{T0+2}")
        e(f"v_permlane32_swap_b32 v{T0+1}, v{T0+3}")
        for r in range(4): e(f"v_add_f32_dpp v{vV+r}, v{T1+r}, v{T1+r} {D} row_mask:0xf bank_mask:0x3")
        e(f"v_add_f32 v{T0}, v{T0}, v{T0+2}"); e(f"v_add_f32 v{T0+1}, v{T0+1}, v{T0+3}")
        for r in range(4): e(f"v_add_f32_dpp v{vV+r}, v{T2+r}, v{T2+r} {D} row_mask:0xf bank_mask:0xc")
        e(f"v_add_f32_dpp v{vV+4}, v{T0}, v{T0} {D} row_mask:0xf bank_mask:0xf")
        e(f"v_add_f32_dpp v{vV+5}, v{T0+1}, v{T0+1} {D} row_mask:0xf bank_mask:0xf")
    if OPT.get('ring1', 4) == 3: ring1()
    PK = "op_sel_hi:[1,0]"; neg = "neg_lo:[0,1] neg_hi:[0,1]"
    e(f"v_max3_f32 v{vML}, v{vV}, v{vV+1}, v{vV+2}")
    e(f"v_max3_f32 v{vML}, v{vML}, v{vV+3}, v{vV+4}")
    e(f"v_max_f32 v{vML}, v{vML}, v{vV+5}")
    e(f"v_pk_add_f32 v[{vE}:{vE+1}], v[{vV}:{vV+1}], v[{vML}:{vML+1}] {PK} {neg}")
    e(f"v_pk_add_f32 v[{vE+2}:{vE+3}], v[{vV+2}:{vV+3}], v[{vML}:{vML+1}] {PK} {neg}")
    e(f"v_max_f32_dpp v{vM}, v{vML}, v{vML} {D} row_mask:0xf bank_mask:0xf")
    e(f"v_pk_add_f32 v[{vE+4}:{vE+5}], v[{vV+4}:{vV+5}], v[{vML}:{vML+1}] {PK} {neg}")
    e(f"v_mov_b32 v{vT}, v{vM}")
    e(f"v_exp_f32 v{vE}, v{vE}"); e(f"v_exp_f32 v{vE+1}, v{vE+1}")
    e(f"v_permlane16_swap_b32 v{vM}, v{vT}")
    e(f"v_exp_f32 v{vE+2}, v{vE+2}")
    e(f"v_max_f32 v{vM}, v{vM}, v{vT}")
    if OPT.get('ring1', 4) == 1: ring1()
    e(f"v_exp_f32 v{vE+3}, v{vE+3}")
    e(f"v_mov_b32 v{vT}, v{vM}")
    e(f"v_exp_f32 v{vE+4}, v{vE+4}"); e(f"v_exp_f32 v{vE+5}, v{vE+5}")
    e(f"v_permlane32_swap_b32 v{vM}, v{vT}")
    e(f"v_pk_add_f32 v[{vV}:{vV+1}], v[{vE}:{vE+1}], v[{vE+2}:{vE+3}]")
    e(f"v_max_f32 v{vM}, v{vM}, v{vT}")
    e(f"v_pk_fma_f32 v[{vV}:{vV+1}], v[{vE+4}:{vE+5}], v[{vHF}:{vHF+1}], v[{vV}:{vV+1}] op_sel_hi:[1,0,1]")
    e(f"v_sub_f32 v{vF2}, v{vML}, v{vM}")
    if OPT.get('ring1', 4) == 4: ring1()
    e(f"v_add_f32 v{vL}, v{vV}, v{vV+1}")
    e(f"v_exp_f32 v{vF2}, v{vF2}")
    e.nop(1)
    e(f"v_mul_f32 v{vL}, v{vL}, v{vF2}")
    e.nop(2)
    e(f"v_add_f32_dpp v{vL}, v{vL}, v{vL} {D} row_mask:0xf bank_mask:0xf")
    e(f"v_mov_b32 v{vT}, v{vL}")
    if OPT.get('ring1', 4) == 5: ring1()
    else: e.nop(2)
    e(f"v_permlane16_swap_b32 v{vL}, v{vT}"); e(f"v_add_f32 v{vL}, v{vL}, v{vT}")
    e(f"v_mov_b32 v{vT}, v{vL}")
    if OPT.get('ring1', 4) == 6: ring1()
    else: e.nop(2)
    e(f"v_permlane32_swap_b32 v{vL}, v{vT}"); e(f"v_add_f32 v{vL}, v{vL}, v{vT}")
    e(f"v_rcp_f32 v{vR}, v{vL}"); e.nop(1)
    e(f"v_mul_f32 v{vR}, v{vR}, v{vF2}")
    for k in range(3): e(f"v_pk_mul_f32 v[{vE+2*k}:{vE+2*k+1}], v[{vE+2*k}:{vE+2*k+1}], v[{vR}:{vR+1}] {PK}")
    e(f"v_cvt_pk_bf16_f32 v{vO}, v{vE}, v{vE+1}")
    e(f"v_cvt_pk_bf16_f32 v{vO+1}, v{vE+2}, v{vE+3}")
    e(f"v_cvt_pk_bf16_f32 v{vC[0]}, v{vE+4}, v{vE+5}")
    e(f"global_store_dword v{vPX}, v{vO}, s[{sP}:{sP+1}]")
    e(f"global_store_dword v{vPX}, v{vO+1}, s[{sP}:{sP+1}] offset:128")
    e(f"global_store_dword v{vPM}, v{vC[0]}, s[{sP}:{sP+1}]")
    tr(e, 6)
    adv(e, sXP, XSEG)
    if OPT.get('sleep_x', 5): e(f"s_sleep {OPT.get('sleep_x', 5)}")
    xloads()
    for a in acc + [vS]:
        for l in zero4(a): e(l)
    adv(e, sP, P_STRIDE); adv(e, sMEM, MEM_STRIDE)
    e(f"s_add_u32 s{sSTEP}, s{sSTEP}, 1")
    e(f"s_cmp_lt_u32 s{sSTEP}, {NSTEP}")
    e(f"s_cbranch_scc1 b_{uid}_step")
    dstamp(e, 3, 0, (102,103))
    if OPT.get('cnt'):
        for t in range(1, 6): dstamp(e, 30+t, 0, (102,103), sreg=63+t)
        dstamp(e, 36, 0, (102,103), sreg=69)
    tr_dump(e, (8, 9))
    e("s_endpgm")
    e.label(f"b_{uid}_redo")
    if OPT.get('cnt'): e("s_add_u32 s69, s69, 1")
    e.nop(8)
    for a in acc:
        for l in zero4(a): e(l)
    e(f"s_branch b_{uid}_gather")
    for lab, t in retries:
        e.label(f"{lab}_retry")
        if OPT.get('cnt'): e(f"s_add_u32 s{63+t}, s{63+t}, 1")
        for l in reads(t): e(l)
        tmo(e)
        e("s_waitcnt lgkmcnt(0)")
        e(f"v_cmp_gt_u32 vcc, s{sTGT}, v{FLG[t % 3]}")
        e(f"s_cbranch_vccnz {lab}_retry")
        e(f"s_branch {lab}_ok")

def helper(e):
    uid = "hp"
    e(f"s_lshl_b32 s{sT0}, s{sWAVE}, 13")
    e(f"v_lshlrev_b32 v8, 7, v{vLANE}"); e(f"v_add_u32 v8, s{sT0}, v8"); e(f"v_min_u32 v8, {MEM_STRIDE-128}, v8")
    e(f"s_lshl_b32 s{sT0}, s{sWAVE}, 12")
    e(f"v_and_b32 v9, 31, v{vLANE}"); e("v_lshlrev_b32 v9, 7, v9"); e(f"v_add_u32 v9, s{sT0}, v9")
    e(f"v_min_u32 v9, {P_STRIDE-128}, v9")
    e(f"s_mul_i32 s{sT0}, s{sWAVE}, {75*128}")
    e(f"v_lshlrev_b32 v5, 7, v{vLANE}"); e(f"v_add_u32 v5, s{sT0}, v5"); e(f"v_add_u32 v7, {64*128}, v5")
    e(f"v_min_u32 v5, {XSEG-128}, v5"); e(f"v_min_u32 v7, {XSEG-128}, v7")
    e("v_mov_b32 v6, 0")
    e(f"s_sub_u32 s64, s{sMEM}, 3072"); e(f"s_subb_u32 s65, s{sMEM+1}, 0")
    e(f"s_mov_b64 s[66:67], s[{sP}:{sP+1}]")
    e(f"s_mov_b64 s[68:69], s[{sXP}:{sXP+1}]")
    def pfx():
        e("global_load_dword v41, v8, s[64:65]"); e("global_load_dword v42, v9, s[66:67]")
        adv(e, 64, MEM_STRIDE); adv(e, 66, P_STRIDE)
    def pfa():
        e("global_load_dword v40, v5, s[68:69]")
        e("s_mov_b64 exec, 0xfff"); e("global_load_dword v43, v7, s[68:69]"); e("s_mov_b64 exec, -1")
        adv(e, 68, XSEG)
    e(f"v_and_b32 v12, 7, v{vLANE}"); e("v_lshlrev_b32 v12, 8, v12"); e(f"v_add_u32 v12, {8192 + 56*4}, v12")
    e(f"s_cmp_eq_u32 s{sWAVE}, 3"); e(f"s_cbranch_scc1 b_{uid}_relay")
    pfx(); pfx(); pfx()
    wait_xall_wave(e, 10, 11, "b_hp_xall")
    pfa(); pfa()
    e("s_waitcnt vmcnt(0)")
    e.label(f"b_{uid}_step")
    e(f"global_load_dword v2, v6, s[{sMEM}:{sMEM+1}] offset:-3072 sc1")
    tmo(e)
    e("s_waitcnt vmcnt(0)")
    e("v_cmp_eq_u32 vcc, -1, v2")
    e(f"s_cbranch_vccz b_{uid}_go")
    e("s_sleep 4"); e(f"s_branch b_{uid}_step")
    e.label(f"b_{uid}_go")
    e(f"s_add_u32 s{sT1}, s{sSTEP}, 2"); e(f"s_cmp_ge_u32 s{sT1}, 64"); e(f"s_cbranch_scc1 b_{uid}_skip")
    pfx(); pfa()
    e.label(f"b_{uid}_skip")
    adv(e, sMEM, MEM_STRIDE)
    e(f"s_add_u32 s{sSTEP}, s{sSTEP}, 1"); e(f"s_cmp_lt_u32 s{sSTEP}, {NSTEP}")
    e(f"s_cbranch_scc1 b_{uid}_step")
    e("s_endpgm")
    e.label(f"b_{uid}_relay")
    e(f"v_mov_b32 v13, {C_URDY}"); e("v_mov_b32 v14, 1")
    e(f"s_sub_u32 s64, s{sMEM}, 3072"); e(f"s_subb_u32 s65, s{sMEM+1}, 0")
    e.label(f"b_{uid}_rl")
    e(f"global_load_dword v15, v13, s[{sCN}:{sCN+1}] sc1")
    tmo(e)
    e("s_waitcnt vmcnt(0)")
    e("v_cmp_ne_u32 vcc, 16, v15")
    e(f"s_cbranch_vccz b_{uid}_rl1")
    e("s_sleep 4"); e(f"s_branch b_{uid}_rl")
    e.label(f"b_{uid}_rl1")
    e("s_mov_b64 exec, 0xff")
    e("global_load_dword v16, v12, s[64:65]")
    e("s_waitcnt vmcnt(0)")
    e("global_store_dword v12, v14, s[64:65]")
    e("s_mov_b64 exec, -1")
    adv(e, 64, MEM_STRIDE)
    e("v_add_u32 v13, 4, v13")
    e(f"s_add_u32 s{sSTEP}, s{sSTEP}, 1")
    e(f"s_cmp_lt_u32 s{sSTEP}, 4"); e(f"s_cbranch_scc1 b_{uid}_rl2")
    e.label(f"b_{uid}_rl3")
    e(f"global_load_dword v16, v6, s[{sMEM}:{sMEM+1}] offset:-3072 sc1")
    tmo(e)
    e("s_waitcnt vmcnt(0)")
    e("v_cmp_eq_u32 vcc, -1, v16")
    e(f"s_cbranch_vccz b_{uid}_rl4")
    e("s_sleep 6"); e(f"s_branch b_{uid}_rl3")
    e.label(f"b_{uid}_rl4")
    adv(e, sMEM, MEM_STRIDE)
    e.label(f"b_{uid}_rl2")
    e(f"s_cmp_lt_u32 s{sSTEP}, {NSTEP}"); e(f"s_cbranch_scc1 b_{uid}_rl")
    e("s_endpgm")

def publisher(e):
    uid = "pb"
    own = {0:[0,4], 1:[1,5], 2:[2,6], 3:[3]}
    def chunk_addr(dstL, dstG, first):
        if first: e("v_mov_b32 v20, v0")
        else:
            e("v_add_u32 v20, 256, v0"); e("v_min_u32 v20, 447, v20")
        e(f"s_mov_b32 s{sT1}, {(2**32+55)//56}")
        e(f"v_mul_hi_u32 v21, v20, s{sT1}")
        e("v_mul_u32_u24 v22, 56, v21"); e("v_sub_u32 v22, v20, v22")
        e(f"v_lshlrev_b32 v{dstG}, 4, v20")
        e("v_lshrrev_b32 v23, 3, v22"); e("v_lshlrev_b32 v23, 10, v23")
        e("v_and_b32 v24, 7, v22"); e("v_lshrrev_b32 v24, 1, v24"); e("v_lshl_add_u32 v23, v24, 8, v23")
        e("v_lshl_add_u32 v23, v21, 4, v23")
        e("v_and_b32 v24, 1, v22"); e(f"v_lshl_add_u32 v{dstL}, v24, 3, v23")
    chunk_addr(30, 31, True); chunk_addr(32, 33, False)
    adv(e, sMEM, MEM_STRIDE); adv(e, sMX, W.MEMX_STRIDE); adv(e, sMXI, W.MEMX_STRIDE)
    e(f"s_mov_b32 s{sSTEP}, 1")
    e.label(f"b_{uid}_step")
    for w in range(4):
        lab = f"b_{uid}_w{w}"
        if w < 3:
            e(f"s_cmp_eq_u32 s{sWAVE}, {w}"); e(f"s_cbranch_scc0 {lab}_n")
        e.label(lab)
        for k,t in enumerate(own[w]): e(f"global_load_dwordx4 v[{8+4*k}:{11+4*k}], v{vL16}, s[{sMEM}:{sMEM+1}] offset:{t*1024-3072} sc1")
        tmo(e)
        e("s_waitcnt vmcnt(0)")
        for l in sentinel_tree([8+j for j in range(4*len(own[w]))], 16): e(l)
        e(f"s_cbranch_vccz {lab}_ok")
        e(f"s_sleep {OPT.get('pubsleep', 2)}"); e(f"s_branch {lab}")
        e.label(f"{lab}_ok")
        for k,t in enumerate(own[w]):
            e(f"ds_write_b128 v{vL16}, v[{8+4*k}:{11+4*k}] offset:{t*1024}")
            e(f"v_add_u32 v17, {t*1024}, v{vL16}")
            e(f"global_store_dwordx4 v17, v[{8+4*k}:{11+4*k}], s[{sMXI}:{sMXI+1}] sc1")
        if w < 3:
            e(f"s_branch b_{uid}_j"); e.label(f"{lab}_n")
    e.label(f"b_{uid}_j")
    e("s_waitcnt lgkmcnt(0)"); e("s_barrier")
    for (aL, aG, d) in ((30, 31, 40), (32, 33, 44)):
        e(f"ds_read_b32 v{d}, v{aL}"); e(f"ds_read_b32 v{d+1}, v{aL} offset:128")
        e(f"ds_read_b32 v{d+2}, v{aL} offset:4"); e(f"ds_read_b32 v{d+3}, v{aL} offset:132")
    e("s_waitcnt lgkmcnt(0)")
    e(f"global_store_dwordx4 v31, v[40:43], s[{sMX}:{sMX+1}] sc1")
    e(f"global_store_dwordx4 v33, v[44:47], s[{sMX}:{sMX+1}] sc1")
    e("s_barrier")
    adv(e, sMEM, MEM_STRIDE); adv(e, sMX, W.MEMX_STRIDE); adv(e, sMXI, W.MEMX_STRIDE)
    e(f"s_add_u32 s{sSTEP}, s{sSTEP}, 1"); e(f"s_cmp_le_u32 s{sSTEP}, {NSTEP}")
    e(f"s_cbranch_scc1 b_{uid}_step")
    e("s_endpgm")

V_OWN = {0:[0,4], 1:[1,5], 2:[2,6], 3:[3]}
def value_wave(e, w):
    uid = f"vw{w}"
    vAM, vACC, vSTG = 12, 40, 52
    tl = [(hh, nt) for hh in range(4) for nt in range(2)]
    def toff(hh, nt): return (4*w+hh)*HEAD_IMG + nt*TILE
    blocks = blocks_regs(32, 176, 10)
    load_lds_tiles(e, [toff(*tl[0]), toff(*tl[1])], [V_WT + (2*w)*TILE, V_WT + (2*w+1)*TILE], vSTG, 4, 5)
    load_weights(e, blocks, [toff(*x) for x in tl[2:]], 4)
    if w == 0: dstamp(e, 10, 16, (174,175))
    vSA, vSB = 4, 5
    vT0, vT1, vT2, vT3 = 8, 9, 10, 11
    vZB = 108; vP = vACC; vO = vAM; vR = vAM+8; vU = 124
    vRW, vRR, vMS, vUA, vPA, vPMA, vZA, vMX = 156, 157, 158, 159, 160, 161, 162, 163
    vBL1, vBL2, vBS, vUF, vFA = 164, 165, 166, 167, 168
    vBR = [169,170,171,172,173][:OPT.get('vdepth', 3)]
    e(f"v_add_u32 v{vSA}, {V_WT + (2*w)*TILE}, v{vL16}")
    e(f"v_add_u32 v{vSB}, {V_WT + (2*w+1)*TILE}, v{vL16}")
    e(f"v_add_u32 v{vRW}, {V_RED + w*2048}, v{vL16}")
    nt_w, hf_w = w >> 1, w & 1
    e(f"v_lshrrev_b32 v{vT0}, 3, v{vLANE}")
    e(f"v_and_b32 v{vT1}, 7, v{vLANE}")
    e(f"v_lshrrev_b32 v{vT2}, 1, v{vT1}"); e(f"v_lshlrev_b32 v{vT2}, 2, v{vT2}")
    e(f"v_and_b32 v{vT1}, 1, v{vT1}")
    e(f"v_add_u32 v{vT2}, v{vT2}, v{vT1}"); e(f"v_add_u32 v{vT2}, {2*hf_w}, v{vT2}")
    e(f"s_sub_u32 s{sT0}, s{sROLE}, 16")
    e(f"v_lshrrev_b32 v{vT3}, 2, v{vT0}")
    e(f"v_lshl_add_u32 v{vT2}, v{vT3}, 4, v{vT2}"); e(f"v_lshlrev_b32 v{vT2}, 4, v{vT2}")
    e(f"v_and_b32 v{vT0}, 3, v{vT0}")
    e(f"v_lshl_add_u32 v{vRR}, v{vT0}, 2, v{vT2}"); e(f"v_add_u32 v{vRR}, {V_RED + nt_w*1024}, v{vRR}")
    e(f"s_lshr_b32 s{sT1}, s{sT0}, 1"); e(f"s_lshl_b32 s{sT1}, s{sT1}, 10")
    e(f"s_and_b32 s{sT2}, s{sT0}, 1"); e(f"s_lshl_b32 s{sT2}, s{sT2}, 9")
    e(f"s_add_u32 s{sT1}, s{sT1}, s{sT2}"); e(f"s_add_u32 s{sT1}, s{sT1}, {nt_w*256 + hf_w*128 + MEM_STRIDE - 3072}")
    e(f"v_lshl_add_u32 v{vMS}, v{vLANE}, 1, s{sT1}")
    e(f"s_lshl_b32 s{sT1}, s{sT0}, 15"); e(f"s_add_u32 s{sT1}, s{sT1}, {w*8192 + 4096}")
    e(f"v_add_u32 v{vUA}, s{sT1}, v{vL16}")
    e(f"v_add_u32 v{vPA}, {w*2048}, v{vL16}")
    e(f"v_lshrrev_b32 v{vT0}, 5, v{vLANE}"); e(f"v_lshlrev_b32 v{vT0}, 8, v{vT0}")
    e(f"v_and_b32 v{vT1}, 15, v{vLANE}")
    e(f"v_lshl_add_u32 v{vPMA}, v{vT1}, 4, v{vT0}"); e(f"v_add_u32 v{vPMA}, {8192 + w*512}, v{vPMA}")
    e(f"s_and_b32 s{sT1}, s{sT0}, 3"); e(f"s_lshl_b32 s{sT1}, s{sT1}, 7"); e(f"s_add_u32 s{sT1}, s{sT1}, {10240 + w*512}")
    e(f"v_and_b32 v{vT0}, 3, v{vLANE}")
    e(f"v_lshl_add_u32 v{vBL1}, v{vT0}, 2, s{sT1}")
    bell2_addr(e, vBL2, 56)
    e(f"s_sub_u32 s{sT0}, s{sROLE}, 16")
    e(f"s_lshl_b32 s{sT1}, s{sT0}, 4"); e(f"s_add_u32 s{sT1}, s{sT1}, {MEM_STRIDE + 8192 - 3072 + 4*w}")
    e(f"v_and_b32 v{vT0}, 7, v{vLANE}"); e(f"v_lshlrev_b32 v{vT0}, 8, v{vT0}")
    e(f"v_add_u32 v{vBS}, s{sT1}, v{vT0}")
    e(f"s_mov_b32 s{sEVEN}, 0x55555555"); e(f"s_mov_b32 s{sEVEN+1}, 0x55555555")
    def stg_read(vaddr, blk, tag):
        e.ds(f"ds_read_b128 v[{vSTG+8*blk}:{vSTG+8*blk+3}], v{vaddr} offset:{blk*2048}", tag)
        e.ds(f"ds_read_b128 v[{vSTG+8*blk+4}:{vSTG+8*blk+7}], v{vaddr} offset:{blk*2048+1024}", tag)
    e.lgkm = []
    for t in range(7): stg_read(vSA, t, 'sa')
    for l in zero4(vACC): e(l)
    if OPT.get('cnt'): e("s_mov_b32 s64, 0")
    e.wait_lgkm_all(); e("s_barrier")
    own = V_OWN[w]; others = [t for t in range(7) if t not in own]
    def cvt(r):
        hh, nt = tl[r]; accp = vACC + 4*(r % 3)
        return [f"v_cvt_pk_bf16_f32 v{vZB+8*nt+2*hh}, v{accp}, v{accp+1}", f"v_cvt_pk_bf16_f32 v{vZB+8*nt+2*hh+1}, v{accp+2}, v{accp+3}"]
    def zphase(tag, with_u):
        bell_wait(e, vBL2, sMEM, vBR, f"b_{uid}_bell2{tag}", 57)
        tr(e, 0)
        lab = f"b_{uid}_poll{tag}"
        e.label(lab)
        for t in own: e(gload(vAM, t))
        tmo(e)
        e("s_waitcnt vmcnt(0)")
        for l in sentinel_tree([vAM+4*t+k for t in own for k in range(4)], vT0): e(l)
        e(f"s_cbranch_vccnz {lab}")
        e.lgkm = []
        for t in own: e.ds(f"ds_write_b128 v{vL16}, v[{vAM+4*t}:{vAM+4*t+3}] offset:{V_LMEM+t*1024}", 'mw')
        e.wait_lgkm_all(); e("s_barrier")
        for t in others: e.ds(f"ds_read_b128 v[{vAM+4*t}:{vAM+4*t+3}], v{vL16} offset:{V_LMEM+t*1024}", f"am{t}")
        def uload(k):
            if OPT.get('nou'): return
            e(f"global_load_dwordx4 v[{vU+4*k}:{vU+4*k+3}], v{vUA}, s[{sUP}:{sUP+1}] offset:{k*1024-4096} {OPT.get('uflag','sc1')}")
        if with_u and not OPT.get('upace', 0):
            for k in range(8): uload(k)
        order = own + others
        for r in range(8):
            acc = vACC + 4*(r % 3); accn = vACC + 4*((r+1) % 3)
            fill = [None]*7
            if r + 1 < 8: fill[0], fill[1] = zero4(accn)
            if r > 0: fill[3], fill[4] = cvt(r-1)
            for k, t in enumerate(order if r == 0 else range(7)):
                if r == 0 and t in others: e.wait_lgkm(f"am{t}")
                if r == 0: b = ('v', vSTG+8*t)
                elif r == 1:
                    e.wait_lgkm(f"sb{t}"); b = ('v', vSTG+8*t)
                else: b = blocks[(r-2)*7+t]
                e(f"v_smfmac_f32_16x16x64_bf16 v[{acc}:{acc+3}], v[{vAM+4*t}:{vAM+4*t+3}], {reg(b,8)}, v{vIDX}")
                if r == 0: stg_read(vSB, t, f"sb{t}")
                if fill[k]: e(fill[k])
                up = OPT.get('upace', 0)
                if with_u and up == 1 and k == 5: uload(r)
                if with_u and up == 2 and r < 4 and k in (2, 5): uload(2*r + (k == 5))
                if with_u and up == 4 and r < 2 and k in (1, 2, 5, 6): uload(4*r + (1, 2, 5, 6).index(k))
        e.nop(4)
        for k in range(4): e(f"v_mov_b64 v[{vO+2*k}:{vO+2*k+1}], 0")
        for l in cvt(7): e(l)
    e.label(f"b_{uid}_step")
    zphase("", True)
    tr(e, 1)
    bell_wait(e, vBL1, sP, vBR, f"b_{uid}_bell1", 4)
    tr(e, 2)
    lab = f"b_{uid}_pollp"
    e.label(lab)
    e(f"global_load_dwordx4 v[{vP+8}:{vP+11}], v{vPMA}, s[{sP}:{sP+1}] sc1")
    e(f"global_load_dwordx4 v[{vP}:{vP+3}], v{vPA}, s[{sP}:{sP+1}] sc1")
    e(f"global_load_dwordx4 v[{vP+4}:{vP+7}], v{vPA}, s[{sP}:{sP+1}] offset:1024 sc1")
    tmo(e)
    smf2 = lambda nt, a_, b_: f"v_smfmac_f32_16x16x64_bf16 v[{vO+4*nt}:{vO+4*nt+3}], v[{a_}:{a_+3}], v[{b_}:{b_+7}], v{vIDX}"
    if OPT.get('prog', 1):
        e("s_waitcnt vmcnt(2)")
        e(smf2(0, vP+8, vZB)); e(f"v_max3_u32 v{vT0}, v{vP+8}, v{vP+9}, v{vP+10}")
        e(smf2(1, vP+8, vZB+8))
        e("s_waitcnt vmcnt(1)")
        e(smf2(0, vP, vU)); e(f"v_max3_u32 v{vT0}, v{vT0}, v{vP+11}, v{vP}")
        e(smf2(1, vP, vU+8)); e(f"v_max3_u32 v{vT0}, v{vT0}, v{vP+1}, v{vP+2}")
        e("s_waitcnt vmcnt(0)")
        e(smf2(0, vP+4, vU+16)); e(f"v_max3_u32 v{vT0}, v{vT0}, v{vP+3}, v{vP+4}")
        e(smf2(1, vP+4, vU+24)); e(f"v_max3_u32 v{vT0}, v{vT0}, v{vP+5}, v{vP+6}")
        e(f"v_max_u32 v{vT0}, v{vT0}, v{vP+7}")
        e(f"v_cmp_eq_u32 vcc, -1, v{vT0}")
        if not OPT.get('defer', 1): e(f"s_cbranch_vccnz {lab}_retry")
        tr(e, 3)
        e.nop(3 if not OPT.get('defer', 1) else 4)
        e(f"ds_write_b128 v{vRW}, v[{vO}:{vO+3}]")
        e.nop(1)
        e(f"ds_write_b128 v{vRW}, v[{vO+4}:{vO+7}] offset:1024")
        if OPT.get('defer', 1): e(f"s_cbranch_vccnz {lab}_retry")
    else:
        e("s_waitcnt vmcnt(0)")
        chk = sentinel_tree(list(range(vP, vP+12)), vT0)
        ms = [smf2(0, vP+8, vZB), smf2(0, vP, vU), smf2(0, vP+4, vU+16), smf2(1, vP+8, vZB+8), smf2(1, vP, vU+8), smf2(1, vP+4, vU+24)]
        ci = 0
        for m_ in ms:
            e(m_)
            if ci < len(chk): e(chk[ci]); ci += 1
        while ci < len(chk): e(chk[ci]); ci += 1
        e(f"s_cbranch_vccnz {lab}_retry")
        e.nop(2)
        e(f"ds_write_b128 v{vRW}, v[{vO}:{vO+3}]")
        e.nop(4)
        e(f"ds_write_b128 v{vRW}, v[{vO+4}:{vO+7}] offset:1024")
    def ring2():
        e("s_mov_b64 exec, 0xff")
        e(f"global_store_dword v{vBS}, v{vLANE}, s[{sMEM}:{sMEM+1}]")
        e("s_mov_b64 exec, -1")
    r2 = OPT.get('ring2', 1)
    if r2 == 0: ring2()
    e("s_waitcnt lgkmcnt(0)")
    if r2 == 3: ring2()
    e("s_barrier")
    tr(e, 4)
    if r2 == 1: ring2()
    for ww in range(4): e(f"ds_read2st64_b32 v[{vR+2*ww}:{vR+2*ww+1}], v{vRR} offset0:{ww*8} offset1:{ww*8+2}")
    if r2 == 4: ring2()
    e("s_waitcnt lgkmcnt(0)")
    if r2 == 5: ring2()
    e(f"v_pk_add_f32 v[{vR}:{vR+1}], v[{vR}:{vR+1}], v[{vR+2}:{vR+3}]")
    e(f"v_pk_add_f32 v[{vR+4}:{vR+5}], v[{vR+4}:{vR+5}], v[{vR+6}:{vR+7}]")
    e(f"v_pk_add_f32 v[{vR}:{vR+1}], v[{vR}:{vR+1}], v[{vR+4}:{vR+5}]")
    e(f"v_add_f32 v{vR}, v{vR}, v{vR+1}")
    if OPT.get('short', 0):
        e(f"v_cvt_pk_bf16_f32 v{vR+2}, v{vR}, v{vR}")
        e(f"global_store_short v{vMS}, v{vR+2}, s[{sMEM}:{sMEM+1}]")
    else:
        e.nop(2)
        e(f"v_mov_b32_dpp v{vR+1}, v{vR} quad_perm:[1,0,3,2] row_mask:0xf bank_mask:0xf")
        e(f"v_cvt_pk_bf16_f32 v{vR+2}, v{vR}, v{vR+1}")
        e(f"s_mov_b64 exec, s[{sEVEN}:{sEVEN+1}]")
        e(f"global_store_dword v{vMS}, v{vR+2}, s[{sMEM}:{sMEM+1}]")
        e("s_mov_b64 exec, -1")
    tr(e, 5)
    e.lgkm = []
    for t in range(7): stg_read(vSA, t, 'sa')
    for l in zero4(vACC): e(l)
    adv(e, sMEM, MEM_STRIDE); adv(e, sP, P_STRIDE); adv(e, sUP, U_SEG)
    e(f"s_add_u32 s{sSTEP}, s{sSTEP}, 1")
    e(f"s_cmp_lt_u32 s{sSTEP}, {NSTEP}")
    e.wait_lgkm_all()
    e(f"s_cbranch_scc1 b_{uid}_step")
    if w == 0: dstamp(e, 11, 16, (174,175))
    if OPT.get('cnt'): dstamp(e, 40+w, 20, (174,175), sreg=64)
    tr_dump(e, (8, 9))
    e("s_endpgm")
    e.label(f"{lab}_retry")
    if OPT.get('cnt'): e("s_add_u32 s64, s64, 1")
    e.nop(8)
    for k in range(4): e(f"v_mov_b64 v[{vO+2*k}:{vO+2*k+1}], 0")
    e(f"s_branch {lab}")

NJ = 3
XB0, XB1 = 0, XSEG
W_RED = 2*XSEG
W_MEMR = W_RED + 24576
def worker_common_setup(e, which):
    e(f"s_and_b32 s{sH}, s{sROLE}, 15"); e(f"s_lshr_b32 s{sJ}, s{sROLE}, 4")
    e(f"s_mul_i32 s{sT0}, s{sH}, {HEAD_IMG}")
    e(f"s_add_u32 s{sT0}, s{sT0}, {which*16*HEAD_IMG}")
    e(f"s_mul_i32 s{sT1}, s{sWAVE}, {7*TILE}")
    e(f"s_add_u32 s{sT0}, s{sT0}, s{sT1}")
    e(f"s_add_u32 s{sW}, s{sW}, s{sT0}"); e(f"s_addc_u32 s{sW+1}, s{sW+1}, 0")
def dma_xa(e, vsrc):
    e(f"s_mul_i32 s{sT0}, s{sT3}, {XSEG}")
    e(f"s_mul_i32 s{sT1}, s{sWAVE}, 7168")
    e(f"s_add_u32 s{sT0}, s{sT0}, s{sT1}")
    e(f"v_add_u32 v{vsrc}, s{sT0}, v{vL16}")
    e(f"s_add_u32 s{sT1}, s{sT1}, s{sT4}")
    for k in range(7):
        e(f"s_add_u32 m0, s{sT1}, {k*1024}")
        e("s_nop 0")
        e(f"global_load_lds_dwordx4 v{vsrc}, s[{sXP}:{sXP+1}] sc1")
        e(f"v_add_u32 v{vsrc}, 1024, v{vsrc}")
def gemm_main(e, blocks, acc, vXB, ring, swap):
    e.lgkm = []
    steps = [(u, kt) for u in range(14) for kt in range(2)]
    NR = len(ring)
    def rd(n):
        u, kt = steps[n]; r = ring[n % NR]
        e.ds(f"ds_read_b128 v[{r}:{r+3}], v{vXB} offset:{kt*14336 + u*1024}", f"x{n}")
    for n in range(NR): rd(n)
    for n, (u, kt) in enumerate(steps):
        e.wait_lgkm(f"x{n}")
        r = ring[n % NR]
        for i in range(7):
            b = blocks[i*7 + (u >> 1)]; wv = reg((b[0], b[1] + 4*(u & 1)), 4)
            a = acc(kt, i); c = "0" if u == 0 else f"v[{a}:{a+3}]"
            if swap: e(f"v_mfma_f32_16x16x32_bf16 v[{a}:{a+3}], {wv}, v[{r}:{r+3}], {c}")
            else:    e(f"v_mfma_f32_16x16x32_bf16 v[{a}:{a+3}], v[{r}:{r+3}], {wv}, {c}")
        if n + NR < len(steps): rd(n + NR)

def seg_loop_head(e, uid, vsrc):
    e(f"s_mov_b32 s{sSEG}, s{sJ}"); e(f"s_mov_b32 s{sBUF}, 0")
    e(f"s_mov_b32 s{sT3}, s{sSEG}"); e(f"s_mov_b32 s{sT4}, 0")
    dma_xa(e, vsrc)
    e.label(f"b_{uid}_seg")
    e("s_waitcnt vmcnt(0)"); e("s_barrier")
    e(f"s_add_u32 s{sT3}, s{sSEG}, {NJ}"); e(f"s_cmp_ge_u32 s{sT3}, 64"); e(f"s_cbranch_scc1 b_{uid}_nopf")
    e(f"s_xor_b32 s{sT4}, s{sBUF}, {XSEG}")
    dma_xa(e, vsrc)
    e.label(f"b_{uid}_nopf")
def seg_loop_tail(e, uid):
    e(f"s_add_u32 s{sSEG}, s{sSEG}, {NJ}"); e(f"s_xor_b32 s{sBUF}, s{sBUF}, {XSEG}")
    e(f"s_cmp_lt_u32 s{sSEG}, 64"); e(f"s_cbranch_scc1 b_{uid}_seg")

def signal_add(e, soff, vA, vB_):
    signal_add.n += 1
    e(f"s_cmp_lg_u32 s{sWAVE}, 0"); e(f"s_cbranch_scc1 .Lsig{signal_add.n}")
    e(f"v_mov_b32 v{vA}, s{soff}"); e(f"v_mov_b32 v{vB_}, 1")
    e("s_mov_b64 exec, 1")
    e(f"global_atomic_add v{vA}, v{vB_}, s[{sCN}:{sCN+1}] sc1")
    e("s_mov_b64 exec, -1")
    e.label(f".Lsig{signal_add.n}")
signal_add.n = 0
def wait_counter(e, soff, target, vA, vB_, lab, sleep=8):
    e(f"s_cmp_lg_u32 s{sWAVE}, 0"); e(f"s_cbranch_scc1 {lab}_ok")
    e(f"v_mov_b32 v{vA}, s{soff}")
    e("s_mov_b64 exec, 1")
    e.label(lab)
    e(f"global_load_dword v{vB_}, v{vA}, s[{sCN}:{sCN+1}] sc1")
    tmo(e)
    e("s_waitcnt vmcnt(0)")
    e(f"v_cmp_ne_u32 vcc, {target}, v{vB_}")
    e(f"s_cbranch_vccz {lab}_got")
    e(f"s_sleep {sleep}"); e(f"s_branch {lab}")
    e.label(f"{lab}_got")
    e("s_mov_b64 exec, -1")
    e.label(f"{lab}_ok")
    e("s_barrier")

def wait_xall_wave(e, vA, vB_, lab):
    e(f"v_mov_b32 v{vA}, {C_XALL}")
    e("s_mov_b64 exec, 1")
    e.label(lab)
    e(f"global_load_dword v{vB_}, v{vA}, s[{sCN}:{sCN+1}] sc1")
    tmo(e)
    e("s_waitcnt vmcnt(0)")
    e(f"v_cmp_ne_u32 vcc, 64, v{vB_}")
    e(f"s_cbranch_vccz {lab}_got")
    e("s_sleep 4"); e(f"s_branch {lab}")
    e.label(f"{lab}_got")
    e("s_mov_b64 exec, -1")

def wait_word(e, sbase, soff, vA, vB_, lab, sleep):
    e(f"s_cmp_lg_u32 s{sWAVE}, 0"); e(f"s_cbranch_scc1 {lab}_ok")
    e(f"v_mov_b32 v{vA}, s{soff}")
    e("s_mov_b64 exec, 1")
    e.label(lab)
    e(f"global_load_dword v{vB_}, v{vA}, s[{sbase}:{sbase+1}] sc1")
    tmo(e)
    e("s_waitcnt vmcnt(0)")
    e(f"v_cmp_eq_u32 vcc, -1, v{vB_}")
    e(f"s_cbranch_vccz {lab}_got")
    e(f"s_sleep {sleep}"); e(f"s_branch {lab}")
    e.label(f"{lab}_got")
    e("s_mov_b64 exec, -1")
    e.label(f"{lab}_ok")
    e("s_barrier")

def u_worker(e):
    uid = "uw"
    worker_common_setup(e, 1)
    blocks = blocks_regs(32, 120, 17)
    load_weights(e, blocks, [i*TILE for i in range(7)], 4)
    dstamp(e, 12, 0, (116,117))
    e(f"s_mov_b32 s{sT0}, {C_XALL}"); wait_counter(e, sT0, 64, 4, 5, "b_uw_xall", 4)
    vSRC, vXB, vUA = 4, 5, 6
    ACC = 8
    acc = lambda kt, i: ACC + (kt*7+i)*4
    ring = [64, 68, 72, 76]; vO = 80
    e(f"s_mov_b32 s{sPREV}, 255")
    e(f"s_mov_b32 s{sSEG}, s{sJ}"); e(f"s_mov_b32 s{sBUF}, 0")
    e(f"s_mov_b32 s{sT3}, s{sSEG}"); e(f"s_mov_b32 s{sT4}, 0")
    dma_xa(e, vSRC)
    e("s_waitcnt vmcnt(0)")
    e.label(f"b_{uid}_seg")
    e("s_barrier")
    e(f"s_add_u32 s{sT3}, s{sSEG}, {NJ}"); e(f"s_cmp_ge_u32 s{sT3}, 64"); e(f"s_cbranch_scc1 b_{uid}_nopf")
    e(f"s_xor_b32 s{sT4}, s{sBUF}, {XSEG}")
    dma_xa(e, vSRC)
    e.label(f"b_{uid}_nopf")
    e(f"v_add_u32 v{vXB}, s{sBUF}, v{vL16}")
    gemm_main(e, blocks, acc, vXB, ring, False)
    e("s_waitcnt vmcnt(0)"); e("s_barrier")
    e(f"s_cmp_eq_u32 s{sPREV}, 255"); e(f"s_cbranch_scc1 b_{uid}_nosig")
    e(f"s_lshl_b32 s{sT0}, s{sPREV}, 2"); e(f"s_add_u32 s{sT0}, s{sT0}, {C_URDY}")
    signal_add(e, sT0, 80, 81)
    e.label(f"b_{uid}_nosig")
    e(f"s_mul_i32 s{sT0}, s{sSEG}, {U_SEG}")
    e(f"s_lshr_b32 s{sT1}, s{sH}, 1"); e(f"s_lshl_b32 s{sT1}, s{sT1}, 12"); e(f"s_add_u32 s{sT0}, s{sT0}, s{sT1}")
    e(f"s_and_b32 s{sT1}, s{sH}, 1"); e(f"s_lshl_b32 s{sT1}, s{sT1}, 10"); e(f"s_add_u32 s{sT0}, s{sT0}, s{sT1}")
    e(f"s_mul_i32 s{sT2}, s{sWAVE}, 7")
    for i in range(7):
        e(f"s_add_u32 s{sT1}, s{sT2}, {i}")
        e(f"s_lshr_b32 s{sT3}, s{sT1}, 1"); e(f"s_lshl_b32 s{sT3}, s{sT3}, 15")
        e(f"s_and_b32 s{sT1}, s{sT1}, 1"); e(f"s_lshl_b32 s{sT1}, s{sT1}, 11")
        e(f"s_add_u32 s{sT3}, s{sT3}, s{sT1}"); e(f"s_add_u32 s{sT3}, s{sT3}, s{sT0}")
        e(f"v_add_u32 v{vUA}, s{sT3}, v{vL16}")
        o = vO + 4*(i % 2)
        a0, a1 = acc(0,i), acc(1,i)
        e(f"v_cvt_pk_bf16_f32 v{o}, v{a0}, v{a0+1}"); e(f"v_cvt_pk_bf16_f32 v{o+1}, v{a0+2}, v{a0+3}")
        e(f"v_cvt_pk_bf16_f32 v{o+2}, v{a1}, v{a1+1}"); e(f"v_cvt_pk_bf16_f32 v{o+3}, v{a1+2}, v{a1+3}")
        e(f"global_store_dwordx4 v{vUA}, v[{o}:{o+3}], s[{sUP}:{sUP+1}] sc1")
    e(f"s_mov_b32 s{sPREV}, s{sSEG}")
    e(f"s_cmp_ge_u32 s{sSEG}, {2*NJ}"); e(f"s_cbranch_scc1 b_{uid}_lazy")
    e("s_waitcnt vmcnt(0)"); e("s_barrier")
    e(f"s_lshl_b32 s{sT0}, s{sPREV}, 2"); e(f"s_add_u32 s{sT0}, s{sT0}, {C_URDY}")
    signal_add(e, sT0, 80, 81)
    e(f"s_mov_b32 s{sPREV}, 255")
    e.label(f"b_{uid}_lazy")
    if DIAG[0]:
        e(f"s_mov_b32 s{sSTEP}, s{sSEG}"); dstamp(e, 13, 0, (116,117), step=0)
    e(f"s_add_u32 s{sSEG}, s{sSEG}, {NJ}"); e(f"s_xor_b32 s{sBUF}, s{sBUF}, {XSEG}")
    e(f"s_cmp_lt_u32 s{sSEG}, 64"); e(f"s_cbranch_scc1 b_{uid}_seg")
    e("s_waitcnt vmcnt(0)"); e("s_barrier")
    e(f"s_cmp_eq_u32 s{sPREV}, 255"); e(f"s_cbranch_scc1 b_{uid}_fin")
    e(f"s_lshl_b32 s{sT0}, s{sPREV}, 2"); e(f"s_add_u32 s{sT0}, s{sT0}, {C_URDY}")
    signal_add(e, sT0, 80, 81)
    e.label(f"b_{uid}_fin")
    dstamp(e, 14, 0, (116,117))
    z_worker(e, blocks)

def z_worker(e, blocks):
    vIDX_, am = vIDX, 12
    ACC = 40
    vZA, vT = 4, 5
    e(f"s_mov_b32 s{sSEG}, s{sJ}")
    e.label("b_zw_seg")
    e(f"s_mul_i32 s{sT0}, s{sSEG}, {W.MEMX_STRIDE}")
    e(f"s_add_u32 s{sT1}, s{sT0}, 7164")
    wait_word(e, sMXI, sT1, 6, 7, "b_zw_pre", OPT.get('zsleep', 8))
    e(f"v_add_u32 v{vT}, s{sT0}, v{vL16}"); e(f"v_add_u32 v6, 4096, v{vT}")
    e.label("b_zw_poll")
    for t in range(7):
        if t < 4: e(f"global_load_dwordx4 v[{am+4*t}:{am+4*t+3}], v{vT}, s[{sMXI}:{sMXI+1}] offset:{t*1024} sc1")
        else:     e(f"global_load_dwordx4 v[{am+4*t}:{am+4*t+3}], v6, s[{sMXI}:{sMXI+1}] offset:{(t-4)*1024} sc1")
    tmo(e)
    for i in range(7):
        for l in zero4(ACC+4*i): e(l)
    e("s_waitcnt vmcnt(0)")
    for l in sentinel_tree([am+k for k in range(28)], 7): e(l)
    e("s_cbranch_vccz b_zw_ok")
    e("s_sleep 2"); e("s_branch b_zw_poll")
    e.label("b_zw_ok")
    for t in range(7):
        for i in range(7):
            e(f"v_smfmac_f32_16x16x64_bf16 v[{ACC+4*i}:{ACC+4*i+3}], v[{am+4*t}:{am+4*t+3}], {reg(blocks[i*7+t],8)}, v{vIDX_}")
    e(f"s_mul_i32 s{sT0}, s{sSEG}, {W.ZM_SEG}")
    e(f"s_lshr_b32 s{sT1}, s{sH}, 2"); e(f"s_lshl_b32 s{sT1}, s{sT1}, 12"); e(f"s_add_u32 s{sT0}, s{sT0}, s{sT1}")
    e(f"s_lshr_b32 s{sT1}, s{sH}, 1"); e(f"s_and_b32 s{sT1}, s{sT1}, 1"); e(f"s_lshl_b32 s{sT1}, s{sT1}, 10"); e(f"s_add_u32 s{sT0}, s{sT0}, s{sT1}")
    e(f"s_and_b32 s{sT1}, s{sH}, 1"); e(f"s_lshl_b32 s{sT1}, s{sT1}, 3"); e(f"s_add_u32 s{sT0}, s{sT0}, s{sT1}")
    e(f"s_mul_i32 s{sT2}, s{sWAVE}, 7")
    e.nop(2)
    for i in range(7):
        e(f"s_add_u32 s{sT1}, s{sT2}, {i}")
        e(f"s_lshr_b32 s{sT3}, s{sT1}, 1"); e(f"s_lshl_b32 s{sT3}, s{sT3}, 14")
        e(f"s_and_b32 s{sT1}, s{sT1}, 1"); e(f"s_lshl_b32 s{sT1}, s{sT1}, 11")
        e(f"s_add_u32 s{sT3}, s{sT3}, s{sT1}"); e(f"s_add_u32 s{sT3}, s{sT3}, s{sT0}")
        e(f"v_add_u32 v{vZA}, s{sT3}, v{vL16}")
        a = ACC+4*i; o = 8 + 2*(i % 2)
        e(f"v_cvt_pk_bf16_f32 v{o}, v{a}, v{a+1}"); e(f"v_cvt_pk_bf16_f32 v{o+1}, v{a+2}, v{a+3}")
        e(f"global_store_dwordx2 v{vZA}, v[{o}:{o+1}], s[{sZM}:{sZM+1}] sc1")
    e("s_waitcnt vmcnt(0)"); e("s_barrier")
    e(f"s_lshl_b32 s{sT0}, s{sSEG}, 7"); e(f"s_add_u32 s{sT0}, s{sT0}, {C_RDY2}")
    signal_add(e, sT0, 80, 81)
    e(f"s_add_u32 s{sSEG}, s{sSEG}, {NJ}"); e(f"s_cmp_lt_u32 s{sSEG}, 64"); e("s_cbranch_scc1 b_zw_seg")
    e("s_endpgm")

def pv_loop(e):
    vA, vB_, vT, vRes = 4, 5, 6, 8
    PX, PM, UU, ZZ, ACC = 16, 48, 64, 96, 112
    vRW, vRR, vXO = 128, 129, 130
    sTASK, sC = sPREV, sJ
    e(f"s_mov_b32 s{sTASK}, s{sROLE}")
    e(f"s_lshl_b32 s{sT0}, s{sWAVE}, 12"); e(f"v_add_u32 v{vRW}, s{sT0}, v{vL16}")
    e("v_lshrrev_b32 v10, 3, v0"); e("v_and_b32 v11, 7, v0")
    e("v_lshrrev_b32 v12, 4, v10"); e("v_lshlrev_b32 v12, 11, v12")
    e("v_lshrrev_b32 v13, 2, v11"); e("v_lshl_add_u32 v12, v13, 10, v12")
    e("v_and_b32 v13, 15, v10"); e("v_lshrrev_b32 v13, 2, v13"); e("v_lshl_add_u32 v12, v13, 8, v12")
    e("v_and_b32 v13, 3, v11"); e("v_lshl_add_u32 v12, v13, 6, v12")
    e("v_and_b32 v13, 3, v10"); e(f"v_lshl_add_u32 v{vRR}, v13, 2, v12")
    e(f"v_mul_u32_u24 v{vXO}, 896, v10"); e(f"v_lshl_add_u32 v{vXO}, v11, 3, v{vXO}")
    e.label("b_pv_task")
    e(f"s_mul_hi_u32 s{sSEG}, s{sTASK}, {(2**32+13)//14}")
    e(f"s_mul_i32 s{sT0}, s{sSEG}, 14"); e(f"s_sub_u32 s{sC}, s{sTASK}, s{sT0}")
    e(f"s_lshl_b32 s{sT0}, s{sSEG}, 7"); e(f"s_add_u32 s{sT0}, s{sT0}, {C_RDY2}")
    wait_counter(e, sT0, 32, vA, vB_, "b_pv_wp", OPT.get('pvsleep', 10))
    e(f"s_lshl_b32 s{sT0}, s{sSEG}, 2"); e(f"s_add_u32 s{sT0}, s{sT0}, {C_URDY}")
    wait_counter(e, sT0, 16, vA, vB_, "b_pv_wu", 10)
    e(f"s_mul_i32 s{sT0}, s{sSEG}, {W.PX_SEG}"); e(f"s_lshl_b32 s{sT1}, s{sWAVE}, 13"); e(f"s_add_u32 s{sT1}, s{sT1}, s{sT0}")
    e(f"v_add_u32 v{vT}, s{sT1}, v{vL16}")
    for k in range(8):
        e(f"global_load_dwordx4 v[{PX+4*k}:{PX+4*k+3}], v{vT}, s[{sPX}:{sPX+1}] offset:{(k%4)*1024} sc1")
        if k == 3: e(f"v_add_u32 v{vT}, 4096, v{vT}")
    e(f"s_lshl_b32 s{sT1}, s{sWAVE}, 12"); e(f"s_add_u32 s{sT1}, s{sT1}, s{sT0}"); e(f"s_add_u32 s{sT1}, s{sT1}, 32768")
    e(f"v_add_u32 v{vT}, s{sT1}, v{vL16}")
    for k in range(4): e(f"global_load_dwordx4 v[{PM+4*k}:{PM+4*k+3}], v{vT}, s[{sPX}:{sPX+1}] offset:{k*1024} sc1")
    e(f"s_mul_i32 s{sT0}, s{sSEG}, {U_SEG}"); e(f"s_lshl_b32 s{sT1}, s{sC}, 15"); e(f"s_add_u32 s{sT0}, s{sT0}, s{sT1}")
    e(f"s_lshl_b32 s{sT1}, s{sWAVE}, 13"); e(f"s_add_u32 s{sT0}, s{sT0}, s{sT1}")
    e(f"v_add_u32 v{vT}, s{sT0}, v{vL16}")
    for k in range(8):
        e(f"global_load_dwordx4 v[{UU+4*k}:{UU+4*k+3}], v{vT}, s[{sUP}:{sUP+1}] offset:{(k%4)*1024} sc1")
        if k == 3: e(f"v_add_u32 v{vT}, 4096, v{vT}")
    e(f"s_mul_i32 s{sT0}, s{sSEG}, {W.ZM_SEG}"); e(f"s_lshl_b32 s{sT1}, s{sC}, 14"); e(f"s_add_u32 s{sT0}, s{sT0}, s{sT1}")
    e(f"s_lshl_b32 s{sT1}, s{sWAVE}, 12"); e(f"s_add_u32 s{sT0}, s{sT0}, s{sT1}")
    e(f"v_add_u32 v{vT}, s{sT0}, v{vL16}")
    for k in range(4): e(f"global_load_dwordx4 v[{ZZ+4*k}:{ZZ+4*k+3}], v{vT}, s[{sZM}:{sZM+1}] offset:{k*1024} sc1")
    e(f"s_mul_i32 s{sT0}, s{sSEG}, {32*896}"); e(f"s_lshl_b32 s{sT1}, s{sC}, 6"); e(f"s_add_u32 s{sT0}, s{sT0}, s{sT1}")
    e(f"v_add_u32 v{vT}, s{sT0}, v{vXO}")
    e(f"global_load_dwordx2 v[{vRes}:{vRes+1}], v{vT}, s[{sRES}:{sRES+1}] sc1")
    e("s_waitcnt vmcnt(0)")
    for qt in range(2):
        for nt in range(2):
            a = ACC + 4*(2*qt+nt); first = True
            for hh in range(4):
                kp, b = hh >> 1, hh & 1
                c = "0" if first else f"v[{a}:{a+3}]"; first = False
                e(f"v_mfma_f32_16x16x32_bf16 v[{a}:{a+3}], v[{PX+4*(2*hh+qt)}:{PX+4*(2*hh+qt)+3}], v[{UU+4*(4*kp+2*nt+b)}:{UU+4*(4*kp+2*nt+b)+3}], {c}")
            for pp in range(2):
                e(f"v_mfma_f32_16x16x32_bf16 v[{a}:{a+3}], v[{PM+4*(2*pp+qt)}:{PM+4*(2*pp+qt)+3}], v[{ZZ+4*(2*nt+pp)}:{ZZ+4*(2*nt+pp)+3}], v[{a}:{a+3}]")
    e.nop(8)
    for k in range(4): e(f"ds_write_b128 v{vRW}, v[{ACC+4*k}:{ACC+4*k+3}] offset:{k*1024}")
    e("s_waitcnt lgkmcnt(0)"); e("s_barrier")
    for ww in range(4):
        for k in range(4): e(f"ds_read_b32 v{16+4*ww+k}, v{vRR} offset:{ww*4096 + k*16}")
    e("s_waitcnt lgkmcnt(0)")
    for k in range(4):
        e(f"v_add_f32 v{16+k}, v{16+k}, v{20+k}"); e(f"v_add_f32 v{24+k}, v{24+k}, v{28+k}"); e(f"v_add_f32 v{16+k}, v{16+k}, v{24+k}")
    for h2 in range(2):
        e(f"v_cvt_pk_bf16_f32 v32, v{16+2*h2}, v{17+2*h2}")
        e("v_lshlrev_b32 v33, 16, v32"); e("v_and_b32 v34, 0xffff0000, v32")
        e(f"v_lshlrev_b32 v35, 16, v{vRes+h2}"); e(f"v_and_b32 v36, 0xffff0000, v{vRes+h2}")
        e("v_add_f32 v33, v33, v35"); e("v_add_f32 v34, v34, v36")
        e(f"v_cvt_pk_bf16_f32 v{38+h2}, v33, v34")
    e(f"global_store_dwordx2 v{vT}, v[38:39], s[{sOUT}:{sOUT+1}]")
    e(f"s_add_u32 s{sTASK}, s{sTASK}, 64"); e(f"s_cmp_lt_u32 s{sTASK}, 896"); e("s_cbranch_scc1 b_pv_task")
    dstamp(e, 15, 0, (116,117)); dstamp(e, 18, 63, (116,117)); dstamp(e, 19, 50, (116,117))
    e("s_endpgm")

def fcpv_worker(e):
    smap = {2: sROLE, 3: sWAVE}
    for k in range(6, 24): smap[k] = 70 + k
    k_fft.fc_body(e, smap, "sc1")
    e("s_waitcnt vmcnt(0)"); e("s_barrier")
    e(f"s_mov_b32 s{sT0}, {C_XALL}"); signal_add(e, sT0, 4, 5)
    dstamp(e, 20, 0, (116,117))
    e(f"v_lshlrev_b32 v{vL16}, 4, v{vLANE}")
    pv_loop(e)

def p_worker(e):
    if OPT.get('nopw'): e("s_endpgm")
    uid = "pw"
    worker_common_setup(e, 0)
    blocks = blocks_regs(32, 120, 17)
    e(f"s_mov_b32 s{sT0}, {C_XALL}"); wait_counter(e, sT0, 64, 4, 5, "b_pw_xall", 8)
    load_weights(e, blocks, [i*TILE for i in range(7)], 4)
    dstamp(e, 16, 0, (116,117))
    vSRC, vXB, vKA, vMA = 4, 5, 6, 7
    ACC = 8
    acc = lambda qt, i: ACC + (qt*7+i)*4
    ring = [64, 68, 72, 76]
    RB = 80
    SA = 64
    vT = 112; vT2 = 113; vT3 = 114; vMEM = 116
    e(f"v_and_b32 v{vT}, 15, v{vLANE}"); e(f"v_lshrrev_b32 v{vT2}, 4, v{vLANE}")
    e(f"v_lshlrev_b32 v{vKA}, 4, v{vT}")
    e(f"v_lshrrev_b32 v{vT3}, 1, v{vT2}"); e(f"v_lshl_add_u32 v{vKA}, v{vT3}, 8, v{vKA}")
    e(f"v_and_b32 v{vT3}, 1, v{vT2}"); e(f"v_lshl_add_u32 v{vKA}, v{vT3}, 3, v{vKA}")
    e(f"s_mul_i32 s{sT0}, s{sWAVE}, 3584"); e(f"v_add_u32 v{vKA}, s{sT0}, v{vKA}")
    e(f"v_and_b32 v{vMA}, 7, v{vT}"); e(f"v_mul_u32_u24 v{vMA}, 912, v{vMA}")
    e(f"v_lshl_add_u32 v{vMA}, v{vT2}, 3, v{vMA}")
    e(f"s_mul_i32 s{sT0}, s{sWAVE}, 224"); e(f"s_add_u32 s{sT0}, s{sT0}, {W_MEMR}"); e(f"v_add_u32 v{vMA}, s{sT0}, v{vMA}")
    seg_loop_head(e, uid, vSRC)
    e(f"v_add_u32 v{vXB}, s{sBUF}, v{vL16}")
    gemm_main(e, blocks, acc, vXB, ring, True)
    e.nop(8)
    for qt in range(2):
        for p in range(4):
            o = RB + 16*qt + 4*p
            a0 = acc(qt, 2*p)
            e(f"v_cvt_pk_bf16_f32 v{o}, v{a0}, v{a0+1}"); e(f"v_cvt_pk_bf16_f32 v{o+1}, v{a0+2}, v{a0+3}")
            if p < 3:
                a1 = acc(qt, 2*p+1)
                e(f"v_cvt_pk_bf16_f32 v{o+2}, v{a1}, v{a1+1}"); e(f"v_cvt_pk_bf16_f32 v{o+3}, v{a1+2}, v{a1+3}")
            else:
                e(f"v_mov_b64 v[{o+2}:{o+3}], 0")
    S = lambda kt, qt: 8 + (kt*2+qt)*4
    e(f"v_add_u32 v{vT}, s{sBUF}, v{vKA}")
    def key_reads(kt, p, dst):
        i0, i1 = 2*p, min(2*p+1, 6)
        if kt == 0:
            e(f"ds_read_b64 v[{dst}:{dst+1}], v{vMA} offset:{i0*32}"); e(f"ds_read_b64 v[{dst+2}:{dst+3}], v{vMA} offset:{i1*32}")
        else:
            e(f"ds_read_b64 v[{dst}:{dst+1}], v{vT} offset:{(kt-1)*14336 + i0*512}"); e(f"ds_read_b64 v[{dst+2}:{dst+3}], v{vT} offset:{(kt-1)*14336 + i1*512}")
    def s_mfmas(kts):
        for kt in kts:
            for p in range(4): key_reads(kt, p, 32+4*p)
            e("s_waitcnt lgkmcnt(0)")
            for p in range(4):
                for qt in range(2):
                    a = S(kt, qt); c = "0" if p == 0 else f"v[{a}:{a+3}]"
                    e(f"v_mfma_f32_16x16x32_bf16 v[{a}:{a+3}], v[{32+4*p}:{35+4*p}], v[{RB+16*qt+4*p}:{RB+16*qt+4*p+3}], {c}")
            e.nop(2)
    s_mfmas([1, 2])
    e(f"s_mul_i32 s{sT0}, s{sSEG}, {W.MEMX_STRIDE}")
    e(f"s_add_u32 s{sT1}, s{sT0}, 7164")
    wait_word(e, sMX, sT1, 56, 57, "b_pw_pre", OPT.get('psleep', 8))
    e(f"v_lshlrev_b32 v{vT2}, 4, v0"); e(f"v_add_u32 v{vT2}, s{sT0}, v{vT2}")
    e(f"v_add_u32 v{vT3}, 256, v0"); e(f"v_min_u32 v{vT3}, 447, v{vT3}"); e(f"v_lshlrev_b32 v{vT3}, 4, v{vT3}"); e(f"v_add_u32 v{vT3}, s{sT0}, v{vT3}")
    e.label("b_pw_wm")
    e(f"global_load_dwordx4 v[48:51], v{vT2}, s[{sMX}:{sMX+1}] sc1")
    e(f"global_load_dwordx4 v[52:55], v{vT3}, s[{sMX}:{sMX+1}] sc1")
    tmo(e)
    e("s_waitcnt vmcnt(0)")
    for l in sentinel_tree(list(range(48, 56)), 56): e(l)
    e("s_cbranch_vccz b_pw_wm_ok")
    e("s_sleep 2"); e("s_branch b_pw_wm")
    e.label("b_pw_wm_ok")
    for k,(src, dat) in enumerate(((0, 48), (1, 52))):
        if k == 0: e("v_mov_b32 v56, v0")
        else:
            e("v_add_u32 v56, 256, v0"); e("v_min_u32 v56, 447, v56")
        e(f"s_mov_b32 s{sT1}, {(2**32+55)//56}")
        e(f"v_mul_hi_u32 v57, v56, s{sT1}"); e("v_mul_u32_u24 v58, 56, v57"); e("v_sub_u32 v58, v56, v58")
        e("v_mul_u32_u24 v57, 912, v57"); e("v_lshl_add_u32 v57, v58, 4, v57")
        e(f"v_add_u32 v57, {W_MEMR}, v57")
        e(f"ds_write_b128 v57, v[{dat}:{dat+3}]")
    e("s_waitcnt lgkmcnt(0)"); e("s_barrier")
    s_mfmas([0])
    e(f"s_mul_i32 s{sT0}, s{sWAVE}, 6144"); e(f"s_add_u32 s{sT0}, s{sT0}, {W_RED}")
    e(f"v_add_u32 v{vT2}, s{sT0}, v{vL16}")
    e.nop(6)
    for k in range(6): e(f"ds_write_b128 v{vT2}, v[{8+4*k}:{11+4*k}] offset:{k*1024}")
    e("s_waitcnt lgkmcnt(0)"); e("s_barrier")
    e(f"s_cmp_ge_u32 s{sWAVE}, 2"); e("s_cbranch_scc1 b_pw_fin")
    e(f"s_lshl_b32 s{sT0}, s{sWAVE}, 10"); e(f"s_add_u32 s{sT0}, s{sT0}, {W_RED}")
    e(f"v_add_u32 v{vT2}, s{sT0}, v{vL16}")
    for ww in range(4):
        for kt in range(3): e(f"ds_read_b128 v[{64+12*ww+4*kt}:{67+12*ww+4*kt}], v{vT2} offset:{ww*6144 + kt*2048}")
    e("s_waitcnt lgkmcnt(0)")
    for k in range(12):
        e(f"v_add_f32 v{8+k}, v{64+k}, v{76+k}"); e(f"v_add_f32 v{24+k}, v{88+k}, v{100+k}"); e(f"v_add_f32 v{8+k}, v{8+k}, v{24+k}")
    e(f"v_and_b32 v40, 15, v{vLANE}"); e(f"v_lshrrev_b32 v41, 4, v{vLANE}"); e("v_lshlrev_b32 v41, 2, v41")
    e("v_mov_b32 v42, 0xf149f2ca")
    e(f"s_cmp_eq_u32 s{sWAVE}, 0"); e("s_cbranch_scc0 b_pw_q1")
    for r in range(4):
        e(f"v_add_u32 v43, {r}, v41"); e("v_cmp_le_u32 vcc, v43, v40"); e("s_nop 1")
        e(f"v_cndmask_b32 v{12+r}, v42, v{12+r}, vcc"); e(f"v_mov_b32 v{16+r}, v42")
    e("s_branch b_pw_sm")
    e.label("b_pw_q1")
    for r in range(4):
        e(f"v_add_u32 v43, {r}, v41"); e("v_cmp_le_u32 vcc, v43, v40"); e("s_nop 1")
        e(f"v_cndmask_b32 v{16+r}, v42, v{16+r}, vcc")
    e.label("b_pw_sm")
    e("v_max3_f32 v44, v8, v9, v10")
    for k in range(11, 19, 2): e(f"v_max3_f32 v44, v44, v{k}, v{k+1}")
    e("v_max_f32 v44, v44, v19")
    for sw in ("v_permlane16_swap_b32", "v_permlane32_swap_b32"):
        e("v_mov_b32 v45, v44"); e.nop(2); e(f"{sw} v44, v45"); e("v_max_f32 v44, v44, v45")
    for k in range(12): e(f"v_sub_f32 v{8+k}, v{8+k}, v44")
    for k in range(12): e(f"v_exp_f32 v{8+k}, v{8+k}")
    e.nop(1)
    e("v_add_f32 v46, v8, v9"); e("v_add_f32 v47, v10, v11"); e("v_add_f32 v46, v46, v47"); e("v_mul_f32 v46, 0.5, v46")
    for k in range(12, 20): e(f"v_add_f32 v46, v46, v{k}")
    for sw in ("v_permlane16_swap_b32", "v_permlane32_swap_b32"):
        e("v_mov_b32 v45, v46"); e.nop(2); e(f"{sw} v46, v45"); e("v_add_f32 v46, v46, v45")
    e("v_rcp_f32 v46, v46"); e.nop(1)
    for k in range(12): e(f"v_mul_f32 v{8+k}, v{8+k}, v46")
    for k in range(6): e(f"v_cvt_pk_bf16_f32 v{48+k}, v{8+2*k}, v{9+2*k}")
    e(f"s_mul_i32 s{sT0}, s{sSEG}, {W.PX_SEG}"); e(f"s_lshl_b32 s{sT1}, s{sWAVE}, 10"); e(f"s_add_u32 s{sT0}, s{sT0}, s{sT1}")
    e(f"s_lshl_b32 s{sT1}, s{sH}, 11"); e(f"s_add_u32 s{sT1}, s{sT1}, s{sT0}")
    e(f"v_add_u32 v{vT2}, s{sT1}, v{vL16}")
    e(f"v_mov_b32 v54, v50"); e("v_mov_b32 v55, v51"); e("v_mov_b32 v56, v52"); e("v_mov_b32 v57, v53")
    e(f"global_store_dwordx4 v{vT2}, v[54:57], s[{sPX}:{sPX+1}] sc1")
    e(f"s_lshr_b32 s{sT1}, s{sH}, 1"); e(f"s_lshl_b32 s{sT1}, s{sT1}, 11"); e(f"s_add_u32 s{sT1}, s{sT1}, s{sT0}")
    e(f"s_and_b32 s{sT2}, s{sH}, 1"); e(f"s_lshl_b32 s{sT2}, s{sT2}, 3"); e(f"s_add_u32 s{sT1}, s{sT1}, s{sT2}"); e(f"s_add_u32 s{sT1}, s{sT1}, 32768")
    e(f"v_add_u32 v{vT3}, s{sT1}, v{vL16}")
    e(f"global_store_dwordx2 v{vT3}, v[48:49], s[{sPX}:{sPX+1}] sc1")
    e.label("b_pw_fin")
    e("s_waitcnt vmcnt(0)"); e("s_barrier")
    e(f"s_lshl_b32 s{sT0}, s{sSEG}, 7"); e(f"s_add_u32 s{sT0}, s{sT0}, {C_RDY2}")
    signal_add(e, sT0, 48, 49)
    seg_loop_tail(e, uid)
    dstamp(e, 17, 0, (116,117))
    e("s_endpgm")

def gen(e):
    global NJ
    NJ = OPT.get('nj', 3)
    for L in range(2):
        kernel_head(e, f"b{L}_kernel")
        e(f"s_mov_b32 s{sLAY}, {L}")
        if L == 0: e("s_branch b_body")
    e.label("b_body")
    e("s_cmp_ge_u32 s2, 256"); e("s_cbranch_scc1 b_end")
    load_ptr(e, sWS, 'ws'); load_ptr(e, sOUT, 'out')
    if DIAG[0]:
        load_ptr(e, sDBG, 'dbg'); e("s_memrealtime s[96:97]")
    lane_wave(e, vLANE, sWAVE, 4)
    e(f"v_lshlrev_b32 v{vL16}, 4, v{vLANE}")
    e(f"s_getreg_b32 s{sXCC}, hwreg(HW_REG_XCC_ID)"); e(f"s_and_b32 s{sXCC}, s{sXCC}, 15")
    e("s_waitcnt lgkmcnt(0)")
    e(f"s_mul_i32 s{sT0}, s{sLAY}, 32768"); e(f"s_add_u32 s{sT0}, s{sT0}, {W.CNT}")
    e(f"s_add_u32 s{sCN}, s{sWS}, s{sT0}"); e(f"s_addc_u32 s{sCN+1}, s{sWS+1}, 0")
    ws_ptr(e, sW, sWS, W.WIMG); ws_ptr(e, sXP, sWS, W.XA); ws_ptr(e, sUP, sWS, W.UIMG); ws_ptr(e, sZM, sWS, W.ZM); ws_ptr(e, sPX, sWS, W.PX)
    def lay_ptr(dst, o0, o1):
        e(f"s_cmp_eq_u32 s{sLAY}, 0"); e(f"s_mov_b32 s{sT1}, {o1}"); e(f"s_cselect_b32 s{sT0}, {o0}, s{sT1}")
        e(f"s_add_u32 s{dst}, s{sWS}, s{sT0}"); e(f"s_addc_u32 s{dst+1}, s{sWS+1}, 0")
    lay_ptr(sMEM, W.MEMB[0] + 3072, W.MEMB[1] + 3072); lay_ptr(sP, W.PB[0], W.PB[1]); lay_ptr(sMX, W.MEMX[0], W.MEMX[1])
    lay_ptr(sRES, W.X1, W.X3); lay_ptr(sMXI, W.MEMXI[0], W.MEMXI[1])
    e(f"s_add_u32 s{sT0}, s{sWS}, {W.X2}"); e(f"s_addc_u32 s{sT1}, s{sWS+1}, 0")
    e(f"s_cmp_eq_u32 s{sLAY}, 0")
    e(f"s_cselect_b32 s{sOUT}, s{sT0}, s{sOUT}"); e(f"s_cselect_b32 s{sOUT+1}, s{sT1}, s{sOUT+1}")
    e(f"s_mov_b32 s{sTMO}, 4000000"); e(f"s_mov_b32 s{sSTEP}, 0")
    e(f"s_mov_b32 s{sM56}, -1"); e(f"s_mov_b32 s{sM56+1}, 0x00ffffff")
    e(f"s_mov_b32 s{sM57}, -1"); e(f"s_mov_b32 s{sM57+1}, 0x01ffffff")
    e(f"s_cmp_lg_u32 s{sWAVE}, 0"); e("s_cbranch_scc1 b_el_wait")
    e("s_mov_b64 exec, 1")
    e(f"s_lshl_b32 s{sT0}, s{sXCC}, 7"); e(f"v_mov_b32 v4, s{sT0}"); e("v_mov_b32 v5, 1")
    e(f"global_atomic_add v6, v4, v5, s[{sCN}:{sCN+1}] sc0 sc1")
    e("s_waitcnt vmcnt(0)")
    e("v_cmp_eq_u32 vcc, 31, v6"); e("s_cbranch_vccz b_el_poll")
    e(f"s_add_u32 s{sT0}, s{sXCC}, 1"); e(f"v_mov_b32 v8, s{sT0}"); e("v_mov_b32 v9, 0"); e(f"v_mov_b32 v4, {C_WIN}")
    e(f"global_atomic_cmpswap v4, v[8:9], s[{sCN}:{sCN+1}] sc1")
    e.label("b_el_poll")
    e(f"v_mov_b32 v4, {C_WIN}")
    e(f"global_load_dword v7, v4, s[{sCN}:{sCN+1}] sc1")
    tmo(e)
    e("s_waitcnt vmcnt(0)")
    e("v_cmp_eq_u32 vcc, 0, v7"); e("s_cbranch_vccnz b_el_poll")
    e(f"s_add_u32 s{sT0}, s{sXCC}, 1")
    e(f"v_cmp_eq_u32 vcc, s{sT0}, v7"); e("v_cmp_ge_u32 s[50:51], 31, v6"); e("s_and_b64 vcc, vcc, s[50:51]")
    e("s_cbranch_vccnz b_el_chain")
    e(f"v_mov_b32 v4, {C_SLOT}"); e("v_mov_b32 v5, 1")
    e(f"global_atomic_add v6, v4, v5, s[{sCN}:{sCN+1}] sc0 sc1")
    e("s_waitcnt vmcnt(0)")
    e("v_add_u32 v6, 32, v6")
    e.label("b_el_chain")
    e("v_mov_b32 v4, 0")
    e("ds_write_b32 v4, v6")
    e("s_waitcnt lgkmcnt(0)")
    e("s_mov_b64 exec, -1")
    e.label("b_el_wait")
    e("s_barrier")
    e("v_mov_b32 v4, 0"); e("ds_read_b32 v6, v4"); e("s_waitcnt lgkmcnt(0)")
    e(f"v_readfirstlane_b32 s{sROLE}, v6"); e("s_nop 3")
    e("s_barrier")
    e(f"v_and_b32 v4, 8, v{vLANE}"); e("v_cmp_ne_u32 vcc, 0, v4"); e("v_mov_b32 v5, 0x4444"); e("v_mov_b32 v6, 0xeeee"); e("s_nop 1")
    e(f"v_cndmask_b32 v{vIDX}, v5, v6, vcc")
    e(f"s_cmp_ge_u32 s{sROLE}, 32"); e("s_cbranch_scc1 b_worker")
    tr_init(e)
    e(f"s_cmp_eq_u32 s{sROLE}, 30"); e("s_cbranch_scc1 b_helper")
    e(f"s_cmp_eq_u32 s{sROLE}, 31"); e("s_cbranch_scc1 b_pub")
    e(f"s_cmp_ge_u32 s{sROLE}, 16"); e("s_cbranch_scc1 b_value")
    e(f"s_mul_i32 s{sT0}, s{sROLE}, {HEAD_IMG}"); e(f"s_add_u32 s{sW}, s{sW}, s{sT0}"); e(f"s_addc_u32 s{sW+1}, s{sW+1}, 0")
    for w in range(3):
        e(f"s_cmp_eq_u32 s{sWAVE}, {w}"); e(f"s_cbranch_scc1 b_sp{w}")
    e("s_branch b_sw")
    e.label("b_value")
    e(f"s_sub_u32 s{sT0}, s{sROLE}, 16"); e(f"s_mul_i32 s{sT0}, s{sT0}, {2*TILE}"); e(f"s_add_u32 s{sT0}, s{sT0}, {16*HEAD_IMG}")
    e(f"s_add_u32 s{sW}, s{sW}, s{sT0}"); e(f"s_addc_u32 s{sW+1}, s{sW+1}, 0")
    for w in range(3):
        e(f"s_cmp_eq_u32 s{sWAVE}, {w}"); e(f"s_cbranch_scc1 b_vw{w}")
    e("s_branch b_vw3")
    e.label("b_worker")
    e(f"s_sub_u32 s{sROLE}, s{sROLE}, 32")
    e(f"s_cmp_lt_u32 s{sROLE}, 64"); e("s_cbranch_scc1 b_fcpv")
    e(f"s_sub_u32 s{sROLE}, s{sROLE}, 64")
    e(f"s_cmp_lt_u32 s{sROLE}, {16*NJ}"); e("s_cbranch_scc1 b_uw")
    e(f"s_sub_u32 s{sROLE}, s{sROLE}, {16*NJ}")
    e(f"s_cmp_lt_u32 s{sROLE}, {16*NJ}"); e("s_cbranch_scc1 b_pw")
    e("s_endpgm")
    for w in range(3):
        e.label(f"b_sp{w}"); score_producer(e, w)
    e.label("b_sw"); score_swave(e)
    for w in range(4):
        e.label(f"b_vw{w}"); value_wave(e, w)
    e.label("b_helper"); helper(e)
    e.label("b_pub"); publisher(e)
    e.label("b_uw"); u_worker(e)
    e.label("b_pw"); p_worker(e)
    e.label("b_fcpv"); fcpv_worker(e)
    e.label(FAIL)
    e.label("b_end")
    e("s_endpgm")
    for L in range(2): e.raw(kernel_desc(f"b{L}_kernel", 512, 256))
```

```python
from common import *
import struct, re
def f2u(x): return struct.unpack("<I", struct.pack("<f", x))[0]
sLAY = 60
def entries(e, base):
    kernel_head(e, f"{base}0_kernel")
    e(f"s_mov_b32 s{sLAY}, 0")
    e(f"s_branch {base}_body")
    kernel_head(e, f"{base}1_kernel")
    e(f"s_mov_b32 s{sLAY}, 1")
    e.label(f"{base}_body")

def bf16_round_f32(e, dst, src, tmp=None):
    e(f"v_cvt_pk_bf16_f32 v{dst}, v{src}, v{src}")
    e(f"v_lshlrev_b32 v{dst}, 16, v{dst}")

def ln_stats_scalar(e, vmean, vvar, vmb, vr, t):
    bf16_round_f32(e, vmb, vmean)
    bf16_round_f32(e, t, vvar)
    e(f"v_add_f32 v{t}, {hex(f2u(1e-5))}, v{t}")
    bf16_round_f32(e, t, t)
    e(f"v_sqrt_f32 v{t}, v{t}")
    e("s_nop 0")
    bf16_round_f32(e, t, t)
    e(f"v_rcp_f32 v{vr}, v{t}")
    e("s_nop 0")
    e(f"v_fma_f32 v{t}, -v{t}, v{vr}, 2.0")
    e(f"v_mul_f32 v{vr}, v{vr}, v{t}")

FA_LDS = 28*1056
def gen_fa(e):
    entries(e, "fa")
    e("s_cmp_ge_u32 s2, 256"); e("s_cbranch_scc1 fa_end")
    load_ptr(e, 4, 'ws'); load_ptr(e, 6, 'x')
    lane_wave(e, 1, 3, 2)
    e("s_waitcnt lgkmcnt(0)")
    e(f"s_add_u32 s8, s4, {W.X2}"); e("s_addc_u32 s9, s5, 0")
    e(f"s_cmp_eq_u32 s{sLAY}, 0")
    e("s_cselect_b32 s6, s6, s8"); e("s_cselect_b32 s7, s7, s9")
    e("s_and_b32 s10, s2, 63")
    e("s_lshr_b32 s11, s2, 6")
    e("s_lshl_b32 s12, s11, 2"); e("s_add_u32 s12, s12, s3")
    e("v_lshrrev_b32 v2, 3, v0")
    e("v_and_b32 v3, 7, v0")
    e("v_lshlrev_b32 v4, 6, v2")
    e("v_add_u32 v4, s10, v4")
    e("v_mul_u32_u24 v4, 896, v4")
    e("v_lshl_add_u32 v4, v3, 4, v4")
    for i in range(7): e(f"global_load_dwordx4 v[{8+4*i}:{11+4*i}], v4, s[6:7] offset:{128*i}")
    e("s_min_u32 s13, s12, 14")
    e(f"s_mul_i32 s13, s13, {28*1024}")
    e(f"s_add_u32 s13, s13, {W.FIMG}")
    e("v_lshl_add_u32 v5, v1, 4, s13")
    for ks in range(28):
        e(f"global_load_dwordx4 v[{64+4*ks}:{67+4*ks}], v5, s[4:5] offset:{(ks%4)*1024}")
        if ks % 4 == 3: e("v_add_u32 v5, 4096, v5")
    e("s_waitcnt vmcnt(28)")
    XV = 176
    for k in range(28):
        e(f"v_lshlrev_b32 v{XV+2*k}, 16, v{8+k}")
        e(f"v_and_b32 v{XV+2*k+1}, 0xffff0000, v{8+k}")
    def reduce8(v):
        e.nop(2)
        e(f"v_add_f32_dpp v{v}, v{v}, v{v} quad_perm:[1,0,3,2] row_mask:0xf bank_mask:0xf")
        e.nop(2)
        e(f"v_add_f32_dpp v{v}, v{v}, v{v} quad_perm:[2,3,0,1] row_mask:0xf bank_mask:0xf")
        e.nop(2)
        e(f"v_add_f32_dpp v{v}, v{v}, v{v} row_half_mirror row_mask:0xf bank_mask:0xf")
    for c in range(4):
        e(f"v_add_f32 v{40+c}, v{XV+c}, v{XV+4+c}")
    for k in range(8, 56):
        e(f"v_add_f32 v{40+k%4}, v{40+k%4}, v{XV+k}")
    e("v_add_f32 v40, v40, v41"); e("v_add_f32 v42, v42, v43"); e("v_add_f32 v40, v40, v42")
    reduce8(40)
    e(f"v_mul_f32 v40, {hex(f2u(1.0/448))}, v40")
    for c in range(4): e(f"v_mov_b32 v{44+c}, 0")
    for k in range(56):
        e(f"v_sub_f32 v48, v{XV+k}, v40")
        e(f"v_fmac_f32 v{44+k%4}, v48, v48")
    e("v_add_f32 v44, v44, v45"); e("v_add_f32 v46, v46, v47"); e("v_add_f32 v44, v44, v46")
    reduce8(44)
    e(f"v_mul_f32 v44, {hex(f2u(1.0/448))}, v44")
    ln_stats_scalar(e, 40, 44, 41, 42, 43)
    for k in range(28):
        e(f"v_sub_f32 v48, v{XV+2*k}, v41")
        e(f"v_sub_f32 v49, v{XV+2*k+1}, v41")
        e("v_cvt_pk_bf16_f32 v50, v48, v49")
        e("v_lshlrev_b32 v48, 16, v50")
        e("v_and_b32 v49, 0xffff0000, v50")
        e("v_mul_f32 v48, v48, v42")
        e("v_mul_f32 v49, v49, v42")
        e(f"v_cvt_pk_bf16_f32 v{8+k}, v48, v49")
    e("v_lshrrev_b32 v5, 1, v3")
    e("v_mul_u32_u24 v5, 1056, v5")
    e("v_and_b32 v6, 1, v3")
    e("v_mul_u32_u24 v6, 528, v6")
    e("v_add_u32 v5, v5, v6")
    e("v_lshl_add_u32 v5, v2, 4, v5")
    for i in range(7): e(f"ds_write_b128 v5, v[{8+4*i}:{11+4*i}] offset:{4*1056*i}")
    e("s_waitcnt lgkmcnt(0)")
    e("s_barrier")
    e("s_cmp_ge_u32 s12, 15"); e("s_cbranch_scc1 fa_end")
    e("v_and_b32 v5, 31, v1")
    e("v_lshrrev_b32 v6, 5, v1")
    e("v_mul_u32_u24 v6, 528, v6")
    e("v_lshl_add_u32 v5, v5, 4, v6")
    NB = 8
    for ks in range(NB): e.ds(f"ds_read_b128 v[{8+4*ks}:{11+4*ks}], v5 offset:{ks*1056}", f"a{ks}")
    e("s_waitcnt vmcnt(0)")
    acc = 240
    for ks in range(28):
        e.wait_lgkm(f"a{ks}")
        c = "0" if ks == 0 else f"v[{acc}:{acc+15}]"
        r = 8+4*(ks % NB)
        e(f"v_mfma_f32_32x32x16_bf16 v[{acc}:{acc+15}], v[{r}:{r+3}], v[{64+4*ks}:{67+4*ks}], {c}")
        if ks + NB < 28: e.ds(f"ds_read_b128 v[{r}:{r+3}], v5 offset:{(ks+NB)*1056}", f"a{ks+NB}")
    e("v_and_b32 v5, 31, v1")
    e("s_lshl_b32 s13, s12, 5")
    e("v_add_u32 v5, s13, v5")
    e("v_lshlrev_b32 v5, 12, v5")
    e("v_lshrrev_b32 v6, 5, v1")
    e("v_lshl_add_u32 v5, v6, 9, v5")
    e("s_lshr_b32 s13, s10, 5"); e("s_lshl_b32 s13, s13, 11")
    e("s_and_b32 s14, s10, 31"); e("s_lshl_b32 s14, s14, 4")
    e("s_add_u32 s13, s13, s14"); e(f"s_add_u32 s13, s13, {W.XD}")
    e("v_add_u32 v5, s13, v5")
    e.nop(6)
    for k in range(8): e(f"v_cvt_pk_bf16_f32 v{8+k}, v{acc+2*k}, v{acc+2*k+1}")
    for q in range(4):
        e(f"global_store_dwordx2 v5, v[{8+2*q}:{9+2*q}], s[4:5] offset:{(q>>1)*1024 + (q&1)*8}")
    e.label("fa_end")
    e("s_endpgm")
    for L in range(2): e.raw(kernel_desc(f"fa{L}_kernel", 256, 256))

def gen_fb(e):
    kernel_head(e, "fb_kernel")
    e("s_cmp_ge_u32 s2, 225"); e("s_cbranch_scc1 fb_end")
    load_ptr(e, 4, 'ws')
    e("v_lshlrev_b32 v1, 4, v0")
    e("s_waitcnt lgkmcnt(0)")
    aF32, aF64, aU = 0, 24, 120
    ACC, TW, WTR, PK, T = 0+4, 72, 136, 168, 200
    ACC = 4
    def accr(t): return ACC + 16*t
    def acci(t): return ACC + 32 + 16*t
    e("s_lshl_b32 s10, s2, 12"); e(f"s_add_u32 s10, s10, {W.XD}")
    e("v_add_u32 v2, s10, v1")
    for c in range(2):
        for i in range(4):
            e(f"global_load_dwordx4 a[{aU+16*c+4*i}:{aU+16*c+4*i+3}], v2, s[4:5] offset:{i*1024}")
        if c == 0: e(f"v_add_u32 v2, {225*4096}, v2")
    e(f"v_add_u32 v2, {W.CF32}, v1")
    for i in range(6):
        e(f"global_load_dwordx4 a[{aF32+4*i}:{aF32+4*i+3}], v2, s[4:5] offset:{(i%4)*1024}")
        if i == 3: e("v_add_u32 v2, 4096, v2")
    def load_tw(base):
        e(f"v_add_u32 v2, {base}, v1")
        for i in range(16):
            e(f"global_load_dwordx4 v[{TW+4*i}:{TW+4*i+3}], v2, s[4:5] offset:{(i%4)*1024}")
            if i % 4 == 3: e("v_add_u32 v2, 4096, v2")
    load_tw(W.TW1)
    e(f"v_add_u32 v2, {W.CF64}, v1")
    for i in range(24):
        e(f"global_load_dwordx4 a[{aF64+4*i}:{aF64+4*i+3}], v2, s[4:5] offset:{(i%4)*1024}")
        if i % 4 == 3: e("v_add_u32 v2, 4096, v2")
    e("s_lshl_b32 s10, s2, 13"); e(f"s_add_u32 s10, s10, {W.WT}")
    e("v_add_u32 v2, s10, v1")
    for i in range(8):
        e(f"global_load_dwordx4 v[{WTR+4*i}:{WTR+4*i+3}], v2, s[4:5] offset:{(i%4)*1024}")
        if i == 3: e("v_add_u32 v2, 4096, v2")
    F32 = lambda comp, ks: f"a[{aF32+8*comp+4*ks}:{aF32+8*comp+4*ks+3}]"
    F64 = lambda comp, t, ka: f"a[{aF64+32*comp+16*t+4*ka}:{aF64+32*comp+16*t+4*ka+3}]"
    U = lambda c, bt, ks: f"a[{aU+16*c+8*bt+4*ks}:{aU+16*c+8*bt+4*ks+3}]"
    PKr = lambda t, kk: f"v[{PK+8*t+4*kk}:{PK+8*t+4*kk+3}]"
    PKi = lambda t, kk: f"v[{PK+16+8*t+4*kk}:{PK+16+8*t+4*kk+3}]"
    def mf(acc, a, b, first):
        c = "0" if first else f"v[{acc}:{acc+15}]"
        e(f"v_mfma_f32_32x32x16_bf16 v[{acc}:{acc+15}], {a}, {b}, {c}")
    e("s_waitcnt vmcnt(48)")
    for bt in range(2):
        mf(accr(bt), U(0,bt,0), F32(0,0), True);  mf(acci(bt), U(0,bt,0), F32(1,0), True)
        mf(accr(bt), U(0,bt,1), F32(0,1), False); mf(acci(bt), U(0,bt,1), F32(1,1), False)
        mf(accr(bt), U(1,bt,0), F32(2,0), False); mf(acci(bt), U(1,bt,0), F32(0,0), False)
        mf(accr(bt), U(1,bt,1), F32(2,1), False); mf(acci(bt), U(1,bt,1), F32(0,1), False)
    def cmul_pack(trf, tif, order=(0,1)):
        for t in order:
            for r in range(0, 16, 2):
                ar, ai = accr(t)+r, acci(t)+r
                tr, ti = trf(t, r), tif(t, r)
                e(f"v_pk_mul_f32 v[{T}:{T+1}], v[{ar}:{ar+1}], v[{tr}:{tr+1}]")
                e(f"v_pk_mul_f32 v[{T+2}:{T+3}], v[{ar}:{ar+1}], v[{ti}:{ti+1}]")
                e(f"v_pk_fma_f32 v[{T}:{T+1}], v[{ai}:{ai+1}], v[{ti}:{ti+1}], v[{T}:{T+1}] neg_lo:[1,0,0] neg_hi:[1,0,0]")
                e(f"v_pk_fma_f32 v[{T+2}:{T+3}], v[{ai}:{ai+1}], v[{tr}:{tr+1}], v[{T+2}:{T+3}]")
                e(f"v_cvt_pk_bf16_f32 v{PK+8*t+r//2}, v{T}, v{T+1}")
                e(f"v_cvt_pk_bf16_f32 v{PK+16+8*t+r//2}, v{T+2}, v{T+3}")
    e("s_waitcnt vmcnt(32)")
    e.nop(12)
    cmul_pack(lambda t,r: TW+16*t+r, lambda t,r: TW+32+16*t+r)
    load_tw(W.TW2)
    e("s_waitcnt vmcnt(24)")
    for ft in range(2):
        first = True
        for t in range(2):
            for kk in range(2):
                ka = 2*t+kk
                mf(accr(ft), F64(0,ft,ka), PKr(t,kk), first); mf(acci(ft), F64(1,ft,ka), PKr(t,kk), first)
                first = False
                mf(accr(ft), F64(2,ft,ka), PKi(t,kk), False); mf(acci(ft), F64(0,ft,ka), PKi(t,kk), False)
    e("s_waitcnt vmcnt(16)")
    e.nop(12)
    for t in range(2):
        for r in range(0, 16, 2):
            w0, w1 = WTR+16*t+r, WTR+16*t+r+1
            e(f"v_lshlrev_b32 v{T+4}, 16, v{w0}"); e(f"v_lshlrev_b32 v{T+5}, 16, v{w1}")
            e(f"v_and_b32 v{T+6}, 0xffff0000, v{w0}"); e(f"v_and_b32 v{T+7}, 0xffff0000, v{w1}")
            ar, ai = accr(t)+r, acci(t)+r
            tr, ti = T+4, T+6
            e(f"v_pk_mul_f32 v[{T}:{T+1}], v[{ar}:{ar+1}], v[{tr}:{tr+1}]")
            e(f"v_pk_mul_f32 v[{T+2}:{T+3}], v[{ar}:{ar+1}], v[{ti}:{ti+1}]")
            e(f"v_pk_fma_f32 v[{T}:{T+1}], v[{ai}:{ai+1}], v[{ti}:{ti+1}], v[{T}:{T+1}] neg_lo:[1,0,0] neg_hi:[1,0,0]")
            e(f"v_pk_fma_f32 v[{T+2}:{T+3}], v[{ai}:{ai+1}], v[{tr}:{tr+1}], v[{T+2}:{T+3}]")
            e(f"v_cvt_pk_bf16_f32 v{PK+8*t+r//2}, v{T}, v{T+1}")
            e(f"v_cvt_pk_bf16_f32 v{PK+16+8*t+r//2}, v{T+2}, v{T+3}")
    e.nop(2)
    for bt in range(2):
        first = True
        for t in range(2):
            for kk in range(2):
                ka = 2*t+kk
                mf(accr(bt), PKr(t,kk), F64(0,bt,ka), first); mf(acci(bt), PKi(t,kk), F64(0,bt,ka), first)
                first = False
                mf(accr(bt), PKi(t,kk), F64(1,bt,ka), False); mf(acci(bt), PKr(t,kk), F64(2,bt,ka), False)
    e("s_waitcnt vmcnt(0)")
    e.nop(12)
    cmul_pack(lambda t,r: TW+16*t+r, lambda t,r: TW+32+16*t+r)
    e.nop(2)
    for bt in range(2):
        mf(accr(bt), F32(0,0), PKr(bt,0), True);  mf(acci(bt), F32(0,0), PKi(bt,0), True)
        mf(accr(bt), F32(0,1), PKr(bt,1), False); mf(acci(bt), F32(0,1), PKi(bt,1), False)
        mf(accr(bt), F32(1,0), PKi(bt,0), False); mf(acci(bt), F32(2,0), PKr(bt,0), False)
        mf(accr(bt), F32(1,1), PKi(bt,1), False); mf(acci(bt), F32(2,1), PKr(bt,1), False)
    e("v_and_b32 v2, 31, v0")
    e("v_lshlrev_b32 v2, 2, v2")
    e("v_lshrrev_b32 v3, 5, v0")
    e("v_lshl_add_u32 v2, v3, 9, v2")
    e("s_lshl_b32 s10, s2, 12"); e(f"s_add_u32 s10, s10, {W.ZD}")
    e("v_add_u32 v2, s10, v2")
    e(f"v_add_u32 v3, {225*4096}, v2")
    e.nop(8)
    for c,(va, accf) in enumerate(((2, accr), (3, acci))):
        for bt in range(2):
            for r in range(0,16,2):
                e(f"v_cvt_pk_bf16_f32 v{T+(r//2)%4}, v{accf(bt)+r}, v{accf(bt)+r+1}")
                off = (((r&3)>>1) + 4*(r>>2))*256 + bt*128
                e(f"global_store_dword v{va}, v{T+(r//2)%4}, s[4:5] offset:{off}")
    e.label("fb_end")
    e("s_endpgm")
    e.raw(kernel_desc("fb_kernel", 512, 256))

XROWS = 32768
STATS = XROWS + 32*912
FC_LDS = STATS + 1024
def gen_fc(e):
    entries(e, "fc")
    e("s_cmp_ge_u32 s2, 64"); e("s_cbranch_scc1 fc_end")
    load_ptr(e, 4, 'ws')
    lane_wave(e, 1, 3, 2)
    fc_body(e, {}, "")
    e.label("fc_end")
    e("s_endpgm")
    for L in range(2): e.raw(kernel_desc(f"fc{L}_kernel", 320, 256))

class _Remap:
    def __init__(self, e, m): self.e = e; self.m = m
    def _r(self, txt):
        def one(mo):
            n = int(mo.group(1)); return f"s{self.m.get(n, n)}"
        def pair(mo):
            lo, hi = int(mo.group(1)), int(mo.group(2))
            l2 = self.m.get(lo, lo); assert self.m.get(hi, hi) == l2 + (hi - lo), (txt, lo, hi)
            return f"s[{l2}:{l2+hi-lo}]"
        txt = re.sub(r"s\[(\d+):(\d+)\]", pair, txt)
        return re.sub(r"(?<![\w.\[])s(\d+)\b", one, txt)
    def __call__(self, s): self.e(self._r(s))
    def __getattr__(self, k): return getattr(self.e, k)
    def vmem(self, s, tag=None): self.e.vmem(self._r(s), tag)
    def ds(self, s, tag=None): self.e.ds(self._r(s), tag)

def fc_body(e0, smap, sc1):
    e = _Remap(e0, smap)
    load_ptr(e, 6, 'x')
    e("s_waitcnt lgkmcnt(0)")
    e(f"s_add_u32 s8, s4, {W.X2}"); e("s_addc_u32 s9, s5, 0")
    e(f"s_cmp_eq_u32 s{sLAY}, 0")
    e("s_cselect_b32 s6, s6, s8"); e("s_cselect_b32 s7, s7, s9")
    e(f"s_mov_b32 s14, {W.X3}")
    e(f"s_cselect_b32 s15, {W.X1}, s14")
    e("s_lshr_b32 s10, s2, 2")
    e("s_lshr_b32 s11, s2, 1"); e("s_and_b32 s11, s11, 1")
    e("s_and_b32 s12, s2, 1")
    e("v_mov_b32 v4, 0"); e("v_mov_b32 v5, 0"); e("v_mov_b32 v6, 0"); e("v_mov_b32 v7, 0")
    e("v_lshlrev_b32 v2, 4, v1")
    e(f"ds_write_b128 v2, v[4:7] offset:{28*1024}")
    e("s_waitcnt lgkmcnt(0)")
    e("s_barrier")
    e("s_lshl_b32 s13, s10, 8"); e("s_lshl_b32 s14, s11, 7"); e("s_add_u32 s13, s13, s14")
    e("s_lshl_b32 s14, s12, 6"); e("s_add_u32 s13, s13, s14"); e(f"s_add_u32 s13, s13, {W.ZD}")
    e("v_lshrrev_b32 v2, 2, v1")
    e("v_lshlrev_b32 v2, 12, v2")
    e("v_and_b32 v3, 3, v1")
    e("v_lshl_add_u32 v2, v3, 4, v2")
    e("v_add_u32 v2, s13, v2")
    e("s_lshl_b32 s16, s3, 16")
    e("v_add_u32 v2, s16, v2")
    e("s_lshl_b32 s17, s3, 10")
    for j in range(8):
        lab = f"fc_z{j}"
        if j == 7:
            e("s_cmp_lg_u32 s3, 0"); e(f"s_cbranch_scc1 {lab}")
            e("s_mov_b64 exec, 0xff")
        e(f"s_add_u32 m0, s17, {j*4096}")
        e("s_nop 0")
        e("global_load_lds_dwordx4 v2, s[4:5]")
        if j == 7:
            e("s_mov_b64 exec, -1")
            e.label(lab)
        else:
            e(f"v_add_u32 v2, {4*16*4096}, v2")
    e("s_lshl_b32 s16, s10, 7"); e("s_lshl_b32 s17, s11, 5"); e("s_add_u32 s16, s16, s17")
    e("s_lshl_b32 s17, s12, 4"); e("s_add_u32 s16, s16, s17")
    e("v_lshlrev_b32 v3, 4, v1")
    e("s_mov_b32 s20, -1"); e("s_mov_b32 s21, 0x00ffffff")
    e("s_mov_b64 exec, s[20:21]")
    for j in range(8):
        e("s_lshl_b32 s17, s3, 2"); e(f"s_add_u32 s17, s17, {(j>>1) + 64*(j&1)}")
        e("s_add_u32 s17, s17, s16")
        e("s_mul_i32 s17, s17, 896")
        e("v_add_u32 v4, s17, v3")
        e("s_mul_i32 s18, s3, 8*912"); e(f"s_add_u32 m0, s18, {XROWS + j*912}")
        e("s_nop 0")
        e("global_load_lds_dwordx4 v4, s[6:7]")
    e("s_mov_b64 exec, -1")
    GR = 192; NR = 8
    e("s_mul_i32 s17, s3, %d" % (29*1024)); e(f"s_add_u32 s17, s17, {W.GIMG}")
    e("v_lshl_add_u32 v8, v1, 4, s17")
    e("s_waitcnt vmcnt(0)")
    e("s_barrier")
    e("v_lshrrev_b32 v2, 5, v1")
    e("v_lshlrev_b32 v2, 3, v2")
    e("v_and_b32 v3, 15, v1")
    e("v_lshrrev_b32 v4, 2, v3")
    e("v_add_u32 v2, v2, v4")
    e("v_lshlrev_b32 v2, 6, v2")
    e("v_lshrrev_b32 v4, 4, v1"); e("v_and_b32 v4, 1, v4")
    e("v_lshl_add_u32 v2, v4, 5, v2")
    e("v_and_b32 v3, 3, v3")
    e("v_lshl_add_u32 v2, v3, 3, v2")
    ZB = 64
    for ks in range(29):
        e(f"ds_read_b64_tr_b16 v[{ZB+4*ks}:{ZB+4*ks+1}], v2 offset:{ks*1024}")
        e(f"ds_read_b64_tr_b16 v[{ZB+4*ks+2}:{ZB+4*ks+3}], v2 offset:{ks*1024+256}")
    ACC = 0
    def gload(n):
        tt, ks = divmod(n, 29)
        r = GR + 4*(n % NR)
        off = tt*4*29*1024 + ks*1024
        e(f"v_add_u32 v9, {off}, v8")
        e.vmem(f"global_load_dwordx4 v[{r}:{r+3}], v9, s[4:5]", f"g{n}")
    for n in range(NR): gload(n)
    e("s_waitcnt lgkmcnt(0)")
    NSTEP = 4*29
    for n in range(NSTEP):
        tt, ks = divmod(n, 29)
        if n == 3*29:
            e("s_cmp_ge_u32 s3, 2"); e("s_cbranch_scc1 fc_gemm_done")
        e.wait_vm(f"g{n}")
        r = GR + 4*(n % NR)
        c = "0" if ks == 0 else f"a[{16*tt}:{16*tt+15}]"
        e(f"v_mfma_f32_32x32x16_bf16 a[{16*tt}:{16*tt+15}], v[{r}:{r+3}], v[{ZB+4*ks}:{ZB+4*ks+3}], {c}")
        if n + NR < NSTEP:
            gload(n+NR)
    e.label("fc_gemm_done")
    e("s_waitcnt vmcnt(0)")
    e.nop(12)
    XV = 64
    e("v_and_b32 v2, 31, v1")
    e("v_mul_u32_u24 v2, 912, v2")
    e("v_lshrrev_b32 v3, 5, v1")
    e("v_lshl_add_u32 v2, v3, 3, v2")
    e("s_lshl_b32 s17, s3, 6")
    e(f"s_add_u32 s17, s17, {XROWS}")
    e("v_add_u32 v2, s17, v2")
    ntile = lambda: None
    def for_tiles(fn):
        for tt in range(4):
            if tt == 3:
                e("s_cmp_ge_u32 s3, 2"); e(f"s_cbranch_scc1 fc_skip{for_tiles.n}")
            fn(tt)
        e.label(f"fc_skip{for_tiles.n}"); for_tiles.n += 1
    for_tiles.n = 0
    for r in range(16): e(f"v_mov_b32 v{XV+48+r}, 0")
    def resid(tt):
        for q in range(4): e(f"ds_read_b64 v[{16+2*q}:{17+2*q}], v2 offset:{tt*256 + q*16}")
        for r in range(16): e(f"v_accvgpr_read_b32 v{XV+16*tt+r}, a{16*tt+r}")
        e("s_waitcnt lgkmcnt(0)")
        for q in range(4):
            for h2 in range(2):
                a, b = XV+16*tt+4*q+2*h2, XV+16*tt+4*q+2*h2+1
                e(f"v_cvt_pk_bf16_f32 v24, v{a}, v{b}")
                e(f"v_lshlrev_b32 v25, 16, v24"); e(f"v_and_b32 v26, 0xffff0000, v24")
                e(f"v_lshlrev_b32 v27, 16, v{16+2*q+h2}"); e(f"v_and_b32 v28, 0xffff0000, v{16+2*q+h2}")
                e("v_add_f32 v25, v25, v27"); e("v_add_f32 v26, v26, v28")
                e(f"v_cvt_pk_bf16_f32 v{16+2*q+h2}, v25, v26")
                e(f"v_lshlrev_b32 v{a}, 16, v{16+2*q+h2}"); e(f"v_and_b32 v{b}, 0xffff0000, v{16+2*q+h2}")
        for q in range(4): e(f"ds_write_b64 v2, v[{16+2*q}:{17+2*q}] offset:{tt*256 + q*16}")
    for_tiles(resid)
    def lane_sum(dst, fn):
        for c in range(4): e(f"v_mov_b32 v{dst+c}, 0")
        def f(tt):
            for r in range(16): fn(dst + r % 4, XV+16*tt+r)
        for_tiles(f)
        e(f"v_add_f32 v{dst}, v{dst}, v{dst+1}"); e(f"v_add_f32 v{dst+2}, v{dst+2}, v{dst+3}"); e(f"v_add_f32 v{dst}, v{dst}, v{dst+2}")
        e(f"v_mov_b32 v{dst+1}, v{dst}")
        e.nop(2)
        e(f"v_permlane32_swap_b32 v{dst}, v{dst+1}")
        e(f"v_add_f32 v{dst}, v{dst}, v{dst+1}")
    def cross_wave(v, slot):
        e("v_and_b32 v30, 31, v1"); e("v_lshlrev_b32 v30, 2, v30")
        e("s_lshl_b32 s17, s3, 7"); e(f"s_add_u32 s17, s17, {STATS + slot*512}")
        e("v_add_u32 v31, s17, v30")
        e(f"ds_write_b32 v31, v{v}")
        e("s_waitcnt lgkmcnt(0)"); e("s_barrier")
        e(f"v_add_u32 v31, {STATS + slot*512}, v30")
        for w in range(4): e(f"ds_read_b32 v{32+w}, v31 offset:{w*128}")
        e("s_waitcnt lgkmcnt(0)")
        e("v_add_f32 v32, v32, v33"); e("v_add_f32 v34, v34, v35"); e(f"v_add_f32 v{v}, v32, v34")
    lane_sum(40, lambda acc, x: e(f"v_add_f32 v{acc}, v{acc}, v{x}"))
    cross_wave(40, 0)
    e(f"v_mul_f32 v40, {hex(f2u(1.0/448))}, v40")
    def sq(acc, x):
        e(f"v_sub_f32 v48, v{x}, v40"); e(f"v_fmac_f32 v{acc}, v48, v48")
    lane_sum(44, sq)
    cross_wave(44, 1)
    e(f"v_mul_f32 v44, {hex(f2u(1.0/448))}, v44")
    ln_stats_scalar(e, 40, 44, 41, 42, 43)
    e(f"v_subrev_u32 v3, {XROWS}, v2")
    def norm(tt):
        for q in range(4):
            for h2 in range(2):
                a, b = XV+16*tt+4*q+2*h2, XV+16*tt+4*q+2*h2+1
                e(f"v_sub_f32 v48, v{a}, v41"); e(f"v_sub_f32 v49, v{b}, v41")
                e("v_cvt_pk_bf16_f32 v50, v48, v49")
                e("v_lshlrev_b32 v48, 16, v50"); e("v_and_b32 v49, 0xffff0000, v50")
                e("v_mul_f32 v48, v48, v42"); e("v_mul_f32 v49, v49, v42")
                e(f"v_cvt_pk_bf16_f32 v{16+2*q+h2}, v48, v49")
        for q in range(4): e(f"ds_write_b64 v3, v[{16+2*q}:{17+2*q}] offset:{tt*256 + q*16}")
    for_tiles(norm)
    e("s_waitcnt lgkmcnt(0)"); e("s_barrier")
    for i in range(7):
        e(f"v_add_u32 v4, {256*i}, v0")
        e(f"s_mov_b32 s17, {(2**32+55)//56}")
        e("v_mul_hi_u32 v5, v4, s17")
        e("v_mul_u32_u24 v6, 56, v5"); e("v_sub_u32 v6, v4, v6")
        e("v_mul_u32_u24 v7, 912, v5"); e("v_lshl_add_u32 v7, v6, 4, v7")
        e(f"ds_read_b128 v[16:19], v7 offset:{XROWS}")
        e("v_lshrrev_b32 v10, 1, v5"); e("v_and_b32 v11, 1, v5"); e("v_lshl_add_u32 v10, v11, 6, v10")
        e("v_add_u32 v10, s16, v10"); e("v_mul_u32_u24 v10, 896, v10"); e("v_lshl_add_u32 v10, v6, 4, v10")
        e("v_add_u32 v10, s15, v10")
        e("s_waitcnt lgkmcnt(0)")
        e("global_store_dwordx4 v10, v[16:19], s[4:5] " + sc1)
        e.nop(1)
    for p in range(2):
        e(f"s_add_u32 s17, s16, {64*p}"); e("s_lshr_b32 s17, s17, 5"); e("s_mul_i32 s17, s17, 28672")
        e("s_mul_i32 s18, s12, 14336"); e("s_add_u32 s17, s17, s18"); e(f"s_add_u32 s17, s17, {W.XA}")
        for i in range(4):
            e(f"v_add_u32 v4, {256*i}, v0")
            if i == 3:
                e("v_cmp_gt_u32 vcc, 896, v4"); e("s_and_saveexec_b64 s[22:23], vcc"); e(f"s_cbranch_execz fc_xa{p}")
            e("v_and_b32 v5, 15, v4")
            e("v_lshrrev_b32 v6, 4, v4")
            e(f"v_lshl_add_u32 v5, v5, 1, {p}")
            e("v_mul_u32_u24 v7, 912, v5"); e("v_lshl_add_u32 v7, v6, 4, v7")
            e("ds_read_b128 v[16:19], v7")
            e("v_lshl_add_u32 v10, v4, 4, s17")
            e("s_waitcnt lgkmcnt(0)")
            e("global_store_dwordx4 v10, v[16:19], s[4:5] " + sc1)
            e.nop(1)
            if i == 3:
                e.label(f"fc_xa{p}"); e("s_mov_b64 exec, s[22:23]")
```

```python
from common import *
import struct
N_WG = 256
LDS = 4*16384 + 32768
LOG2E_16 = 0x3db8aa3b
def f2u(x): return struct.unpack("<I", struct.pack("<f", x))[0]
sWS = 4
vL = 1

def sincos(e, vang, vcos, vsin):
    e(f"v_fract_f32 v{vang}, v{vang}")
    e(f"v_cos_f32 v{vcos}, v{vang}")
    e(f"v_sin_f32 v{vsin}, v{vang}")
    e("s_nop 0")

def side_tables(e):
    inv448 = f2u(1.0/448)
    NF, NG = 15*28*64, 14*29*64
    for name, lo, nch, nks, base in (("F", 0, NF, 28, W.FIMG), ("G", NF, NG, 29, W.GIMG)):
        e(f"v_subrev_u32 v3, {lo}, v2")
        e(f"v_cmp_gt_u32 vcc, {nch}, v3")
        e("s_and_saveexec_b64 s[12:13], vcc")
        e(f"s_cbranch_execz P_{name}_done")
        e("v_and_b32 v4, 63, v3")
        e("v_lshrrev_b32 v5, 6, v3")
        e(f"s_mov_b32 s14, {(2**32 + nks - 1)//nks}")
        e("v_mul_hi_u32 v6, v5, s14")
        e(f"v_mul_u32_u24 v7, {nks}, v6")
        e("v_sub_u32 v7, v5, v7")
        e("v_and_b32 v8, 31, v4")
        e("v_lshrrev_b32 v9, 5, v4")
        e("v_lshl_add_u32 v8, v6, 5, v8")
        e("v_lshlrev_b32 v9, 3, v9")
        e("v_lshl_add_u32 v9, v7, 4, v9")
        e("v_mov_b32 v16, 224"); e("v_mov_b32 v17, 450"); e("v_mov_b32 v18, 0")
        e(f"v_mov_b32 v19, {hex(f2u(2.0/448))}"); e(f"v_mov_b32 v15, {hex(f2u(1.0/448))}")
        for j in range(8):
            e(f"v_add_u32 v10, {j}, v9")
            kk, dd = ("v8","v10") if name == "F" else ("v10","v8")
            e(f"v_cmp_le_u32 s[16:17], 225, {kk}") if False else e(f"v_cmp_le_u32 vcc, 225, {kk}")
            e(f"v_subrev_u32 v11, 225, {kk}")
            e("s_nop 0")
            e(f"v_cndmask_b32 v11, {kk}, v11, vcc")
            e(f"v_mul_u32_u24 v12, v11, {dd}")
            e("v_cvt_f32_u32 v12, v12")
            e(f"v_mul_f32 v12, {hex(inv448)}, v12")
            sincos(e, 12, 13, 14)
            e("v_sub_f32 v14, 0, v14")
            e("v_cndmask_b32 v13, v13, v14, vcc")
            if name == "G":
                e("v_cmp_eq_u32 vcc, 0, v11")
                e("v_cmp_eq_u32 s[16:17], v16, v11")
                e("s_or_b64 vcc, vcc, s[16:17]")
                e("s_nop 1")
                e("v_cndmask_b32 v14, v19, v15, vcc")
                e("v_mul_f32 v13, v13, v14")
            e(f"v_cmp_le_u32 vcc, v17, {kk}")
            e("s_nop 1")
            e(f"v_cndmask_b32 v{20+j}, v13, v18, vcc")
        for k in range(4): e(f"v_cvt_pk_bf16_f32 v{28+k}, v{20+2*k}, v{21+2*k}")
        e("v_lshlrev_b32 v4, 4, v3")
        e(f"v_add_u32 v4, {base}, v4")
        e("global_store_dwordx4 v4, v[28:31], s[4:5]")
        e.label(f"P_{name}_done")
        e("s_mov_b64 exec, s[12:13]")

def side_small(e):
    o32, o64, oT1, oT2 = 53248, 53760, 55296, 56320
    for name, lo, nch, base, n in (("C32", o32, 384, W.CF32, 32), ("C64", o64, 1536, W.CF64, 64)):
        e(f"v_subrev_u32 v3, {lo}, v2")
        e(f"v_cmp_gt_u32 vcc, {nch}, v3")
        e("s_and_saveexec_b64 s[12:13], vcc")
        e(f"s_cbranch_execz P_{name}_done")
        e("v_and_b32 v4, 63, v3")
        e("v_lshrrev_b32 v5, 6, v3")
        e("v_and_b32 v8, 31, v4")
        e("v_lshrrev_b32 v9, 5, v4")
        if n == 32:
            e("v_lshrrev_b32 v6, 1, v5"); e("v_and_b32 v7, 1, v5"); e("v_lshlrev_b32 v7, 4, v7")
        else:
            e("v_lshrrev_b32 v6, 3, v5"); e("v_and_b32 v7, 7, v5"); e("v_lshrrev_b32 v10, 2, v7")
            e("v_lshl_add_u32 v8, v10, 5, v8"); e("v_and_b32 v7, 3, v7"); e("v_lshlrev_b32 v7, 4, v7")
        e("v_lshl_add_u32 v7, v9, 2, v7")
        for j in range(8):
            e(f"v_add_u32 v10, {8*(j>>2)+(j&3)}, v7")
            e("v_mul_u32_u24 v12, v10, v8")
            e("v_cvt_f32_u32 v12, v12")
            e(f"v_mul_f32 v12, {hex(f2u(1.0/n))}, v12")
            sincos(e, 12, 13, 14)
            e("v_sub_f32 v15, 0, v14")
            e("v_cmp_eq_u32 vcc, 1, v6")
            e("s_nop 1")
            e("v_cndmask_b32 v13, v13, v15, vcc")
            e("v_cmp_eq_u32 vcc, 2, v6")
            e("s_nop 1")
            e(f"v_cndmask_b32 v{20+j}, v13, v14, vcc")
        for k in range(4): e(f"v_cvt_pk_bf16_f32 v{28+k}, v{20+2*k}, v{21+2*k}")
        e("v_lshlrev_b32 v4, 4, v3")
        e(f"v_add_u32 v4, {base}, v4")
        e("global_store_dwordx4 v4, v[28:31], s[4:5]")
        e.label(f"P_{name}_done")
        e("s_mov_b64 exec, s[12:13]")
    for name, lo, base in (("T1", oT1, W.TW1), ("T2", oT2, W.TW2)):
        e(f"v_subrev_u32 v3, {lo}, v2")
        e(f"v_cmp_gt_u32 vcc, 1024, v3")
        e("s_and_saveexec_b64 s[12:13], vcc")
        e(f"s_cbranch_execz P_{name}_done")
        e("v_and_b32 v4, 63, v3")
        e("v_lshrrev_b32 v5, 6, v3")
        e("v_lshrrev_b32 v6, 3, v5")
        e("v_and_b32 v7, 3, v5")
        e("v_lshrrev_b32 v10, 2, v5")
        e("v_and_b32 v10, 1, v10")
        e("v_and_b32 v8, 31, v4")
        e("v_lshrrev_b32 v9, 5, v4")
        e("v_lshlrev_b32 v7, 3, v7")
        e("v_lshl_add_u32 v7, v9, 2, v7")
        if name == "T1": e("v_lshl_add_u32 v7, v10, 5, v7")
        else: e("v_lshl_add_u32 v8, v10, 5, v8")
        for rr in range(4):
            e(f"v_add_u32 v11, {rr}, v7")
            e("v_mul_u32_u24 v12, v11, v8")
            e("v_cvt_f32_u32 v12, v12")
            e(f"v_mul_f32 v12, {hex(f2u(1.0/2048))}, v12")
            sincos(e, 12, 13, 14)
            if name == "T1": e("v_sub_f32 v14, 0, v14")
            e("v_cmp_eq_u32 vcc, 1, v6")
            e("s_nop 1")
            e(f"v_cndmask_b32 v{20+rr}, v13, v14, vcc")
            if name == "T2": e(f"v_mul_f32 v{20+rr}, {hex(f2u(1.0/2048))}, v{20+rr}")
        e("v_lshlrev_b32 v4, 4, v3")
        e(f"v_add_u32 v4, {base}, v4")
        e("global_store_dwordx4 v4, v[20:23], s[4:5]")
        e.label(f"P_{name}_done")
        e("s_mov_b64 exec, s[12:13]")

def side_wt_issue(e):
    e("s_cmp_ge_u32 s2, 232")
    e("s_cbranch_scc1 P_wt_skip1")
    e("s_cmp_lg_u32 s3, 0")
    e("s_cbranch_scc1 P_wt_skip1")
    load_ptr(e, 40, 'wr'); load_ptr(e, 42, 'wi')
    e("s_lshr_b32 s11, s2, 3")
    e("s_lshl_b32 s11, s11, 3")
    e("s_min_u32 s44, s11, 217")
    e("s_and_b32 s45, s2, 7")
    e("v_and_b32 v2, 31, v1")
    e("v_lshrrev_b32 v3, 5, v1")
    e("v_lshlrev_b32 v3, 7, v3")
    e("v_add_u32 v2, v2, v3")
    e("s_lshl_b32 s11, s45, 8")
    e("v_add_u32 v2, s11, v2")
    e("v_mul_u32_u24 v2, 450, v2")
    e("s_lshl_b32 s11, s44, 1")
    e("v_add_u32 v2, s11, v2")
    e("s_waitcnt lgkmcnt(0)")
    for rr in range(4):
        e(f"v_add_u32 v5, {32*rr*450}, v2")
        e(f"global_load_dwordx4 v[{96+4*rr}:{99+4*rr}], v5, s[40:41]")
        e(f"global_load_dwordx4 v[{112+4*rr}:{115+4*rr}], v5, s[42:43]")
    e.label("P_wt_skip1")
def side_wt_finish(e):
    e("s_cmp_ge_u32 s2, 232")
    e("s_cbranch_scc1 P_wt_skip2")
    e("s_cmp_lg_u32 s3, 0")
    e("s_cbranch_scc1 P_wt_skip2")
    e("s_mul_i32 s11, s44, 8192")
    e("s_lshl_b32 s14, s45, 10")
    e("s_add_u32 s11, s11, s14")
    e(f"s_add_u32 s11, s11, {W.WT}")
    e("v_lshl_add_u32 v4, v1, 4, s11")
    e("s_mov_b32 s46, 0x05040100"); e("s_mov_b32 s47, 0x07060302")
    e("s_waitcnt vmcnt(0)")
    for c in range(8):
        for rr in range(4):
            e(f"v_perm_b32 v{128+rr}, v{112+4*rr+(c>>1)}, v{96+4*rr+(c>>1)}, s{46+(c&1)}")
        e(f"global_store_dwordx4 v4, v[128:131], s[4:5]")
        e("v_add_u32 v4, 8192, v4")
        e("s_nop 0")
    e.label("P_wt_skip2")

def side_fill(e):
    e("s_lshl_b32 s11, s2, 8")
    e("v_add_u32 v2, s11, v0")
    NT = N_WG*256
    e("v_mov_b32 v4, -1"); e("v_mov_b32 v5, -1"); e("v_mov_b32 v6, -1"); e("v_mov_b32 v7, -1")
    regions = [(W.MEMB[0]+W.MEM_STRIDE, 64*W.MEM_STRIDE), (W.MEMB[1]+W.MEM_STRIDE, 64*W.MEM_STRIDE),
               (W.PB[0], 65*W.P_STRIDE), (W.PB[1], 65*W.P_STRIDE),
               (W.MEMX[0]+W.MEMX_STRIDE, 64*W.MEMX_STRIDE), (W.MEMX[1]+W.MEMX_STRIDE, 64*W.MEMX_STRIDE),
               (W.MEMXI[0]+W.MEMX_STRIDE, 64*W.MEMX_STRIDE), (W.MEMXI[1]+W.MEMX_STRIDE, 64*W.MEMX_STRIDE)]
    for ri,(base, n) in enumerate(regions):
        nch = n//16
        assert nch <= NT
        e(f"v_cmp_gt_u32 vcc, {nch}, v2")
        e("s_and_saveexec_b64 s[12:13], vcc")
        e(f"s_cbranch_execz P_fill{ri}_d")
        e("v_lshlrev_b32 v8, 4, v2")
        e(f"v_add_u32 v8, {base}, v8")
        e("global_store_dwordx4 v8, v[4:7], s[4:5]")
        e.label(f"P_fill{ri}_d")
        e("s_mov_b64 exec, s[12:13]")
    e("v_mov_b32 v4, 0"); e("v_mov_b32 v5, 0"); e("v_mov_b32 v6, 0"); e("v_mov_b32 v7, 0")
    e("v_cmp_gt_u32 vcc, 4096, v2")
    e("s_and_saveexec_b64 s[12:13], vcc")
    e("s_cbranch_execz P_cnt_d")
    e("v_lshlrev_b32 v8, 4, v2")
    e(f"v_add_u32 v8, {W.CNT}, v8")
    e("global_store_dwordx4 v8, v[4:7], s[4:5]")
    e.label("P_cnt_d")
    e("s_mov_b64 exec, s[12:13]")

def side_mem0(e):
    e("s_cmp_lg_u32 s2, 255")
    e("s_cbranch_scc1 P_m0_skip")
    load_ptr(e, 40, 'mem0')
    e("s_waitcnt lgkmcnt(0)")
    e("v_lshrrev_b32 v8, 2, v0")
    e("v_and_b32 v9, 3, v0")
    e("v_lshrrev_b32 v10, 4, v8")
    e("v_lshrrev_b32 v11, 3, v8")
    e("v_and_b32 v11, 1, v11")
    e("v_and_b32 v12, 7, v8")
    e("v_lshlrev_b32 v10, 4, v10")
    e("v_lshl_add_u32 v10, v9, 2, v10")
    e("v_lshl_add_u32 v10, v11, 1, v10")
    e("v_mul_u32_u24 v12, 448, v12")
    e("v_add_u32 v10, v10, v12")
    e("v_lshlrev_b32 v10, 1, v10")
    for it in range(7): e(f"global_load_dword v{20+it}, v10, s[40:41] offset:{128*it}")
    e("v_lshlrev_b32 v3, 2, v0")
    e("s_waitcnt vmcnt(0)")
    for it in range(7):
        for L in range(2):
            e(f"v_add_u32 v14, {W.MEMB[L] + 1024*it}, v3")
            e(f"global_store_dword v14, v{20+it}, s[4:5]")
            e(f"v_add_u32 v14, {W.MEMXI[L] + 1024*it}, v3")
            e(f"global_store_dword v14, v{20+it}, s[4:5]")
    e("v_lshlrev_b32 v3, 4, v0")
    e("v_mov_b32 v4, 0"); e("v_mov_b32 v5, 0"); e("v_mov_b32 v6, 0"); e("v_mov_b32 v7, 0")
    e("v_and_b32 v15, 15, v0"); e("v_cmp_le_u32 vcc, 14, v15"); e("v_mov_b32 v16, -1"); e("s_nop 0")
    for k in range(4): e(f"v_cndmask_b32 v{4+k}, v{4+k}, v16, vcc")
    for L in range(2):
        for half in range(2):
            e(f"v_add_u32 v14, {W.MEMB[L] + 8192 + half*4096}, v3")
            e("global_store_dwordx4 v14, v[4:7], s[4:5]")
    for it in range(2):
        e(f"v_add_u32 v3, {256*it}, v0")
        e("v_cmp_gt_u32 vcc, 448, v3")
        e("s_and_saveexec_b64 s[12:13], vcc")
        e(f"s_cbranch_execz P_mx{it}")
        e("v_lshlrev_b32 v8, 4, v3")
        e("global_load_dwordx4 v[16:19], v8, s[40:41]")
        e("s_waitcnt vmcnt(0)")
        for L in range(2):
            e(f"v_add_u32 v14, {W.MEMX[L]}, v8")
            e("global_store_dwordx4 v14, v[16:19], s[4:5]")
        e.label(f"P_mx{it}")
        e("s_mov_b64 exec, s[12:13]")
    e.label("P_m0_skip")

def fold_setup(e):
    e("s_and_b32 s14, s2, 7")
    e("s_lshr_b32 s15, s2, 3")
    e("s_mul_hi_u32 s16, s15, 0x24924925")
    e("s_mul_i32 s52, s16, 7")
    e("s_sub_u32 s52, s15, s52")
    e("s_lshl_b32 s14, s14, 2")
    e("s_add_u32 s14, s14, s16")
    e("s_lshr_b32 s50, s14, 4")
    e("s_and_b32 s51, s14, 15")
    e("s_cmp_eq_u32 s50, 0")
    e(f"s_cselect_b32 s14, {KA['wq']}, {KA['wv']}")
    e(f"s_cselect_b32 s15, {KA['wk']}, {KA['wo']}")
    e("s_add_u32 s16, s0, s14"); e("s_addc_u32 s17, s1, 0")
    e("s_add_u32 s18, s0, s15"); e("s_addc_u32 s19, s1, 0")
    e("s_load_dwordx2 s[6:7], s[16:17], 0")
    e("s_load_dwordx2 s[8:9], s[18:19], 0")
    vT, vT2, vT3 = 3, 4, 5
    e("s_lshl_b32 s24, s3, 3")
    for k in range(4):
        e(f"v_lshrrev_b32 v{vT}, 5, v{vL}")
        e(f"v_add_u32 v{vT}, s24, v{vT}")
        e(f"v_add_u32 v{vT}, {2*k}, v{vT}")
        e(f"v_and_b32 v{vT2}, 3, v{vT}")
        e(f"v_lshlrev_b32 v{vT2}, 1, v{vT2}")
        e(f"v_lshrrev_b32 v{vT3}, 3, v{vT}")
        e(f"v_and_b32 v{vT3}, 1, v{vT3}")
        e(f"v_lshl_or_b32 v{vT2}, v{vT3}, 3, v{vT2}")
        e(f"v_and_b32 v{vT3}, 31, v{vL}")
        e(f"v_xor_b32 v{vT2}, v{vT2}, v{vT3}")
        e(f"v_lshlrev_b32 v{vT2}, 4, v{vT2}")
        e(f"v_lshl_add_u32 v{48+k}, v{vT}, 13, v{vT2}")
    e("s_lshl_b32 s24, s3, 12")
    for k in range(4): e(f"s_add_u32 s{20+k}, s24, {k*1024}")
    e("s_waitcnt lgkmcnt(0)")
    e("s_lshl_b32 s14, s51, 9")
    e("s_add_u32 s6, s6, s14"); e("s_addc_u32 s7, s7, 0")
    e("s_lshl_b32 s53, s52, 1")
    e("s_mov_b32 s55, s53")
def dma_block(e, n):
    buf = n % 4
    e("s_lshl_b32 s54, s53, 18")
    for k in range(4):
        e(f"s_add_u32 m0, s{20+k}, {buf*16384}")
        e(f"v_add_u32 v2, s54, v{48+k}")
        e.vmem(f"global_load_lds_dwordx4 v2, s[6:7]", f"d{n}")
    e("s_add_u32 s53, s53, 1")
    e("s_cmp_eq_u32 s53, 14")
    e("s_cselect_b32 s53, 0, s53")

def fold_main(e):
    vT, vT2, vT3, vOA = 3, 4, 5, 7
    WO = 4*16384
    e("s_lshl_b32 s26, s52, 2"); e("s_add_u32 s26, s26, s3")
    e("s_cmp_eq_u32 s50, 0")
    e("s_cbranch_scc0 P_foldB_op")
    e(f"v_and_b32 v{vT}, 15, v{vL}")
    e(f"s_lshl_b32 s27, s26, 4")
    e(f"v_add_u32 v{vT}, s27, v{vT}")
    e(f"v_lshlrev_b32 v{vT}, 13, v{vT}")
    e(f"v_lshrrev_b32 v{vT2}, 4, v{vL}")
    e(f"v_lshl_add_u32 v{vT}, v{vT2}, 4, v{vT}")
    e("s_lshl_b32 s27, s51, 9")
    e(f"v_add_u32 v{vT}, s27, v{vT}")
    for ke in range(8):
        e(f"global_load_dwordx4 v[{64+4*ke}:{67+4*ke}], v{vT}, s[8:9] offset:{64*ke}")
    e("s_waitcnt vmcnt(0)")
    e("s_branch P_fold_go")
    e.label("P_foldB_op")
    e("s_mul_i32 s27, s51, 229376")
    e("s_lshl_b32 s28, s52, 7")
    e("s_add_u32 s27, s27, s28")
    e(f"v_lshrrev_b32 v{vT}, 3, v{vL}")
    e(f"v_mul_u32_u24 v{vT}, 896, v{vT}")
    e(f"v_and_b32 v{vT2}, 7, v{vL}")
    e(f"v_lshl_add_u32 v{vT}, v{vT2}, 4, v{vT}")
    e(f"v_add_u32 v{vT}, s27, v{vT}")
    e("s_mul_i32 s28, s3, 57344")
    e(f"v_add_u32 v{vT}, s28, v{vT}")
    e("s_lshl_b32 s29, s3, 13")
    e(f"s_add_u32 s29, s29, {WO}")
    for k in range(8):
        e(f"s_add_u32 m0, s29, {k*1024}")
        e(f"s_nop 0")
        e(f"global_load_lds_dwordx4 v{vT}, s[8:9]")
        e(f"v_add_u32 v{vT}, {8*896}, v{vT}")
    e("s_waitcnt vmcnt(0)")
    e("s_barrier")
    e(f"v_lshrrev_b32 v{vT}, 4, v{vL}")
    e(f"v_lshlrev_b32 v{vT}, 3, v{vT}")
    e(f"v_and_b32 v{vT2}, 15, v{vL}")
    e(f"v_lshrrev_b32 v{vT3}, 2, v{vT2}")
    e(f"v_add_u32 v{vT}, v{vT}, v{vT3}")
    e(f"v_lshlrev_b32 v{vT}, 7, v{vT}")
    e(f"v_and_b32 v{vT2}, 3, v{vT2}")
    e(f"v_lshl_add_u32 v{vT}, v{vT2}, 3, v{vT}")
    e("s_lshl_b32 s28, s3, 5")
    e(f"v_add_u32 v{vT}, s28, v{vT}")
    e(f"v_add_u32 v{vT}, {WO}, v{vT}")
    for ke in range(8):
        e(f"ds_read_b64_tr_b16 v[{64+4*ke}:{65+4*ke}], v{vT} offset:{ke*4096}")
        e(f"ds_read_b64_tr_b16 v[{66+4*ke}:{67+4*ke}], v{vT} offset:{ke*4096+512}")
    e("s_waitcnt lgkmcnt(0)")
    e.label("P_fold_go")
    e(f"v_and_b32 v{vT}, 15, v{vL}")
    e(f"v_lshrrev_b32 v{vT2}, 2, v{vT}")
    e(f"v_and_b32 v{vT3}, 3, v{vT}")
    e(f"v_lshl_add_u32 v8, v{vT2}, 3, v{vT3}")
    e(f"v_lshlrev_b32 v9, 1, v{vT3}")
    e(f"v_and_b32 v10, 1, v{vT2}")
    e(f"v_lshl_or_b32 v9, v10, 3, v9")
    e(f"v_lshrrev_b32 v10, 4, v{vL}")
    for ke in range(8):
        e(f"v_add_u32 v11, {4*ke}, v10")
        e(f"v_xor_b32 v11, v11, v9")
        e(f"v_lshlrev_b32 v11, 4, v11")
        e(f"v_lshl_add_u32 v{52+ke}, v8, 9, v11")
    e(f"s_mul_i32 s27, s50, {16*W.HEAD_IMG}")
    e(f"s_mul_i32 s28, s51, {W.HEAD_IMG}")
    e("s_add_u32 s27, s27, s28")
    e(f"s_mul_i32 s28, s26, {W.TILE}")
    e("s_add_u32 s27, s27, s28")
    e(f"s_add_u32 s27, s27, {W.WIMG}")
    e(f"v_lshl_add_u32 v{vOA}, v{vL}, 4, s27")
    e("s_cmp_eq_u32 s50, 0")
    e(f"s_cselect_b32 s30, {LOG2E_16}, 1.0")
    e.vm = []
    for n in range(14):
        if n >= 3: e.wait_vm(f"d{n}")
        e("s_barrier")
        if n + 3 < 14: dma_block(e, n+3)
        base = (n % 4)*16384
        for y in range(2):
            for ke in range(8):
                e(f"ds_read_b128 v[{96+32*y+4*ke}:{99+32*y+4*ke}], v{52+ke} offset:{base + y*2048}")
        for y in range(2):
            acc = 160+4*y
            for ke in range(8):
                e(f"s_waitcnt lgkmcnt({15 - (8*y+ke)})")
                c = "0" if ke == 0 else f"v[{acc}:{acc+3}]"
                e(f"v_mfma_f32_16x16x32_bf16 v[{acc}:{acc+3}], v[{96+32*y+4*ke}:{99+32*y+4*ke}], v[{64+4*ke}:{67+4*ke}], {c}")
        e.nop(8)
        for k in range(8): e(f"v_mul_f32 v{160+k}, s30, v{160+k}")
        for k in range(4): e(f"v_cvt_pk_bf16_f32 v{168+k}, v{160+2*k}, v{161+2*k}")
        e("s_lshl_b32 s54, s55, 10")
        e("v_add_u32 v6, s54, v7")
        e.vmem(f"global_store_dwordx4 v6, v[168:171], s[4:5]", 'st')
        e("s_add_u32 s55, s55, 1")
        e("s_cmp_eq_u32 s55, 14")
        e("s_cselect_b32 s55, 0, s55")

def gen(e, name="prep_kernel", skip=()):
    kernel_head(e, name)
    e(f"s_cmp_ge_u32 s2, {N_WG}")
    e("s_cbranch_scc1 P_end")
    load_ptr(e, 4, 'ws')
    lane_wave(e, 1, 3, 2)
    e("s_waitcnt lgkmcnt(0)")
    e("s_cmp_ge_u32 s2, 224")
    e("s_cbranch_scc1 P_side")
    fold_setup(e)
    for n in range(3): dma_block(e, n)
    e.label("P_side")
    if 'wt' not in skip: side_wt_issue(e)
    if 'fill' not in skip: side_fill(e)
    else:
        e("s_lshl_b32 s11, s2, 8"); e("v_add_u32 v2, s11, v0")
    if 'tab' not in skip:
        side_tables(e)
        side_small(e)
    side_mem0(e)
    if 'wt' not in skip: side_wt_finish(e)
    if 'fold' in skip: e("s_branch P_end")
    e("s_cmp_ge_u32 s2, 224")
    e("s_cbranch_scc1 P_end")
    e("s_waitcnt vmcnt(0)")
    fold_main(e)
    e.label("P_end")
    e("s_endpgm")
    e.raw(kernel_desc(name, 176, 176))
```

```python
def al(x, a=4096): return (x + a - 1)//a*a
TILE = 14336
HEAD_IMG = 28*TILE
_o = 0
def _alloc(n):
    global _o
    r = _o; _o = al(_o + n); return r
WIMG  = _alloc(32*HEAD_IMG)
FIMG  = _alloc(15*28*1024)
GIMG  = _alloc(2*8*15*1024)
CF32  = _alloc(3*2*1024)
CF64  = _alloc(3*2*4*1024)
TW1   = _alloc(2*2*4*1024)
TW2   = _alloc(2*2*4*1024)
WT    = _alloc(225*8*1024)
XD    = _alloc(480*4096)
ZD    = _alloc(464*4096)
X1    = _alloc(2048*896)
X2    = _alloc(2048*896)
X3    = _alloc(2048*896)
XA    = _alloc(64*28672)
U_SEG = 14*32768
UIMG  = _alloc(64*U_SEG + (1<<20))
MEM_STRIDE = 16384
P_STRIDE = 12288
MEMB  = [_alloc(65*MEM_STRIDE), _alloc(65*MEM_STRIDE)]
PB    = [_alloc(65*P_STRIDE), _alloc(65*P_STRIDE)]
CNT   = _alloc(65536)
MEMX_STRIDE = 8192
MEMX  = [_alloc(65*MEMX_STRIDE), _alloc(65*MEMX_STRIDE)]
MEMXI = [_alloc(65*MEMX_STRIDE), _alloc(65*MEMX_STRIDE)]
ZM_SEG = 14*16384
ZM    = _alloc(64*ZM_SEG)
PX_SEG = 16*4096
PX    = _alloc(64*PX_SEG)
TRACE = _alloc(65536)
WS_END = _o
if __name__ == "__main__":
    for k,v in list(globals().items()):
        if k.isupper(): print(k, v)
```

```python
import gen_final
hdr = open("interleave_layers__spectral_gfnet__memory_aug_recurrent_mem_tr__prompt.s.ref").read().split("; Override launch")[0]
txt = gen_final.text()
lines = txt.split("\n", 1)
open("interleave_layers__spectral_gfnet__memory_aug_recurrent_mem_tr__prompt.s","w").write(hdr + lines[1])
print(len(hdr + lines[1]))
```

```python
import sys
import build, k_prep, k_fft, k_b, k_fold
def launches():
    B = lambda L: [(f"b{L}_kernel", 256, 256, k_b.B_LDS)]
    fb = ("fb_kernel", 225, 64, 0)
    return [("prep_kernel", 256, 256, 0), ("fa0_kernel", 480, 256, k_fold.LDS), fb] + B(0) + [("fa1_kernel", 256, 256, k_fft.FA_LDS), fb] + B(1)
def text(L=None):
    return build.build(L or launches(), [k_prep.gen, lambda e: k_fft.gen_fa(e, True), k_fft.gen_fb, k_b.gen])
if __name__ == "__main__":
    out = sys.argv[1] if len(sys.argv) > 1 else "full.s"
    open(out, "w").write(text())
```

```python
from common import *
import struct, re
def f2u(x): return struct.unpack("<I", struct.pack("<f", x))[0]
sLAY = 60
FDIAG=[False]
def fst(e, k):
    if FDIAG[0]:
        e(f"s_memtime s[{40+2*k}:{41+2*k}]")
def entries(e, base):
    kernel_head(e, f"{base}0_kernel")
    e(f"s_mov_b32 s{sLAY}, 0")
    e(f"s_branch {base}_body")
    kernel_head(e, f"{base}1_kernel")
    e(f"s_mov_b32 s{sLAY}, 1")
    e.label(f"{base}_body")

def bf16_round_f32(e, dst, src, tmp=None):
    e(f"v_cvt_pk_bf16_f32 v{dst}, v{src}, v{src}")
    e(f"v_lshlrev_b32 v{dst}, 16, v{dst}")

def ln_stats_scalar(e, vmean, vvar, vmb, vr, t):
    bf16_round_f32(e, vmb, vmean)
    bf16_round_f32(e, t, vvar)
    e(f"v_add_f32 v{t}, {hex(f2u(1e-5))}, v{t}")
    bf16_round_f32(e, t, t)
    e(f"v_sqrt_f32 v{t}, v{t}")
    e("s_nop 0")
    bf16_round_f32(e, t, t)
    e(f"v_rcp_f32 v{vr}, v{t}")
    e("s_nop 0")
    e(f"v_fma_f32 v{t}, -v{t}, v{vr}, 2.0")
    e(f"v_mul_f32 v{vr}, v{vr}, v{t}")

FA_LDS = 28*1056
def gen_fa(e, with_fold=False):
    if with_fold:
        import k_fold
        kernel_head(e, "fa0_kernel")
        e(f"s_mov_b32 s{sLAY}, 0")
        e("s_cmp_lt_u32 s2, 256"); e("s_cbranch_scc1 " + ("fa_end" if FDIAG[0] == 'nofa' else "fa_body"))
        if FDIAG[0] == 'nofold': e("s_branch fa_end")
        e("s_cmp_ge_u32 s2, 480"); e("s_cbranch_scc1 fa_end")
        load_ptr(e, 4, 'ws')
        lane_wave(e, 1, 3, 2)
        e("s_sub_u32 s40, s2, 256")
        e("s_waitcnt lgkmcnt(0)")
        k_fold.gen_body(e, 40)
        kernel_head(e, "fa1_kernel")
        e(f"s_mov_b32 s{sLAY}, 1")
        e.label("fa_body")
    else:
        entries(e, "fa")
    e("s_cmp_ge_u32 s2, 256"); e("s_cbranch_scc1 fa_end")
    load_ptr(e, 4, 'ws'); load_ptr(e, 6, 'x')
    lane_wave(e, 1, 3, 2)
    e("s_waitcnt lgkmcnt(0)")
    e(f"s_add_u32 s8, s4, {W.X2}"); e("s_addc_u32 s9, s5, 0")
    e(f"s_cmp_eq_u32 s{sLAY}, 0")
    e("s_cselect_b32 s6, s6, s8"); e("s_cselect_b32 s7, s7, s9")
    e("s_and_b32 s10, s2, 63")
    e("s_lshr_b32 s11, s2, 6")
    e("s_lshl_b32 s12, s11, 2"); e("s_add_u32 s12, s12, s3")
    e("v_lshrrev_b32 v2, 3, v0")
    e("v_and_b32 v3, 7, v0")
    e("v_lshlrev_b32 v4, 6, v2")
    e("v_add_u32 v4, s10, v4")
    e("v_mul_u32_u24 v4, 896, v4")
    e("v_lshl_add_u32 v4, v3, 4, v4")
    for i in range(7): e(f"global_load_dwordx4 v[{8+4*i}:{11+4*i}], v4, s[6:7] offset:{128*i}")
    e("s_min_u32 s13, s12, 14")
    e(f"s_mul_i32 s13, s13, {28*1024}")
    e(f"s_add_u32 s13, s13, {W.FIMG}")
    e("v_lshl_add_u32 v5, v1, 4, s13")
    for ks in range(28):
        e(f"global_load_dwordx4 v[{64+4*ks}:{67+4*ks}], v5, s[4:5] offset:{(ks%4)*1024}")
        if ks % 4 == 3: e("v_add_u32 v5, 4096, v5")
    e("s_waitcnt vmcnt(28)")
    XV = 176
    for k in range(28):
        e(f"v_lshlrev_b32 v{XV+2*k}, 16, v{8+k}")
        e(f"v_and_b32 v{XV+2*k+1}, 0xffff0000, v{8+k}")
    ln_rows(e, XV, 8, 40)
    e("v_lshrrev_b32 v5, 1, v3")
    e("v_mul_u32_u24 v5, 1056, v5")
    e("v_and_b32 v6, 1, v3")
    e("v_mul_u32_u24 v6, 528, v6")
    e("v_add_u32 v5, v5, v6")
    e("v_lshl_add_u32 v5, v2, 4, v5")
    for i in range(7): e(f"ds_write_b128 v5, v[{8+4*i}:{11+4*i}] offset:{4*1056*i}")
    e("s_waitcnt lgkmcnt(0)")
    e("s_barrier")
    e("s_cmp_ge_u32 s12, 15"); e("s_cbranch_scc1 fa_end")
    e("v_and_b32 v5, 31, v1")
    e("v_lshrrev_b32 v6, 5, v1")
    e("v_mul_u32_u24 v6, 528, v6")
    e("v_lshl_add_u32 v5, v5, 4, v6")
    NB = 8
    for ks in range(NB): e.ds(f"ds_read_b128 v[{8+4*ks}:{11+4*ks}], v5 offset:{ks*1056}", f"a{ks}")
    e("s_waitcnt vmcnt(0)")
    acc = 240
    for ks in range(28):
        e.wait_lgkm(f"a{ks}")
        c = "0" if ks == 0 else f"v[{acc}:{acc+15}]"
        r = 8+4*(ks % NB)
        e(f"v_mfma_f32_32x32x16_bf16 v[{acc}:{acc+15}], v[{r}:{r+3}], v[{64+4*ks}:{67+4*ks}], {c}")
        if ks + NB < 28: e.ds(f"ds_read_b128 v[{r}:{r+3}], v5 offset:{(ks+NB)*1056}", f"a{ks+NB}")
    e("v_and_b32 v5, 31, v1")
    e("s_lshl_b32 s13, s12, 5")
    e("v_add_u32 v5, s13, v5")
    e("v_lshlrev_b32 v5, 12, v5")
    e("v_lshrrev_b32 v6, 5, v1")
    e("v_lshl_add_u32 v5, v6, 9, v5")
    e("s_lshr_b32 s13, s10, 5"); e("s_lshl_b32 s13, s13, 11")
    e("s_and_b32 s14, s10, 31"); e("s_lshl_b32 s14, s14, 4")
    e("s_add_u32 s13, s13, s14"); e(f"s_add_u32 s13, s13, {W.XD}")
    e("v_add_u32 v5, s13, v5")
    e.nop(6)
    for k in range(8): e(f"v_cvt_pk_bf16_f32 v{8+k}, v{acc+2*k}, v{acc+2*k+1}")
    for q in range(4):
        e(f"global_store_dwordx2 v5, v[{8+2*q}:{9+2*q}], s[4:5] offset:{(q>>1)*1024 + (q&1)*8}")
    e.label("fa_end")
    e("s_endpgm")
    for L in range(2): e.raw(kernel_desc(f"fa{L}_kernel", 256, 256))

def gen_fb(e):
    kernel_head(e, "fb_kernel")
    e("s_cmp_ge_u32 s2, 225"); e("s_cbranch_scc1 fb_end")
    load_ptr(e, 4, 'ws')
    e("v_lshlrev_b32 v1, 4, v0")
    e("s_waitcnt lgkmcnt(0)")
    aF32, aF64, aU = 0, 24, 120
    ACC, TW, WTR, PK, T = 0+4, 72, 136, 168, 200
    ACC = 4
    def accr(t): return ACC + 16*t
    def acci(t): return ACC + 32 + 16*t
    e("s_lshl_b32 s10, s2, 12"); e(f"s_add_u32 s10, s10, {W.XD}")
    e("v_add_u32 v2, s10, v1")
    for c in range(2):
        for i in range(4):
            e(f"global_load_dwordx4 a[{aU+16*c+4*i}:{aU+16*c+4*i+3}], v2, s[4:5] offset:{i*1024}")
        if c == 0: e(f"v_add_u32 v2, {225*4096}, v2")
    e(f"v_add_u32 v2, {W.CF32}, v1")
    for i in range(6):
        e(f"global_load_dwordx4 a[{aF32+4*i}:{aF32+4*i+3}], v2, s[4:5] offset:{(i%4)*1024}")
        if i == 3: e("v_add_u32 v2, 4096, v2")
    def load_tw(base):
        e(f"v_add_u32 v2, {base}, v1")
        for i in range(16):
            e(f"global_load_dwordx4 v[{TW+4*i}:{TW+4*i+3}], v2, s[4:5] offset:{(i%4)*1024}")
            if i % 4 == 3: e("v_add_u32 v2, 4096, v2")
    load_tw(W.TW1)
    e(f"v_add_u32 v2, {W.CF64}, v1")
    for i in range(24):
        e(f"global_load_dwordx4 a[{aF64+4*i}:{aF64+4*i+3}], v2, s[4:5] offset:{(i%4)*1024}")
        if i % 4 == 3: e("v_add_u32 v2, 4096, v2")
    e("s_lshl_b32 s10, s2, 13"); e(f"s_add_u32 s10, s10, {W.WT}")
    e("v_add_u32 v2, s10, v1")
    for i in range(8):
        e(f"global_load_dwordx4 v[{WTR+4*i}:{WTR+4*i+3}], v2, s[4:5] offset:{(i%4)*1024}")
        if i == 3: e("v_add_u32 v2, 4096, v2")
    F32 = lambda comp, ks: f"a[{aF32+8*comp+4*ks}:{aF32+8*comp+4*ks+3}]"
    F64 = lambda comp, t, ka: f"a[{aF64+32*comp+16*t+4*ka}:{aF64+32*comp+16*t+4*ka+3}]"
    U = lambda c, bt, ks: f"a[{aU+16*c+8*bt+4*ks}:{aU+16*c+8*bt+4*ks+3}]"
    PKr = lambda t, kk: f"v[{PK+8*t+4*kk}:{PK+8*t+4*kk+3}]"
    PKi = lambda t, kk: f"v[{PK+16+8*t+4*kk}:{PK+16+8*t+4*kk+3}]"
    def mf(acc, a, b, first):
        c = "0" if first else f"v[{acc}:{acc+15}]"
        e(f"v_mfma_f32_32x32x16_bf16 v[{acc}:{acc+15}], {a}, {b}, {c}")
    e("s_waitcnt vmcnt(48)")
    for bt in range(2):
        mf(accr(bt), U(0,bt,0), F32(0,0), True);  mf(acci(bt), U(0,bt,0), F32(1,0), True)
        mf(accr(bt), U(0,bt,1), F32(0,1), False); mf(acci(bt), U(0,bt,1), F32(1,1), False)
        mf(accr(bt), U(1,bt,0), F32(2,0), False); mf(acci(bt), U(1,bt,0), F32(0,0), False)
        mf(accr(bt), U(1,bt,1), F32(2,1), False); mf(acci(bt), U(1,bt,1), F32(0,1), False)
    def cmul_pack(trf, tif, order=(0,1)):
        for t in order:
            for r in range(0, 16, 2):
                ar, ai = accr(t)+r, acci(t)+r
                tr, ti = trf(t, r), tif(t, r)
                e(f"v_pk_mul_f32 v[{T}:{T+1}], v[{ar}:{ar+1}], v[{tr}:{tr+1}]")
                e(f"v_pk_mul_f32 v[{T+2}:{T+3}], v[{ar}:{ar+1}], v[{ti}:{ti+1}]")
                e(f"v_pk_fma_f32 v[{T}:{T+1}], v[{ai}:{ai+1}], v[{ti}:{ti+1}], v[{T}:{T+1}] neg_lo:[1,0,0] neg_hi:[1,0,0]")
                e(f"v_pk_fma_f32 v[{T+2}:{T+3}], v[{ai}:{ai+1}], v[{tr}:{tr+1}], v[{T+2}:{T+3}]")
                e(f"v_cvt_pk_bf16_f32 v{PK+8*t+r//2}, v{T}, v{T+1}")
                e(f"v_cvt_pk_bf16_f32 v{PK+16+8*t+r//2}, v{T+2}, v{T+3}")
    e("s_waitcnt vmcnt(32)")
    e.nop(12)
    cmul_pack(lambda t,r: TW+16*t+r, lambda t,r: TW+32+16*t+r)
    load_tw(W.TW2)
    e("s_waitcnt vmcnt(24)")
    for ft in range(2):
        first = True
        for t in range(2):
            for kk in range(2):
                ka = 2*t+kk
                mf(accr(ft), F64(0,ft,ka), PKr(t,kk), first); mf(acci(ft), F64(1,ft,ka), PKr(t,kk), first)
                first = False
                mf(accr(ft), F64(2,ft,ka), PKi(t,kk), False); mf(acci(ft), F64(0,ft,ka), PKi(t,kk), False)
    e("s_waitcnt vmcnt(16)")
    e.nop(12)
    for t in range(2):
        for r in range(0, 16, 2):
            w0, w1 = WTR+16*t+r, WTR+16*t+r+1
            e(f"v_lshlrev_b32 v{T+4}, 16, v{w0}"); e(f"v_lshlrev_b32 v{T+5}, 16, v{w1}")
            e(f"v_and_b32 v{T+6}, 0xffff0000, v{w0}"); e(f"v_and_b32 v{T+7}, 0xffff0000, v{w1}")
            ar, ai = accr(t)+r, acci(t)+r
            tr, ti = T+4, T+6
            e(f"v_pk_mul_f32 v[{T}:{T+1}], v[{ar}:{ar+1}], v[{tr}:{tr+1}]")
            e(f"v_pk_mul_f32 v[{T+2}:{T+3}], v[{ar}:{ar+1}], v[{ti}:{ti+1}]")
            e(f"v_pk_fma_f32 v[{T}:{T+1}], v[{ai}:{ai+1}], v[{ti}:{ti+1}], v[{T}:{T+1}] neg_lo:[1,0,0] neg_hi:[1,0,0]")
            e(f"v_pk_fma_f32 v[{T+2}:{T+3}], v[{ai}:{ai+1}], v[{tr}:{tr+1}], v[{T+2}:{T+3}]")
            e(f"v_cvt_pk_bf16_f32 v{PK+8*t+r//2}, v{T}, v{T+1}")
            e(f"v_cvt_pk_bf16_f32 v{PK+16+8*t+r//2}, v{T+2}, v{T+3}")
    e.nop(2)
    for bt in range(2):
        first = True
        for t in range(2):
            for kk in range(2):
                ka = 2*t+kk
                mf(accr(bt), PKr(t,kk), F64(0,bt,ka), first); mf(acci(bt), PKi(t,kk), F64(0,bt,ka), first)
                first = False
                mf(accr(bt), PKi(t,kk), F64(1,bt,ka), False); mf(acci(bt), PKr(t,kk), F64(2,bt,ka), False)
    e("s_waitcnt vmcnt(0)")
    e.nop(12)
    cmul_pack(lambda t,r: TW+16*t+r, lambda t,r: TW+32+16*t+r)
    e.nop(2)
    for bt in range(2):
        mf(accr(bt), F32(0,0), PKr(bt,0), True);  mf(acci(bt), F32(0,0), PKi(bt,0), True)
        mf(accr(bt), F32(0,1), PKr(bt,1), False); mf(acci(bt), F32(0,1), PKi(bt,1), False)
        mf(accr(bt), F32(1,0), PKi(bt,0), False); mf(acci(bt), F32(2,0), PKr(bt,0), False)
        mf(accr(bt), F32(1,1), PKi(bt,1), False); mf(acci(bt), F32(2,1), PKr(bt,1), False)
    e("v_and_b32 v2, 31, v0")
    e("v_lshlrev_b32 v2, 2, v2")
    e("v_lshrrev_b32 v3, 5, v0")
    e("v_lshl_add_u32 v2, v3, 9, v2")
    e("s_lshl_b32 s10, s2, 12"); e(f"s_add_u32 s10, s10, {W.ZD}")
    e("v_add_u32 v2, s10, v2")
    e(f"v_add_u32 v3, {225*4096}, v2")
    e.nop(8)
    for c,(va, accf) in enumerate(((2, accr), (3, acci))):
        for bt in range(2):
            for r in range(0,16,2):
                e(f"v_cvt_pk_bf16_f32 v{T+(r//2)%4}, v{accf(bt)+r}, v{accf(bt)+r+1}")
                off = (((r&3)>>1) + 4*(r>>2))*256 + bt*128
                e(f"global_store_dword v{va}, v{T+(r//2)%4}, s[4:5] offset:{off}")
    e.label("fb_end")
    e("s_endpgm")
    e.raw(kernel_desc("fb_kernel", 512, 256))

XROWS = 32768
STATS = XROWS + 32*912
FC_LDS = STATS + 1024
def gen_fc(e):
    entries(e, "fc")
    e("s_cmp_ge_u32 s2, 64"); e("s_cbranch_scc1 fc_end")
    load_ptr(e, 4, 'ws')
    lane_wave(e, 1, 3, 2)
    fc_body(e, {}, "")
    if FDIAG[0]:
        e("s_waitcnt vmcnt(0)"); fst(e, 6); e("s_waitcnt lgkmcnt(0)")
        e("s_cmp_lg_u32 s2, 5"); e("s_cbranch_scc1 fc_end"); e("s_cmp_lg_u32 s3, 0"); e("s_cbranch_scc1 fc_end")
        load_ptr(e, 6, 'dbg'); e("s_waitcnt lgkmcnt(0)")
        for k in range(7):
            e(f"v_mov_b32 v2, s{40+2*k}"); e(f"v_mov_b32 v3, {4*k}"); e("global_store_dword v3, v2, s[6:7]")
    e.label("fc_end")
    e("s_endpgm")
    for L in range(2): e.raw(kernel_desc(f"fc{L}_kernel", 416, 256))

class _Remap:
    def __init__(self, e, m): self.e = e; self.m = m
    def _r(self, txt):
        def one(mo):
            n = int(mo.group(1)); return f"s{self.m.get(n, n)}"
        def pair(mo):
            lo, hi = int(mo.group(1)), int(mo.group(2))
            l2 = self.m.get(lo, lo); assert self.m.get(hi, hi) == l2 + (hi - lo), (txt, lo, hi)
            return f"s[{l2}:{l2+hi-lo}]"
        txt = re.sub(r"s\[(\d+):(\d+)\]", pair, txt)
        return re.sub(r"(?<![\w.\[])s(\d+)\b", one, txt)
    def __call__(self, s): self.e(self._r(s))
    def __getattr__(self, k): return getattr(self.e, k)
    def vmem(self, s, tag=None): self.e.vmem(self._r(s), tag)
    def ds(self, s, tag=None): self.e.ds(self._r(s), tag)

def ln_rows(e, XV, raw_out, t):
    def reduce8(v):
        e.nop(2); e(f"v_add_f32_dpp v{v}, v{v}, v{v} quad_perm:[1,0,3,2] row_mask:0xf bank_mask:0xf")
        e.nop(2); e(f"v_add_f32_dpp v{v}, v{v}, v{v} quad_perm:[2,3,0,1] row_mask:0xf bank_mask:0xf")
        e.nop(2); e(f"v_add_f32_dpp v{v}, v{v}, v{v} row_half_mirror row_mask:0xf bank_mask:0xf")
    A, B_, M, R = t, t+2, t+4, t+6
    e(f"v_pk_add_f32 v[{A}:{A+1}], v[{XV}:{XV+1}], v[{XV+2}:{XV+3}]")
    e(f"v_pk_add_f32 v[{B_}:{B_+1}], v[{XV+4}:{XV+5}], v[{XV+6}:{XV+7}]")
    for k in range(4, 28):
        d = A if k % 2 == 0 else B_
        e(f"v_pk_add_f32 v[{d}:{d+1}], v[{d}:{d+1}], v[{XV+2*k}:{XV+2*k+1}]")
    e(f"v_pk_add_f32 v[{A}:{A+1}], v[{A}:{A+1}], v[{B_}:{B_+1}]"); e(f"v_add_f32 v{M}, v{A}, v{A+1}")
    reduce8(M)
    e(f"v_mul_f32 v{M}, {hex(f2u(1.0/448))}, v{M}")
    e(f"v_mov_b64 v[{A}:{A+1}], 0"); e(f"v_mov_b64 v[{B_}:{B_+1}], 0")
    for k in range(28):
        d = A if k % 2 == 0 else B_; tt = t+8 if k % 2 == 0 else t+10
        e(f"v_pk_add_f32 v[{tt}:{tt+1}], v[{XV+2*k}:{XV+2*k+1}], v[{M}:{M+1}] op_sel_hi:[1,0] neg_lo:[0,1] neg_hi:[0,1]")
        e(f"v_pk_fma_f32 v[{d}:{d+1}], v[{tt}:{tt+1}], v[{tt}:{tt+1}], v[{d}:{d+1}]")
    e(f"v_pk_add_f32 v[{A}:{A+1}], v[{A}:{A+1}], v[{B_}:{B_+1}]"); e(f"v_add_f32 v{A}, v{A}, v{A+1}")
    reduce8(A)
    e(f"v_mul_f32 v{A}, {hex(f2u(1.0/448))}, v{A}")
    ln_stats_scalar(e, M, A, B_, R, B_+1)
    for k in range(28):
        tt = t+8 if k % 2 == 0 else t+10
        e(f"v_pk_add_f32 v[{tt}:{tt+1}], v[{XV+2*k}:{XV+2*k+1}], v[{B_}:{B_+1}] op_sel_hi:[1,0] neg_lo:[0,1] neg_hi:[0,1]")
        e(f"v_cvt_pk_bf16_f32 v{A}, v{tt}, v{tt+1}")
        e(f"v_lshlrev_b32 v{tt}, 16, v{A}"); e(f"v_and_b32 v{tt+1}, 0xffff0000, v{A}")
        e(f"v_pk_mul_f32 v[{tt}:{tt+1}], v[{tt}:{tt+1}], v[{R}:{R+1}] op_sel_hi:[1,0]")
        e(f"v_cvt_pk_bf16_f32 v{raw_out+k}, v{tt}, v{tt+1}")

def fc_body(e0, smap, sc1):
    e = _Remap(e0, smap)
    load_ptr(e, 6, 'x')
    fst(e, 0)
    e("s_waitcnt lgkmcnt(0)")
    e(f"s_add_u32 s8, s4, {W.X2}"); e("s_addc_u32 s9, s5, 0")
    e(f"s_cmp_eq_u32 s{sLAY}, 0")
    e("s_cselect_b32 s6, s6, s8"); e("s_cselect_b32 s7, s7, s9")
    e(f"s_mov_b32 s14, {W.X3}")
    e(f"s_cselect_b32 s15, {W.X1}, s14")
    e("s_lshr_b32 s10, s2, 2")
    e("s_lshr_b32 s11, s2, 1"); e("s_and_b32 s11, s11, 1")
    e("s_and_b32 s12, s2, 1")
    e("s_lshl_b32 s16, s10, 7"); e("s_lshl_b32 s17, s11, 5"); e("s_add_u32 s16, s16, s17")
    e("s_lshl_b32 s17, s12, 4"); e("s_add_u32 s16, s16, s17")
    YR = XROWS
    e("v_mov_b64 v[4:5], 0"); e("v_mov_b64 v[6:7], 0")
    e("v_lshlrev_b32 v2, 4, v1")
    e(f"ds_write_b128 v2, v[4:7] offset:{14*1024}"); e(f"ds_write_b128 v2, v[4:7] offset:{29*1024}")
    XR = 200
    e("v_lshrrev_b32 v10, 3, v0"); e("v_and_b32 v11, 7, v0")
    e("v_lshrrev_b32 v12, 1, v10"); e("v_and_b32 v13, 1, v10"); e("v_lshl_add_u32 v12, v13, 6, v12")
    e("v_add_u32 v12, s16, v12"); e("v_mul_u32_u24 v12, 896, v12"); e("v_lshl_add_u32 v240, v11, 4, v12")
    for i in range(7): e.vmem(f"global_load_dwordx4 v[{XR+4*i}:{XR+4*i+3}], v240, s[6:7] offset:{128*i}", 'x')
    e("s_waitcnt lgkmcnt(0)")
    e("s_barrier")
    e("s_lshl_b32 s13, s10, 8"); e("s_lshl_b32 s14, s11, 7"); e("s_add_u32 s13, s13, s14")
    e("s_lshl_b32 s14, s12, 6"); e("s_add_u32 s13, s13, s14"); e(f"s_add_u32 s13, s13, {W.ZD}")
    e("v_lshrrev_b32 v2, 2, v1"); e("v_lshlrev_b32 v2, 12, v2")
    e("v_and_b32 v3, 3, v1"); e("v_lshl_add_u32 v2, v3, 4, v2")
    e("v_add_u32 v2, s13, v2")
    for w in range(4):
        if w < 3: e(f"s_cmp_eq_u32 s3, {w}");
        if w < 3: e(f"s_cbranch_scc0 fc_dm{w}")
        for i in range(w, 30, 4):
            kk0 = 16*i if i < 15 else 225 + 16*(i-15)
            if i in (14, 29): e("s_mov_b64 exec, 15")
            e(f"v_add_u32 v3, {kk0*4096}, v2")
            e(f"s_mov_b32 m0, {i*1024}")
            e("s_nop 0")
            e("global_load_lds_dwordx4 v3, s[4:5]")
            if i in (14, 29): e("s_mov_b64 exec, -1")
        if w < 3:
            e("s_branch fc_dmj"); e.label(f"fc_dm{w}")
    e.label("fc_dmj")
    GR = 0; NR = 40
    e("s_mul_i32 s17, s3, %d" % (15*1024)); e(f"s_add_u32 s17, s17, {W.GIMG}")
    e("v_lshl_add_u32 v8, v1, 4, s17")
    steps = [(tt, eo, ks) for tt in range(2) for eo in range(2) for ks in range(15)]
    def gload(n):
        tt, eo, ks = steps[n]; r = GR + 4*(n % NR)
        e(f"v_add_u32 v9, {eo*8*15*1024 + tt*4*15*1024 + ks*1024}, v8")
        e.vmem(f"global_load_dwordx4 a[{r}:{r+3}], v9, s[4:5]", f"g{n}")
    for n in range(NR): gload(n)
    e(f"s_waitcnt vmcnt({NR})")
    e("s_barrier")
    fst(e, 1)
    e("v_lshrrev_b32 v2, 5, v1"); e("v_lshlrev_b32 v2, 3, v2")
    e("v_and_b32 v3, 15, v1"); e("v_lshrrev_b32 v4, 2, v3"); e("v_add_u32 v2, v2, v4"); e("v_lshlrev_b32 v2, 6, v2")
    e("v_lshrrev_b32 v4, 4, v1"); e("v_and_b32 v4, 1, v4"); e("v_lshl_add_u32 v2, v4, 5, v2")
    e("v_and_b32 v3, 3, v3"); e("v_lshl_add_u32 v2, v3, 3, v2")
    ZB = 16
    for eo in range(2):
        for ks in range(15):
            r = ZB + 60*eo + 4*ks
            e(f"ds_read_b64_tr_b16 v[{r}:{r+1}], v2 offset:{eo*15360 + ks*1024}")
            e(f"ds_read_b64_tr_b16 v[{r+2}:{r+3}], v2 offset:{eo*15360 + ks*1024 + 256}")
    e("s_waitcnt lgkmcnt(0)")
    fst(e, 2)
    ACC = 136
    for n, (tt, eo, ks) in enumerate(steps):
        e.wait_vm(f"g{n}")
        r = GR + 4*(n % NR); a = ACC + 32*tt + 16*eo; z = ZB + 60*eo + 4*ks
        c = "0" if ks == 0 else f"v[{a}:{a+15}]"
        e(f"v_mfma_f32_32x32x16_bf16 v[{a}:{a+15}], a[{r}:{r+3}], v[{z}:{z+3}], {c}")
        if n + NR < len(steps): gload(n+NR)
    fst(e, 3)
    e("v_and_b32 v2, 31, v1"); e("v_mul_u32_u24 v2, 912, v2"); e(f"v_add_u32 v2, {YR}, v2")
    e("v_lshrrev_b32 v3, 5, v1")
    e("s_lshl_b32 s17, s3, 6")
    e("v_lshl_add_u32 v4, v3, 3, v2"); e("v_add_u32 v4, s17, v4")
    e("v_lshlrev_b32 v5, 3, v3"); e("v_sub_u32 v5, v2, v5"); e("v_subrev_u32 v5, s17, v5")
    e(f"v_add_u32 v5, {896 - 512}, v5")
    e.nop(8)
    for tt in range(2):
        E, O = ACC + 32*tt, ACC + 32*tt + 16
        last = (tt == 1)
        if last:
            e("s_cmp_eq_u32 s3, 3"); e("s_cbranch_scc1 fc_t7")
        for q in range(4):
            for h2 in range(2):
                r = 4*q + 2*h2
                e(f"v_pk_add_f32 v[10:11], v[{E+r}:{E+r+1}], v[{O+r}:{O+r+1}] neg_lo:[0,1] neg_hi:[0,1]")
                e(f"v_pk_add_f32 v[12:13], v[{E+r}:{E+r+1}], v[{O+r}:{O+r+1}]")
                e(f"v_cvt_pk_bf16_f32 v{14+h2}, v10, v11")
                e(f"v_cvt_pk_bf16_f32 v{6+h2}, v12, v13")
            e(f"ds_write_b64 v4, v[14:15] offset:{tt*256 + q*16}")
            for r in range(4):
                off = 512 - tt*256 - q*16 - r*2
                ins = "ds_write_b16" if r % 2 == 0 else "ds_write_b16_d16_hi"
                e(f"{ins} v5, v{6 + r//2} offset:{off}")
        if last:
            e("s_branch fc_t7d")
            e.label("fc_t7")
            e(f"v_sub_f32 v10, v{E}, v{O}"); e("v_cvt_pk_bf16_f32 v14, v10, v10")
            e("s_mov_b32 s20, -1"); e("s_mov_b32 s21, 0"); e("s_mov_b64 exec, s[20:21]")
            e(f"ds_write_b16 v4, v14 offset:256")
            e("s_mov_b64 exec, -1")
            e.label("fc_t7d")
    e("s_waitcnt lgkmcnt(0)"); e("s_barrier")
    fst(e, 4)
    e("v_lshrrev_b32 v10, 3, v0"); e("v_and_b32 v11, 7, v0")
    e("v_mul_u32_u24 v2, 912, v10"); e("v_lshl_add_u32 v2, v11, 4, v2"); e(f"v_add_u32 v2, {YR}, v2")
    YRW = 16
    for i in range(7): e(f"ds_read_b128 v[{YRW+4*i}:{YRW+4*i+3}], v2 offset:{128*i}")
    e("s_waitcnt vmcnt(0) lgkmcnt(0)")
    XV = 48
    for k in range(28):
        a, b = XV+2*k, XV+2*k+1
        e(f"v_lshlrev_b32 v{a}, 16, v{XR+k}"); e(f"v_and_b32 v{b}, 0xffff0000, v{XR+k}")
        e(f"v_lshlrev_b32 v104, 16, v{YRW+k}"); e(f"v_and_b32 v105, 0xffff0000, v{YRW+k}")
        e(f"v_pk_add_f32 v[{a}:{a+1}], v[{a}:{a+1}], v[104:105]")
        e(f"v_cvt_pk_bf16_f32 v{XR+k}, v{a}, v{b}")
        e(f"v_lshlrev_b32 v{a}, 16, v{XR+k}"); e(f"v_and_b32 v{b}, 0xffff0000, v{XR+k}")
    e("v_add_u32 v13, s15, v240")
    for i in range(7): e(f"global_store_dwordx4 v13, v[{XR+4*i}:{XR+4*i+3}], s[4:5] offset:{128*i} " + sc1)
    ln_rows(e, XV, YRW, 106)
    for i in range(7): e(f"ds_write_b128 v2, v[{YRW+4*i}:{YRW+4*i+3}] offset:{128*i}")
    e("s_waitcnt lgkmcnt(0)"); e("s_barrier")
    fst(e, 5)
    e("v_and_b32 v5, 15, v0"); e("v_lshrrev_b32 v6, 4, v0")
    e("v_mul_u32_u24 v7, 1824, v5"); e("v_lshl_add_u32 v7, v6, 4, v7"); e(f"v_add_u32 v7, {YR}, v7")
    for p in range(2):
        for i in range(4):
            e(f"ds_read_b128 v[{48+16*p+4*i}:{51+16*p+4*i}], v7 offset:{p*912 + i*256}")
    e("s_waitcnt lgkmcnt(0)")
    for p in range(2):
        e(f"s_add_u32 s17, s16, {64*p}"); e("s_lshr_b32 s17, s17, 5"); e("s_mul_i32 s17, s17, 28672")
        e("s_mul_i32 s18, s12, 14336"); e("s_add_u32 s17, s17, s18"); e(f"s_add_u32 s17, s17, {W.XA}")
        e("v_lshl_add_u32 v10, v0, 4, s17")
        for i in range(4):
            if i == 3: e("s_cmp_ge_u32 s3, 2");
            if i == 3: e(f"s_cbranch_scc1 fc_xa{p}")
            e(f"v_add_u32 v11, {4096*i}, v10")
            e(f"global_store_dwordx4 v11, v[{48+16*p+4*i}:{51+16*p+4*i}], s[4:5] " + sc1)
        e.label(f"fc_xa{p}")
```

```python
from common import *
LOG2E_16 = 0x3db8aa3b
NBUF = 4
WO = 2*16384
LDS = NBUF*16384
vL = 1
DG=[False]
def st(e,k):
    if DG[0]: e(f"s_memtime s[{64+2*k}:{65+2*k}]")
def gen_body(e, sid):
    st(e,0)
    e(f"s_and_b32 s14, s{sid}, 7"); e(f"s_lshr_b32 s15, s{sid}, 3")
    e("s_mul_hi_u32 s16, s15, 0x24924925"); e("s_mul_i32 s13, s16, 7"); e("s_sub_u32 s13, s15, s13")
    e("s_lshl_b32 s14, s14, 2"); e("s_add_u32 s14, s14, s16")
    e("s_lshr_b32 s10, s14, 4"); e("s_and_b32 s12, s14, 15")
    e("s_cmp_eq_u32 s10, 0")
    e(f"s_cselect_b32 s14, {KA['wq']}, {KA['wv']}"); e(f"s_cselect_b32 s15, {KA['wk']}, {KA['wo']}")
    e("s_add_u32 s16, s0, s14"); e("s_addc_u32 s17, s1, 0"); e("s_add_u32 s18, s0, s15"); e("s_addc_u32 s19, s1, 0")
    e("s_load_dwordx2 s[6:7], s[16:17], 0"); e("s_load_dwordx2 s[8:9], s[18:19], 0")
    vT, vT2, vT3 = 3, 4, 5
    e("s_lshl_b32 s24, s3, 3")
    for k in range(4):
        e(f"v_lshrrev_b32 v{vT}, 5, v{vL}"); e(f"v_add_u32 v{vT}, s24, v{vT}"); e(f"v_add_u32 v{vT}, {2*k}, v{vT}")
        e(f"v_and_b32 v{vT2}, 3, v{vT}"); e(f"v_lshlrev_b32 v{vT2}, 1, v{vT2}")
        e(f"v_lshrrev_b32 v{vT3}, 3, v{vT}"); e(f"v_and_b32 v{vT3}, 1, v{vT3}"); e(f"v_lshl_or_b32 v{vT2}, v{vT3}, 3, v{vT2}")
        e(f"v_and_b32 v{vT3}, 31, v{vL}"); e(f"v_xor_b32 v{vT2}, v{vT2}, v{vT3}"); e(f"v_lshlrev_b32 v{vT2}, 4, v{vT2}")
        e(f"v_lshl_add_u32 v{48+k}, v{vT}, 13, v{vT2}")
    e("s_lshl_b32 s24, s3, 12")
    for k in range(4): e(f"s_add_u32 s{20+k}, s24, {k*1024}")
    e("s_waitcnt lgkmcnt(0)")
    e("s_lshl_b32 s14, s12, 9"); e("s_add_u32 s6, s6, s14"); e("s_addc_u32 s7, s7, 0")
    e("s_lshl_b32 s26, s13, 1"); e("s_mov_b32 s27, s26")
    e.vm = []
    def dma_list(n):
        buf = n % NBUF
        l = ["s_lshl_b32 s28, s26, 18"]
        for k in range(4):
            l += [f"s_add_u32 m0, s{20+k}, {buf*16384}", f"v_add_u32 v2, s28, v{48+k}", ("vm", "global_load_lds_dwordx4 v2, s[6:7]", f"d{n}")]
        l += ["s_add_u32 s26, s26, 1", "s_cmp_eq_u32 s26, 14", "s_cselect_b32 s26, 0, s26"]
        return l
    def emit(x):
        if isinstance(x, tuple): e.vmem(x[1], x[2])
        else: e(x)
    e("s_cmp_eq_u32 s10, 0"); e("s_cbranch_scc0 F_bdmaB")
    e(f"v_lshrrev_b32 v{vT}, 5, v{vL}"); e("s_lshl_b32 s28, s3, 4"); e(f"v_add_u32 v{vT}, s28, v{vT}")
    e("s_lshl_b32 s29, s13, 6")
    for k in range(8):
        e(f"v_add_u32 v6, {2*k}, v{vT}")
        e(f"v_and_b32 v{vT2}, 3, v6"); e(f"v_lshlrev_b32 v{vT2}, 1, v{vT2}")
        e(f"v_lshrrev_b32 v{vT3}, 2, v6"); e(f"v_and_b32 v{vT3}, 1, v{vT3}"); e(f"v_lshl_or_b32 v{vT2}, v{vT3}, 3, v{vT2}")
        e(f"v_and_b32 v{vT3}, 31, v{vL}"); e(f"v_xor_b32 v{vT2}, v{vT2}, v{vT3}"); e(f"v_lshlrev_b32 v{vT2}, 4, v{vT2}")
        e("v_add_u32 v6, s29, v6"); e(f"v_lshl_add_u32 v6, v6, 13, v{vT2}"); e("v_add_u32 v6, s14, v6")
        e("s_lshl_b32 s30, s3, 13"); e(f"s_add_u32 m0, s30, {WO + k*1024}")
        e("s_nop 0")
        e("global_load_lds_dwordx4 v6, s[8:9]")
    e("s_branch F_bdmad")
    e.label("F_bdmaB")
    e("s_mul_i32 s29, s12, 229376"); e("s_lshl_b32 s28, s13, 7"); e("s_add_u32 s29, s29, s28")
    e(f"v_lshrrev_b32 v{vT}, 3, v{vL}"); e(f"v_mul_u32_u24 v{vT}, 896, v{vT}")
    e(f"v_and_b32 v{vT2}, 7, v{vL}"); e(f"v_lshl_add_u32 v{vT}, v{vT2}, 4, v{vT}"); e(f"v_add_u32 v{vT}, s29, v{vT}")
    e("s_mul_i32 s28, s3, 57344"); e(f"v_add_u32 v{vT}, s28, v{vT}")
    e("s_lshl_b32 s29, s3, 13"); e(f"s_add_u32 s29, s29, {WO}")
    for k in range(8):
        e(f"s_add_u32 m0, s29, {k*1024}"); e("s_nop 0")
        e(f"global_load_lds_dwordx4 v{vT}, s[8:9]"); e(f"v_add_u32 v{vT}, {8*896}, v{vT}")
    e.label("F_bdmad")
    for n in range(2):
        for x in dma_list(n): emit(x)
    st(e,1)
    e("s_waitcnt vmcnt(8)")
    e("s_barrier")
    st(e,2)
    e("s_lshr_b32 s29, s3, 1")
    e("s_cmp_eq_u32 s10, 0"); e("s_cbranch_scc0 F_bopB")
    e(f"v_and_b32 v{vT}, 15, v{vL}"); e(f"v_lshrrev_b32 v{vT2}, 4, v{vL}")
    e(f"v_and_b32 v{vT3}, 3, v{vT}"); e(f"v_lshlrev_b32 v9, 1, v{vT3}")
    e(f"v_lshrrev_b32 v{vT3}, 2, v{vT}"); e(f"v_and_b32 v{vT3}, 1, v{vT3}"); e(f"v_lshl_or_b32 v9, v{vT3}, 3, v9")
    e("s_lshl_b32 s28, s29, 14"); e(f"s_add_u32 s28, s28, {WO}")
    for ke in range(8):
        e(f"v_add_u32 v11, {4*ke}, v{vT2}"); e("v_xor_b32 v11, v11, v9"); e("v_lshlrev_b32 v11, 4, v11")
        e(f"v_lshl_add_u32 v11, v{vT}, 9, v11"); e("v_add_u32 v11, s28, v11")
        for t2 in range(2): e(f"ds_read_b128 v[{64+32*t2+4*ke}:{67+32*t2+4*ke}], v11 offset:{t2*8192}")
    e("s_branch F_bopd")
    e.label("F_bopB")
    e(f"v_lshrrev_b32 v{vT}, 4, v{vL}"); e(f"v_lshlrev_b32 v{vT}, 3, v{vT}")
    e(f"v_and_b32 v{vT2}, 15, v{vL}"); e(f"v_lshrrev_b32 v{vT3}, 2, v{vT2}")
    e(f"v_add_u32 v{vT}, v{vT}, v{vT3}"); e(f"v_lshlrev_b32 v{vT}, 7, v{vT}")
    e(f"v_and_b32 v{vT2}, 3, v{vT2}"); e(f"v_lshl_add_u32 v{vT}, v{vT2}, 3, v{vT}")
    e("s_lshl_b32 s28, s29, 6"); e(f"v_add_u32 v{vT}, s28, v{vT}"); e(f"v_add_u32 v{vT}, {WO}, v{vT}")
    for t2 in range(2):
        for ke in range(8):
            r = 64+32*t2+4*ke
            e(f"ds_read_b64_tr_b16 v[{r}:{r+1}], v{vT} offset:{ke*4096 + t2*32}")
            e(f"ds_read_b64_tr_b16 v[{r+2}:{r+3}], v{vT} offset:{ke*4096+512 + t2*32}")
        e("s_waitcnt lgkmcnt(0)")
    e.label("F_bopd")
    e(f"v_and_b32 v{vT}, 15, v{vL}"); e(f"v_lshrrev_b32 v{vT2}, 2, v{vT}"); e(f"v_and_b32 v{vT3}, 3, v{vT}")
    e(f"v_lshl_add_u32 v8, v{vT2}, 3, v{vT3}")
    e(f"v_lshlrev_b32 v9, 1, v{vT3}"); e(f"v_and_b32 v10, 1, v{vT2}"); e("v_lshl_or_b32 v9, v10, 3, v9")
    e(f"v_lshrrev_b32 v10, 4, v{vL}")
    for ke in range(8):
        e(f"v_add_u32 v11, {4*ke}, v10"); e("v_xor_b32 v11, v11, v9"); e("v_lshlrev_b32 v11, 4, v11")
        e(f"v_lshl_add_u32 v{52+ke}, v8, 9, v11")
    e(f"s_mul_i32 s28, s10, {16*W.HEAD_IMG}"); e(f"s_mul_i32 s30, s12, {W.HEAD_IMG}"); e("s_add_u32 s28, s28, s30")
    e("s_lshl_b32 s30, s13, 2"); e("s_lshl_b32 s31, s29, 1"); e("s_add_u32 s30, s30, s31")
    e(f"s_mul_i32 s30, s30, {W.TILE}"); e("s_add_u32 s28, s28, s30"); e(f"s_add_u32 s28, s28, {W.WIMG}")
    e(f"v_lshl_add_u32 v7, v{vL}, 4, s28")
    e("s_cmp_eq_u32 s10, 0"); e(f"s_cselect_b32 s30, {LOG2E_16}, 1.0")
    e("s_and_b32 s29, s3, 1")
    e("s_waitcnt lgkmcnt(0)")
    st(e,3)
    AR = 128; ACC = 192
    e("s_lshl_b32 s25, s29, 14")
    for ke in range(8): e(f"v_add_u32 v{52+ke}, s25, v{52+ke}")
    e("s_add_u32 s27, s27, s29")
    for m in range(7):
        e(f"s_waitcnt vmcnt({0 if m == 0 else 2})")
        e("s_barrier")
        if m in (1, 2, 6): st(e, {1:4, 2:5, 6:6}[m])
        dma = (dma_list(2*m+2) + dma_list(2*m+3)) if 2*m + 2 < 14 else []
        base = ((2*m) % NBUF)*16384
        for y in range(2):
            for ke in range(8): e(f"ds_read_b128 v[{AR+32*y+4*ke}:{AR+32*y+4*ke+3}], v{52+ke} offset:{base + y*2048}")
        di = 0
        for y in range(2):
            for ke in range(8):
                e(f"s_waitcnt lgkmcnt({15 - (8*y+ke)})")
                for t2 in range(2):
                    a = ACC + 8*t2 + 4*y
                    c = "0" if ke == 0 else f"v[{a}:{a+3}]"
                    e(f"v_mfma_f32_16x16x32_bf16 v[{a}:{a+3}], v[{AR+32*y+4*ke}:{AR+32*y+4*ke+3}], v[{64+32*t2+4*ke}:{67+32*t2+4*ke}], {c}")
                    if di < len(dma): e(dma[di][1] if isinstance(dma[di], tuple) else dma[di]); di += 1
        while di < len(dma): e(dma[di][1] if isinstance(dma[di], tuple) else dma[di]); di += 1
        e(f"s_add_u32 s31, s27, {2*m}"); e("s_cmp_ge_u32 s31, 14"); e("s_cselect_b32 s28, 14, 0"); e("s_sub_u32 s31, s31, s28")
        e("s_cmp_ge_u32 s31, 14"); e("s_cselect_b32 s28, 14, 0"); e("s_sub_u32 s31, s31, s28")
        e("s_lshl_b32 s31, s31, 10"); e("v_add_u32 v6, s31, v7"); e(f"v_add_u32 v12, {W.TILE}, v6")
        for k in range(8): e(f"v_pk_mul_f32 v[{ACC+2*k}:{ACC+2*k+1}], v[{ACC+2*k}:{ACC+2*k+1}], s[30:31] op_sel_hi:[1,0]") if False else None
        e("s_mov_b32 s31, s30")
        for k in range(8): e(f"v_pk_mul_f32 v[{ACC+2*k}:{ACC+2*k+1}], v[{ACC+2*k}:{ACC+2*k+1}], s[30:31]")
        for k in range(8): e(f"v_cvt_pk_bf16_f32 v{208+k}, v{ACC+2*k}, v{ACC+2*k+1}")
        e("global_store_dwordx4 v6, v[208:211], s[4:5]")
        e("global_store_dwordx4 v12, v[212:215], s[4:5]")
    if DG[0]:
        e("s_waitcnt vmcnt(0)"); st(e,7); e("s_waitcnt lgkmcnt(0)")
        e(f"s_cmp_lg_u32 s{sid}, 9"); e("s_cbranch_scc1 F_dge"); e("s_cmp_lg_u32 s3, 0"); e("s_cbranch_scc1 F_dge")
        load_ptr(e, 6, 'dbg'); e("s_waitcnt lgkmcnt(0)")
        for k in range(8):
            e(f"v_mov_b32 v2, s{64+2*k}"); e(f"v_mov_b32 v3, {4*k}"); e("global_store_dword v3, v2, s[6:7]")
        e.label("F_dge")
    e("s_endpgm")
```

```python
from common import *
import struct
N_WG = 256
FOPT = {}
LDS = 4*16384 + 32768
LOG2E_16 = 0x3db8aa3b
def f2u(x): return struct.unpack("<I", struct.pack("<f", x))[0]
sWS = 4
vL = 1

def sincos(e, vang, vcos, vsin):
    e(f"v_fract_f32 v{vang}, v{vang}")
    e(f"v_cos_f32 v{vcos}, v{vang}")
    e(f"v_sin_f32 v{vsin}, v{vang}")
    e("s_nop 0")

def side_tables(e):
    inv448 = f2u(1.0/448)
    NF, NG = 15*28*64, 2*8*15*64
    e(f"v_cmp_gt_u32 vcc, {NF}, v2")
    e("s_and_saveexec_b64 s[12:13], vcc")
    e("s_cbranch_execz P_F_done")
    e("v_and_b32 v4, 63, v2"); e("v_lshrrev_b32 v5, 6, v2")
    e(f"s_mov_b32 s14, {(2**32 + 27)//28}")
    e("v_mul_hi_u32 v6, v5, s14"); e("v_mul_u32_u24 v7, 28, v6"); e("v_sub_u32 v7, v5, v7")
    e("v_and_b32 v8, 31, v4"); e("v_lshrrev_b32 v9, 5, v4")
    e("v_lshl_add_u32 v8, v6, 5, v8")
    e("v_lshlrev_b32 v9, 3, v9"); e("v_lshl_add_u32 v9, v7, 4, v9")
    e("v_mov_b32 v17, 450"); e("v_mov_b32 v18, 0")
    e("v_cmp_le_u32 vcc, 225, v8"); e("v_subrev_u32 v11, 225, v8"); e("s_nop 0")
    e("v_cndmask_b32 v11, v8, v11, vcc")
    e("v_cmp_le_u32 s[16:17], v17, v8")
    for j in range(8):
        e(f"v_add_u32 v10, {j}, v9")
        e("v_mul_u32_u24 v12, v11, v10"); e("v_cvt_f32_u32 v12, v12"); e(f"v_mul_f32 v12, {hex(inv448)}, v12")
        sincos(e, 12, 13, 14)
        e("v_sub_f32 v14, 0, v14")
        e("v_cndmask_b32 v13, v13, v14, vcc")
        e(f"v_cndmask_b32 v{20+j}, v13, v18, s[16:17]")
    for k in range(4): e(f"v_cvt_pk_bf16_f32 v{28+k}, v{20+2*k}, v{21+2*k}")
    e("v_lshlrev_b32 v4, 4, v2"); e(f"v_add_u32 v4, {W.FIMG}, v4")
    e("global_store_dwordx4 v4, v[28:31], s[4:5]")
    e.label("P_F_done"); e("s_mov_b64 exec, s[12:13]")
    e(f"v_subrev_u32 v3, {NF}, v2")
    e(f"v_cmp_gt_u32 vcc, {NG}, v3")
    e("s_and_saveexec_b64 s[12:13], vcc")
    e("s_cbranch_execz P_G_done")
    e("v_and_b32 v4, 63, v3"); e("v_lshrrev_b32 v5, 6, v3")
    e(f"s_mov_b32 s14, {(2**32 + 14)//15}")
    e("v_mul_hi_u32 v6, v5, s14"); e("v_mul_u32_u24 v7, 15, v6"); e("v_sub_u32 v7, v5, v7")
    e("v_lshrrev_b32 v15, 3, v6"); e("v_and_b32 v6, 7, v6")
    e("v_and_b32 v8, 31, v4"); e("v_lshrrev_b32 v9, 5, v4")
    e("v_lshl_add_u32 v8, v6, 5, v8")
    e("v_lshlrev_b32 v9, 3, v9"); e("v_lshl_add_u32 v9, v7, 4, v9")
    e("v_mov_b32 v16, 224"); e("v_mov_b32 v18, 0")
    e(f"v_mov_b32 v19, {hex(f2u(2.0/448))}"); e(f"v_mov_b32 v17, {hex(f2u(1.0/448))}")
    e("v_cmp_eq_u32 s[34:35], 1, v15")
    e("v_cmp_lt_u32 s[36:37], v16, v8")
    for j in range(8):
        e(f"v_add_u32 v10, {j}, v9")
        e("v_mul_u32_u24 v12, v10, v8"); e("v_cvt_f32_u32 v12, v12"); e(f"v_mul_f32 v12, {hex(inv448)}, v12")
        sincos(e, 12, 13, 14)
        e("v_cndmask_b32 v13, v13, v14, s[34:35]")
        e("v_cmp_eq_u32 vcc, 0, v10"); e("v_cmp_eq_u32 s[16:17], v16, v10"); e("s_or_b64 vcc, vcc, s[16:17]"); e("s_nop 1")
        e("v_cndmask_b32 v14, v19, v17, vcc"); e("v_mul_f32 v13, v13, v14")
        e("v_cmp_lt_u32 vcc, v16, v10"); e("s_or_b64 vcc, vcc, s[36:37]"); e("s_nop 1")
        e(f"v_cndmask_b32 v{20+j}, v13, v18, vcc")
    for k in range(4): e(f"v_cvt_pk_bf16_f32 v{28+k}, v{20+2*k}, v{21+2*k}")
    e("v_lshlrev_b32 v4, 4, v3"); e(f"v_add_u32 v4, {W.GIMG}, v4")
    e("global_store_dwordx4 v4, v[28:31], s[4:5]")
    e.label("P_G_done"); e("s_mov_b64 exec, s[12:13]")

def side_small(e):
    o32, o64, oT1, oT2 = 53248, 53760, 55296, 56320
    for name, lo, nch, base, n in (("C32", o32, 384, W.CF32, 32), ("C64", o64, 1536, W.CF64, 64)):
        e(f"v_subrev_u32 v3, {lo}, v2")
        e(f"v_cmp_gt_u32 vcc, {nch}, v3")
        e("s_and_saveexec_b64 s[12:13], vcc")
        e(f"s_cbranch_execz P_{name}_done")
        e("v_and_b32 v4, 63, v3")
        e("v_lshrrev_b32 v5, 6, v3")
        e("v_and_b32 v8, 31, v4")
        e("v_lshrrev_b32 v9, 5, v4")
        if n == 32:
            e("v_lshrrev_b32 v6, 1, v5"); e("v_and_b32 v7, 1, v5"); e("v_lshlrev_b32 v7, 4, v7")
        else:
            e("v_lshrrev_b32 v6, 3, v5"); e("v_and_b32 v7, 7, v5"); e("v_lshrrev_b32 v10, 2, v7")
            e("v_lshl_add_u32 v8, v10, 5, v8"); e("v_and_b32 v7, 3, v7"); e("v_lshlrev_b32 v7, 4, v7")
        e("v_lshl_add_u32 v7, v9, 2, v7")
        for j in range(8):
            e(f"v_add_u32 v10, {8*(j>>2)+(j&3)}, v7")
            e("v_mul_u32_u24 v12, v10, v8")
            e("v_cvt_f32_u32 v12, v12")
            e(f"v_mul_f32 v12, {hex(f2u(1.0/n))}, v12")
            sincos(e, 12, 13, 14)
            e("v_sub_f32 v15, 0, v14")
            e("v_cmp_eq_u32 vcc, 1, v6")
            e("s_nop 1")
            e("v_cndmask_b32 v13, v13, v15, vcc")
            e("v_cmp_eq_u32 vcc, 2, v6")
            e("s_nop 1")
            e(f"v_cndmask_b32 v{20+j}, v13, v14, vcc")
        for k in range(4): e(f"v_cvt_pk_bf16_f32 v{28+k}, v{20+2*k}, v{21+2*k}")
        e("v_lshlrev_b32 v4, 4, v3")
        e(f"v_add_u32 v4, {base}, v4")
        e("global_store_dwordx4 v4, v[28:31], s[4:5]")
        e.label(f"P_{name}_done")
        e("s_mov_b64 exec, s[12:13]")
    for name, lo, base in (("T1", oT1, W.TW1), ("T2", oT2, W.TW2)):
        e(f"v_subrev_u32 v3, {lo}, v2")
        e(f"v_cmp_gt_u32 vcc, 1024, v3")
        e("s_and_saveexec_b64 s[12:13], vcc")
        e(f"s_cbranch_execz P_{name}_done")
        e("v_and_b32 v4, 63, v3")
        e("v_lshrrev_b32 v5, 6, v3")
        e("v_lshrrev_b32 v6, 3, v5")
        e("v_and_b32 v7, 3, v5")
        e("v_lshrrev_b32 v10, 2, v5")
        e("v_and_b32 v10, 1, v10")
        e("v_and_b32 v8, 31, v4")
        e("v_lshrrev_b32 v9, 5, v4")
        e("v_lshlrev_b32 v7, 3, v7")
        e("v_lshl_add_u32 v7, v9, 2, v7")
        if name == "T1": e("v_lshl_add_u32 v7, v10, 5, v7")
        else: e("v_lshl_add_u32 v8, v10, 5, v8")
        for rr in range(4):
            e(f"v_add_u32 v11, {rr}, v7")
            e("v_mul_u32_u24 v12, v11, v8")
            e("v_cvt_f32_u32 v12, v12")
            e(f"v_mul_f32 v12, {hex(f2u(1.0/2048))}, v12")
            sincos(e, 12, 13, 14)
            if name == "T1": e("v_sub_f32 v14, 0, v14")
            e("v_cmp_eq_u32 vcc, 1, v6")
            e("s_nop 1")
            e(f"v_cndmask_b32 v{20+rr}, v13, v14, vcc")
            if name == "T2": e(f"v_mul_f32 v{20+rr}, {hex(f2u(1.0/2048))}, v{20+rr}")
        e("v_lshlrev_b32 v4, 4, v3")
        e(f"v_add_u32 v4, {base}, v4")
        e("global_store_dwordx4 v4, v[20:23], s[4:5]")
        e.label(f"P_{name}_done")
        e("s_mov_b64 exec, s[12:13]")

def side_wt_issue(e):
    e("s_cmp_ge_u32 s2, 232")
    e("s_cbranch_scc1 P_wt_skip1")
    e("s_cmp_lg_u32 s3, 0")
    e("s_cbranch_scc1 P_wt_skip1")
    load_ptr(e, 40, 'wr'); load_ptr(e, 42, 'wi')
    e("s_lshr_b32 s11, s2, 3")
    e("s_lshl_b32 s11, s11, 3")
    e("s_min_u32 s44, s11, 217")
    e("s_and_b32 s45, s2, 7")
    e("v_and_b32 v2, 31, v1")
    e("v_lshrrev_b32 v3, 5, v1")
    e("v_lshlrev_b32 v3, 7, v3")
    e("v_add_u32 v2, v2, v3")
    e("s_lshl_b32 s11, s45, 8")
    e("v_add_u32 v2, s11, v2")
    e("v_mul_u32_u24 v2, 450, v2")
    e("s_lshl_b32 s11, s44, 1")
    e("v_add_u32 v2, s11, v2")
    e("s_waitcnt lgkmcnt(0)")
    for rr in range(4):
        e(f"v_add_u32 v5, {32*rr*450}, v2")
        e(f"global_load_dwordx4 v[{128+4*rr}:{131+4*rr}], v5, s[40:41]")
        e(f"global_load_dwordx4 v[{144+4*rr}:{147+4*rr}], v5, s[42:43]")
    e.label("P_wt_skip1")
def side_wt_finish(e):
    e("s_cmp_ge_u32 s2, 232")
    e("s_cbranch_scc1 P_wt_skip2")
    e("s_cmp_lg_u32 s3, 0")
    e("s_cbranch_scc1 P_wt_skip2")
    e("s_mul_i32 s11, s44, 8192")
    e("s_lshl_b32 s14, s45, 10")
    e("s_add_u32 s11, s11, s14")
    e(f"s_add_u32 s11, s11, {W.WT}")
    e("v_lshl_add_u32 v4, v1, 4, s11")
    e("s_mov_b32 s46, 0x05040100"); e("s_mov_b32 s47, 0x07060302")
    e("s_waitcnt vmcnt(0)")
    for c in range(8):
        for rr in range(4):
            e(f"v_perm_b32 v{160+rr}, v{144+4*rr+(c>>1)}, v{128+4*rr+(c>>1)}, s{46+(c&1)}")
        e(f"global_store_dwordx4 v4, v[160:163], s[4:5]")
        e("v_add_u32 v4, 8192, v4")
        e("s_nop 0")
    e.label("P_wt_skip2")

def side_fill(e):
    e("s_lshl_b32 s11, s2, 8")
    e("v_add_u32 v2, s11, v0")
    NT = N_WG*256
    e("v_mov_b32 v4, -1"); e("v_mov_b32 v5, -1"); e("v_mov_b32 v6, -1"); e("v_mov_b32 v7, -1")
    regions = [(W.MEMB[0]+W.MEM_STRIDE, 64*W.MEM_STRIDE), (W.MEMB[1]+W.MEM_STRIDE, 64*W.MEM_STRIDE),
               (W.PB[0], 65*W.P_STRIDE), (W.PB[1], 65*W.P_STRIDE),
               (W.MEMX[0]+W.MEMX_STRIDE, 64*W.MEMX_STRIDE), (W.MEMX[1]+W.MEMX_STRIDE, 64*W.MEMX_STRIDE),
               (W.MEMXI[0]+W.MEMX_STRIDE, 64*W.MEMX_STRIDE), (W.MEMXI[1]+W.MEMX_STRIDE, 64*W.MEMX_STRIDE)]
    for ri,(base, n) in enumerate(regions):
        nch = n//16
        assert nch <= NT
        e(f"v_cmp_gt_u32 vcc, {nch}, v2")
        e("s_and_saveexec_b64 s[12:13], vcc")
        e(f"s_cbranch_execz P_fill{ri}_d")
        e("v_lshlrev_b32 v8, 4, v2")
        e(f"v_add_u32 v8, {base}, v8")
        e("global_store_dwordx4 v8, v[4:7], s[4:5]")
        e.label(f"P_fill{ri}_d")
        e("s_mov_b64 exec, s[12:13]")
    e("v_mov_b32 v4, 0"); e("v_mov_b32 v5, 0"); e("v_mov_b32 v6, 0"); e("v_mov_b32 v7, 0")
    e("v_cmp_gt_u32 vcc, 4096, v2")
    e("s_and_saveexec_b64 s[12:13], vcc")
    e("s_cbranch_execz P_cnt_d")
    e("v_lshlrev_b32 v8, 4, v2")
    e(f"v_add_u32 v8, {W.CNT}, v8")
    e("global_store_dwordx4 v8, v[4:7], s[4:5]")
    e.label("P_cnt_d")
    e("s_mov_b64 exec, s[12:13]")

def side_mem0(e):
    e("s_cmp_lg_u32 s2, 255")
    e("s_cbranch_scc1 P_m0_skip")
    load_ptr(e, 40, 'mem0')
    e("s_waitcnt lgkmcnt(0)")
    e("v_lshrrev_b32 v8, 2, v0")
    e("v_and_b32 v9, 3, v0")
    e("v_lshrrev_b32 v10, 4, v8")
    e("v_lshrrev_b32 v11, 3, v8")
    e("v_and_b32 v11, 1, v11")
    e("v_and_b32 v12, 7, v8")
    e("v_lshlrev_b32 v10, 4, v10")
    e("v_lshl_add_u32 v10, v9, 2, v10")
    e("v_lshl_add_u32 v10, v11, 1, v10")
    e("v_mul_u32_u24 v12, 448, v12")
    e("v_add_u32 v10, v10, v12")
    e("v_lshlrev_b32 v10, 1, v10")
    for it in range(7): e(f"global_load_dword v{20+it}, v10, s[40:41] offset:{128*it}")
    e("v_lshlrev_b32 v3, 2, v0")
    e("s_waitcnt vmcnt(0)")
    for it in range(7):
        for L in range(2):
            e(f"v_add_u32 v14, {W.MEMB[L] + 1024*it}, v3")
            e(f"global_store_dword v14, v{20+it}, s[4:5]")
            e(f"v_add_u32 v14, {W.MEMXI[L] + 1024*it}, v3")
            e(f"global_store_dword v14, v{20+it}, s[4:5]")
    e("v_lshlrev_b32 v3, 4, v0")
    e("v_mov_b32 v4, 0"); e("v_mov_b32 v5, 0"); e("v_mov_b32 v6, 0"); e("v_mov_b32 v7, 0")
    e("v_and_b32 v15, 15, v0"); e("v_cmp_le_u32 vcc, 14, v15"); e("v_mov_b32 v16, -1"); e("s_nop 0")
    for k in range(4): e(f"v_cndmask_b32 v{4+k}, v{4+k}, v16, vcc")
    for L in range(2):
        for half in range(2):
            e(f"v_add_u32 v14, {W.MEMB[L] + 8192 + half*4096}, v3")
            e("global_store_dwordx4 v14, v[4:7], s[4:5]")
    for it in range(2):
        e(f"v_add_u32 v3, {256*it}, v0")
        e("v_cmp_gt_u32 vcc, 448, v3")
        e("s_and_saveexec_b64 s[12:13], vcc")
        e(f"s_cbranch_execz P_mx{it}")
        e("v_lshlrev_b32 v8, 4, v3")
        e("global_load_dwordx4 v[16:19], v8, s[40:41]")
        e("s_waitcnt vmcnt(0)")
        for L in range(2):
            e(f"v_add_u32 v14, {W.MEMX[L]}, v8")
            e("global_store_dwordx4 v14, v[16:19], s[4:5]")
        e.label(f"P_mx{it}")
        e("s_mov_b64 exec, s[12:13]")
    e.label("P_m0_skip")

def fold_setup(e):
    e("s_and_b32 s14, s2, 7")
    e("s_lshr_b32 s15, s2, 3")
    e("s_mul_hi_u32 s16, s15, 0x24924925")
    e("s_mul_i32 s52, s16, 7")
    e("s_sub_u32 s52, s15, s52")
    e("s_lshl_b32 s14, s14, 2")
    e("s_add_u32 s14, s14, s16")
    e("s_lshr_b32 s50, s14, 4")
    e("s_and_b32 s51, s14, 15")
    e("s_cmp_eq_u32 s50, 0")
    e(f"s_cselect_b32 s14, {KA['wq']}, {KA['wv']}")
    e(f"s_cselect_b32 s15, {KA['wk']}, {KA['wo']}")
    e("s_add_u32 s16, s0, s14"); e("s_addc_u32 s17, s1, 0")
    e("s_add_u32 s18, s0, s15"); e("s_addc_u32 s19, s1, 0")
    e("s_load_dwordx2 s[6:7], s[16:17], 0")
    e("s_load_dwordx2 s[8:9], s[18:19], 0")
    vT, vT2, vT3 = 3, 4, 5
    e("s_lshl_b32 s24, s3, 3")
    for k in range(4):
        e(f"v_lshrrev_b32 v{vT}, 5, v{vL}")
        e(f"v_add_u32 v{vT}, s24, v{vT}")
        e(f"v_add_u32 v{vT}, {2*k}, v{vT}")
        e(f"v_and_b32 v{vT2}, 3, v{vT}")
        e(f"v_lshlrev_b32 v{vT2}, 1, v{vT2}")
        e(f"v_lshrrev_b32 v{vT3}, 3, v{vT}")
        e(f"v_and_b32 v{vT3}, 1, v{vT3}")
        e(f"v_lshl_or_b32 v{vT2}, v{vT3}, 3, v{vT2}")
        e(f"v_and_b32 v{vT3}, 31, v{vL}")
        e(f"v_xor_b32 v{vT2}, v{vT2}, v{vT3}")
        e(f"v_lshlrev_b32 v{vT2}, 4, v{vT2}")
        e(f"v_lshl_add_u32 v{48+k}, v{vT}, 13, v{vT2}")
    e("s_lshl_b32 s24, s3, 12")
    for k in range(4): e(f"s_add_u32 s{20+k}, s24, {k*1024}")
    e("s_waitcnt lgkmcnt(0)")
    e("s_lshl_b32 s14, s51, 9")
    if FOPT.get('samehead'): e("s_mov_b32 s14, 0")
    e("s_add_u32 s6, s6, s14"); e("s_addc_u32 s7, s7, 0")
    e("s_lshl_b32 s53, s52, 1")
    e("s_mov_b32 s55, s53")
def dma_block(e, n):
    buf = n % 4
    e("s_lshl_b32 s54, s53, 18")
    for k in range(4):
        e(f"s_add_u32 m0, s{20+k}, {buf*16384}")
        e(f"v_add_u32 v2, s54, v{48+k}")
        e.vmem(f"global_load_lds_dwordx4 v2, s[6:7]", f"d{n}")
    e("s_add_u32 s53, s53, 1")
    e("s_cmp_eq_u32 s53, 14")
    e("s_cselect_b32 s53, 0, s53")

WO = 4*16384
def fold_bop_issue(e):
    vT, vT2 = 3, 4
    e("s_lshr_b32 s27, s3, 1"); e("s_lshl_b32 s27, s27, 1")
    e("s_lshl_b32 s26, s52, 2"); e("s_add_u32 s26, s26, s27")
    e("s_cmp_eq_u32 s50, 0")
    e("s_cbranch_scc0 P_foldB_iss")
    e(f"v_and_b32 v{vT}, 15, v{vL}"); e("s_lshl_b32 s27, s26, 4"); e(f"v_add_u32 v{vT}, s27, v{vT}")
    e(f"v_lshlrev_b32 v{vT}, 13, v{vT}")
    e(f"v_lshrrev_b32 v{vT2}, 4, v{vL}"); e(f"v_lshl_add_u32 v{vT}, v{vT2}, 4, v{vT}")
    e("s_lshl_b32 s27, s51, 9"); e(f"v_add_u32 v{vT}, s27, v{vT}")
    for t2 in range(2):
        for ke in range(8): e(f"global_load_dwordx4 v[{64+32*t2+4*ke}:{67+32*t2+4*ke}], v{vT}, s[8:9] offset:{64*ke}")
        if t2 == 0: e(f"v_add_u32 v{vT}, {16*8192}, v{vT}")
    e("s_branch P_fold_iss_d")
    e.label("P_foldB_iss")
    e("s_mul_i32 s27, s51, 229376"); e("s_lshl_b32 s28, s52, 7"); e("s_add_u32 s27, s27, s28")
    e(f"v_lshrrev_b32 v{vT}, 3, v{vL}"); e(f"v_mul_u32_u24 v{vT}, 896, v{vT}")
    e(f"v_and_b32 v{vT2}, 7, v{vL}"); e(f"v_lshl_add_u32 v{vT}, v{vT2}, 4, v{vT}")
    e(f"v_add_u32 v{vT}, s27, v{vT}")
    e("s_mul_i32 s28, s3, 57344"); e(f"v_add_u32 v{vT}, s28, v{vT}")
    e("s_lshl_b32 s29, s3, 13"); e(f"s_add_u32 s29, s29, {WO}")
    for k in range(8):
        e(f"s_add_u32 m0, s29, {k*1024}"); e("s_nop 0")
        e(f"global_load_lds_dwordx4 v{vT}, s[8:9]")
        e(f"v_add_u32 v{vT}, {8*896}, v{vT}")
    e.label("P_fold_iss_d")

def fold_main(e):
    vT, vT2, vT3, vOA = 3, 4, 5, 7
    e("s_barrier")
    e("s_cmp_eq_u32 s50, 0")
    e("s_cbranch_scc1 P_fold_go")
    e(f"v_lshrrev_b32 v{vT}, 4, v{vL}"); e(f"v_lshlrev_b32 v{vT}, 3, v{vT}")
    e(f"v_and_b32 v{vT2}, 15, v{vL}"); e(f"v_lshrrev_b32 v{vT3}, 2, v{vT2}")
    e(f"v_add_u32 v{vT}, v{vT}, v{vT3}"); e(f"v_lshlrev_b32 v{vT}, 7, v{vT}")
    e(f"v_and_b32 v{vT2}, 3, v{vT2}"); e(f"v_lshl_add_u32 v{vT}, v{vT2}, 3, v{vT}")
    e("s_lshr_b32 s28, s3, 1"); e("s_lshl_b32 s28, s28, 6")
    e(f"v_add_u32 v{vT}, s28, v{vT}"); e(f"v_add_u32 v{vT}, {WO}, v{vT}")
    for t2 in range(2):
        for ke in range(8):
            r = 64+32*t2+4*ke
            e(f"ds_read_b64_tr_b16 v[{r}:{r+1}], v{vT} offset:{ke*4096 + t2*32}")
            e(f"ds_read_b64_tr_b16 v[{r+2}:{r+3}], v{vT} offset:{ke*4096+512 + t2*32}")
        e("s_waitcnt lgkmcnt(0)")
    e.label("P_fold_go")
    e(f"v_and_b32 v{vT}, 15, v{vL}"); e(f"v_lshrrev_b32 v{vT2}, 2, v{vT}"); e(f"v_and_b32 v{vT3}, 3, v{vT}")
    e(f"v_lshl_add_u32 v8, v{vT2}, 3, v{vT3}")
    e(f"v_lshlrev_b32 v9, 1, v{vT3}"); e(f"v_and_b32 v10, 1, v{vT2}"); e(f"v_lshl_or_b32 v9, v10, 3, v9")
    e(f"v_lshrrev_b32 v10, 4, v{vL}")
    e("s_and_b32 s27, s3, 1"); e("s_lshl_b32 s28, s27, 11")
    for ke in range(8):
        e(f"v_add_u32 v11, {4*ke}, v10"); e(f"v_xor_b32 v11, v11, v9"); e(f"v_lshlrev_b32 v11, 4, v11")
        e(f"v_lshl_add_u32 v{52+ke}, v8, 9, v11"); e(f"v_add_u32 v{52+ke}, s28, v{52+ke}")
    e(f"s_mul_i32 s28, s50, {16*W.HEAD_IMG}"); e(f"s_mul_i32 s29, s51, {W.HEAD_IMG}"); e("s_add_u32 s28, s28, s29")
    e(f"s_mul_i32 s29, s26, {W.TILE}"); e("s_add_u32 s28, s28, s29"); e(f"s_add_u32 s28, s28, {W.WIMG}")
    e("s_lshl_b32 s27, s27, 3"); e("s_add_u32 s28, s28, s27")
    e(f"v_lshl_add_u32 v{vOA}, v{vL}, 4, s28")
    e("s_cmp_eq_u32 s50, 0")
    e(f"s_cselect_b32 s30, {LOG2E_16}, 1.0")
    e.vm = []
    AR = [128, 160]
    ACC = 192
    def rd(n, ke): return f"ds_read_b128 v[{AR[n%2]+4*ke}:{AR[n%2]+4*ke+3}], v{52+ke} offset:{(n % 4)*16384}"
    for ke in range(8): e(rd(0, ke))
    for n in range(14):
        if n + 1 < 14 and n + 1 >= 3 and not FOPT.get('nodma'): e.wait_vm(f"d{n+1}")
        e("s_barrier")
        side = []
        if n + 1 < 14: side += [rd(n+1, ke) for ke in range(8)]
        dma = []
        if n + 3 < 14 and not FOPT.get('nodma'):
            buf = (n+3) % 4
            dma.append("s_lshl_b32 s54, s53, 18")
            for k in range(4):
                dma += [f"s_add_u32 m0, s{20+k}, {buf*16384}", f"v_add_u32 v2, s54, v{48+k}", ("vm", f"global_load_lds_dwordx4 v2, s[6:7]", f"d{n+3}")]
            dma += ["s_add_u32 s53, s53, 1", "s_cmp_eq_u32 s53, 14", "s_cselect_b32 s53, 0, s53"]
        e(f"s_waitcnt lgkmcnt(0)")
        si = di = 0
        for t2 in range(2):
            for ke in range(8):
                a = ACC + 4*t2
                c = "0" if ke == 0 else f"v[{a}:{a+3}]"
                e(f"v_mfma_f32_16x16x32_bf16 v[{a}:{a+3}], v[{AR[n%2]+4*ke}:{AR[n%2]+4*ke+3}], v[{64+32*t2+4*ke}:{67+32*t2+4*ke}], {c}")
                if si < len(side): e(side[si]); si += 1
                elif di < len(dma):
                    for _ in range(2):
                        if di < len(dma):
                            x = dma[di]; di += 1
                            if isinstance(x, tuple): e.vmem(x[1], x[2])
                            else: e(x)
        while di < len(dma):
            x = dma[di]; di += 1
            if isinstance(x, tuple): e.vmem(x[1], x[2])
            else: e(x)
        e("s_lshl_b32 s54, s55, 10"); e("v_add_u32 v6, s54, v7"); e(f"v_add_u32 v12, {W.TILE}, v6")
        e("s_add_u32 s55, s55, 1"); e("s_cmp_eq_u32 s55, 14"); e("s_cselect_b32 s55, 0, s55")
        e.nop(2)
        for k in range(4): e(f"v_pk_mul_f32 v[{ACC+2*k}:{ACC+2*k+1}], v[{ACC+2*k}:{ACC+2*k+1}], s[30:31] op_sel_hi:[1,0]")
        for k in range(4): e(f"v_cvt_pk_bf16_f32 v{200+k}, v{ACC+2*k}, v{ACC+2*k+1}")
        if not FOPT.get('nostore'):
            e.vmem("global_store_dwordx2 v6, v[200:201], s[4:5]", 'st')
            e.vmem("global_store_dwordx2 v12, v[202:203], s[4:5]", 'st')

def gen(e, name="prep_kernel", skip=()):
    kernel_head(e, name)
    e(f"s_cmp_ge_u32 s2, {N_WG}")
    e("s_cbranch_scc1 P_end")
    load_ptr(e, 4, 'ws')
    lane_wave(e, 1, 3, 2)
    e("s_waitcnt lgkmcnt(0)")
    if 'nofold' not in skip:
        e("s_cmp_ge_u32 s2, 224")
        e("s_cbranch_scc1 P_side")
        fold_setup(e)
        for n in range(3): dma_block(e, n)
        fold_bop_issue(e)
    e.label("P_side")
    if 'wt' not in skip: side_wt_issue(e)
    if 'fill' not in skip: side_fill(e)
    else:
        e("s_lshl_b32 s11, s2, 8"); e("v_add_u32 v2, s11, v0")
    if 'tab' not in skip:
        side_tables(e)
        side_small(e)
    side_mem0(e)
    if 'wt' not in skip: side_wt_finish(e)
    if 'fold' in skip or 'nofold' in skip: e("s_branch P_end")
    if 'nofold' not in skip:
        e("s_cmp_ge_u32 s2, 224")
        e("s_cbranch_scc1 P_end")
        e("s_waitcnt vmcnt(0)")
        fold_main(e)
    e.label("P_end")
    e("s_endpgm")
    e.raw(kernel_desc(name, 208 if 'nofold' not in skip else 168, 208 if 'nofold' not in skip else 168))
```

```python
from common import *
import k_fft
NSTEP = 63
MEM_STRIDE, P_STRIDE, U_SEG, TILE, HEAD_IMG = W.MEM_STRIDE, W.P_STRIDE, W.U_SEG, W.TILE, W.HEAD_IMG
XSEG = 28672
C_TICK, C_WIN, C_SLOT, C_XALL, C_URDY, C_RDY2, C_XRDY = 0, 1024, 1152, 1280, 2048, 4096, 16384
sWS=4; sW=6; sXP=8; sUP=10; sMEM=12; sP=14; sCN=16; sMX=18; sZM=20
sROLE=22; sWAVE=23; sSTEP=24; sTMO=25; sT0=26; sT1=27; sT2=28; sTGT=29
sM56=30; sEVEN=32; sOUT=34; sRES=36; sPX=38; sMXI=52; sPREV=54; sM57=56; sLAY=60; sXCC=40; sSEG=41; sBUF=42; sH=43; sJ=44; sT3=45; sT4=46; sSV=48
vLANE=1; vL16=2; vIDX=3
FAIL="b_fail"
DIAG=[False]
OPT={}
sDBG=70
def dstamp(e, slot, role, regs, sreg=None, step=None):
    if not DIAG[0]: return
    dstamp.n += 1; lab = f".Lds{dstamp.n}"
    e(f"s_cmp_lg_u32 s{sROLE}, {role}"); e(f"s_cbranch_scc1 {lab}")
    if step is not None:
        e(f"s_cmp_lg_u32 s{sSTEP}, {step}"); e(f"s_cbranch_scc1 {lab}")
    if sreg is None:
        e("s_memrealtime s[72:73]"); e("s_waitcnt lgkmcnt(0)"); sreg = 72
    e(f"s_mov_b64 s[74:75], exec"); e("s_mov_b64 exec, 1")
    e(f"v_mov_b32 v{regs[0]}, s{sreg}"); e(f"v_mov_b32 v{regs[1]}, {slot*4}")
    e(f"global_store_dword v{regs[1]}, v{regs[0]}, s[{sDBG}:{sDBG+1}]")
    e("s_waitcnt vmcnt(0)")
    e("s_mov_b64 exec, s[74:75]")
    e.label(lab)
dstamp.n = 0
def wstamp(e, base, regs):
    if not DIAG[0]: return
    e("s_memrealtime s[72:73]"); e("s_waitcnt lgkmcnt(0)")
    e(f"s_lshl_b32 s73, s{sROLE}, 2"); e(f"s_add_u32 s73, s73, {W.TRACE + 32768 + base*1024}")
    e("s_mov_b64 s[74:75], exec"); e("s_mov_b64 exec, 1")
    e(f"v_mov_b32 v{regs[0]}, s72"); e(f"v_mov_b32 v{regs[1]}, s73")
    e(f"global_store_dword v{regs[1]}, v{regs[0]}, s[{sWS}:{sWS+1}]")
    e("s_waitcnt vmcnt(0)"); e("s_mov_b64 exec, s[74:75]")
def tr(e, k):
    st = OPT.get('trace')
    if st is None: return
    tr.n += 1
    e(f"s_cmp_lg_u32 s{sSTEP}, {st}"); e(f"s_cbranch_scc1 .Ltr{tr.n}")
    e(f"s_memtime s[{78+2*k}:{79+2*k}]")
    e.label(f".Ltr{tr.n}")
tr.n = 0
def tr_init(e):
    if OPT.get('trace') is None: return
    for k in range(78, 94): e(f"s_mov_b32 s{k}, 0")
    e("s_mov_b32 s94, 0"); e("s_mov_b32 s95, 0")
    e("s_memrealtime s[96:97]"); e("s_memtime s[98:99]"); e("s_waitcnt lgkmcnt(0)")
    for k in range(8):
        e("s_mov_b32 s100, s96"); e("s_mov_b32 s101, s98")
        e("s_memrealtime s[96:97]"); e("s_memtime s[98:99]"); e("s_waitcnt lgkmcnt(0)")
        e("s_cmp_lg_u32 s96, s100"); e("s_cselect_b32 s100, 1, 0"); e("s_cmp_eq_u32 s94, 0"); e("s_cselect_b32 s100, s100, 0")
        e("s_cmp_lg_u32 s100, 0"); e("s_cselect_b32 s94, s96, s94"); e("s_cselect_b32 s95, s98, s95")
def tr_dump(e, regs):
    if OPT.get('trace') is None: return
    a, d = regs
    e("s_waitcnt vmcnt(0) lgkmcnt(0)")
    e(f"s_lshl_b32 s{sT0}, s{sROLE}, 2"); e(f"s_add_u32 s{sT0}, s{sT0}, s{sWAVE}"); e(f"s_lshl_b32 s{sT0}, s{sT0}, 6")
    e(f"s_add_u32 s{sT0}, s{sT0}, {W.TRACE}")
    e("s_mov_b64 exec, 1")
    for k in range(10):
        src = 78+2*k if k < 8 else (94 if k == 8 else 95)
        e(f"v_mov_b32 v{a}, s{sT0}"); e(f"v_mov_b32 v{d}, s{src}")
        e(f"global_store_dword v{a}, v{d}, s[{sWS}:{sWS+1}] offset:{4*k}")
    e("s_waitcnt vmcnt(0)")
RT_TILE=768
S_WT=0; S_RT=3*TILE; S_FLAG=S_RT+28*RT_TILE
V_LMEM=0; V_RED=8192; V_WT=16384
B_LDS = V_WT + 8*TILE
def blocks_regs(na, vstart=None, nv=0): return [('a', 8*i) for i in range(na)] + [('v', vstart+8*i) for i in range(nv)]
def tmo(e):
    e(f"s_sub_u32 s{sTMO}, s{sTMO}, 1"); e(f"s_cbranch_scc1 {FAIL}")
def zero4(a): return [f"v_mov_b64 v[{a}:{a+1}], 0", f"v_mov_b64 v[{a+2}:{a+3}], 0"]
def sentinel_tree(regs, t):
    out = []; rs = list(regs)
    out.append(f"v_max3_u32 v{t}, v{rs[0]}, v{rs[1]}, v{rs[2]}"); rs = rs[3:]
    while len(rs) >= 2:
        out.append(f"v_max3_u32 v{t}, v{t}, v{rs[0]}, v{rs[1]}"); rs = rs[2:]
    if rs: out.append(f"v_max_u32 v{t}, v{t}, v{rs[0]}")
    out.append(f"v_cmp_eq_u32 vcc, -1, v{t}")
    return out
def bell_wait(e, vaddr, sbase, regs, lab, nl):
    d = len(regs)
    ld = lambda r: e(f"global_load_dword v{r}, v{vaddr}, s[{sbase}:{sbase+1}] sc1")
    e(f"s_mov_b64 exec, {hex((1<<nl)-1) if nl <= 16 else (f's[{sM56}:{sM56+1}]' if nl == 56 else f's[{sM57}:{sM57+1}]')}")
    for r in regs[:-1]:
        ld(r); e.nop(OPT.get('stag', 64) // d)
    e.label(lab)
    for k in range(d):
        ld(regs[(k-1) % d])
        e(f"s_waitcnt vmcnt({d-1})")
        e(f"v_cmp_eq_u32 vcc, -1, v{regs[k]}")
        if k == d-1: tmo(e)
        e(f"s_cbranch_vccz {lab}_ok")
    e(f"s_branch {lab}")
    e.label(f"{lab}_ok")
    e("s_mov_b64 exec, -1")
def load_weights(e, blocks, tiles, vtmp, soff=None):
    n = 0; bi = 0
    for toff in tiles:
        for t in range(7):
            b = blocks[bi]; bi += 1
            e(f"v_add_u32 v{vtmp}, {toff + t*2048}, v{vL16}")
            if soff is not None: e(f"v_add_u32 v{vtmp}, s{soff}, v{vtmp}")
            e(f"global_load_dwordx4 {reg(b,4)}, v{vtmp}, s[{sW}:{sW+1}]")
            e(f"global_load_dwordx4 {reg((b[0], b[1]+4),4)}, v{vtmp}, s[{sW}:{sW+1}] offset:1024")
            n += 2
            if n % 32 == 0: e("s_waitcnt vmcnt(32)")
    e("s_waitcnt vmcnt(0)")
def load_lds_tiles(e, tiles, ldsoffs, stg, v0_, v1_):
    for toff, lo in zip(tiles, ldsoffs):
        for k in range(14):
            e(f"v_add_u32 v{v0_}, {toff + k*1024}, v{vL16}")
            e(f"global_load_dwordx4 v[{stg+4*k}:{stg+4*k+3}], v{v0_}, s[{sW}:{sW+1}]")
        e(f"v_add_u32 v{v1_}, {lo}, v{vL16}")
        e("s_waitcnt vmcnt(0)")
        for k in range(14):
            e(f"ds_write_b128 v{v1_}, v[{stg+4*k}:{stg+4*k+3}] offset:{k*1024}")
        e("s_waitcnt lgkmcnt(0)")
def bell2_addr(e, vBL, last=55):
    e(f"v_min_u32 v{vBL}, {last}, v{vLANE}")
    e(f"v_lshlrev_b32 v{vBL}, 2, v{vBL}")
    e(f"s_and_b32 s{sT0}, s{sROLE}, 7")
    e(f"s_lshl_b32 s{sT0}, s{sT0}, 8")
    e(f"s_add_u32 s{sT0}, s{sT0}, {8192-3072}")
    e(f"v_add_u32 v{vBL}, s{sT0}, v{vBL}")
def rt_write_addr(e, vRTW, t0, t1, t2):
    e(f"v_and_b32 v{t0}, 15, v{vLANE}")
    e(f"v_lshrrev_b32 v{t1}, 4, v{vLANE}")
    e(f"v_lshrrev_b32 v{t2}, 2, v{t0}")
    e(f"v_xor_b32 v{t1}, v{t1}, v{t2}")
    e(f"v_lshlrev_b32 v{t1}, 3, v{t1}")
    e(f"v_lshl_add_u32 v{t1}, v{t0}, 5, v{t1}")
    e(f"v_lshrrev_b32 v{t2}, 3, v{t0}")
    e(f"v_lshl_add_u32 v{vRTW}, v{t2}, 7, v{t1}")
    e(f"v_add_u32 v{vRTW}, {S_RT}, v{vRTW}")
def adv(e, s, n):
    e(f"s_add_u32 s{s}, s{s}, {n}"); e(f"s_addc_u32 s{s+1}, s{s+1}, 0")
def gload(am, t):
    return f"global_load_dwordx4 v[{am+4*t}:{am+4*t+3}], v{vL16}, s[{sMEM}:{sMEM+1}] offset:{t*1024-3072} sc1"
PACE_N, PACE_NOP = 4, 12
def direct_gather(e, am):
    for t in range(PACE_N):
        e(gload(am, t))
        if t+1 < PACE_N: e.nop(PACE_NOP)
def kmajor(e, am, accs, wregs, vtmp):
    chk = sentinel_tree([am+k for k in range(28)], vtmp)
    ci = 0; issued = PACE_N
    for t in range(7):
        e(f"s_waitcnt vmcnt({issued-1-t})")
        for j in range(4):
            e(f"v_smfmac_f32_16x16x64_bf16 v[{accs[j]}:{accs[j]+3}], v[{am+4*t}:{am+4*t+3}], {reg(wregs(j,t),8)}, v{vIDX}")
            if j == 0 and issued < 7:
                e(gload(am, issued)); issued += 1
            elif ci < len(chk) and (ci == len(chk)-1 and t == 6 or (ci < len(chk)-1 and min(2*ci+2, 27) < 4*(t+1))):
                e(chk[ci]); ci += 1
    while ci < len(chk): e(chk[ci]); ci += 1

S_TILES = {0:[4,7,10,13,16,19,22,25], 1:[5,8,11,14,17,20,23,26], 2:[6,9,12,15,18,21,24,27], 3:[0,1,2,3]}
FLAG_AFTER = {1:0, 2:1, 3:2, 5:3, 6:4}
NCP = 5
def score_producer(e, w):
    uid = f"sp{w}"
    tiles = S_TILES[w]
    blocks = blocks_regs(32, 120, 17)
    load_lds_tiles(e, [tiles[0]*TILE], [S_WT + w*TILE], 60, 4, 5)
    load_weights(e, blocks, [t*TILE for t in tiles[1:]], 4)
    vFV, vBL, vRTW, vFA = 0, 1, 4, 5
    vC = [6, 8]; vBR = [6, 7, 8, 9, 10, 11][:OPT.get('pdepth', 3)]
    am = 12; acc = [40, 44, 48, 52, 56, 116]; stg = 60
    rt_write_addr(e, vRTW, 8, 9, 10)
    e(f"v_lshlrev_b32 v{vFA}, 2, v{vLANE}")
    e(f"v_add_u32 v{vFA}, {S_FLAG + 256*w}, v{vFA}")
    e(f"v_mov_b32 v{vFV}, 0")
    for cp in range(NCP): e(f"ds_write_b32 v{vFA}, v{vFV} offset:{cp*1024}")
    bell2_addr(e, vBL)
    def stage():
        for k in range(14): e(f"ds_read_b128 v[{stg+4*k}:{stg+4*k+3}], v{vL16} offset:{S_WT + w*TILE + k*1024}")
    stage()
    for a in acc:
        for l in zero4(a): e(l)
    e("s_waitcnt lgkmcnt(0)"); e("s_barrier")
    e.label(f"b_{uid}_step")
    e(f"v_add_u32 v{vFV}, 1, v{vFV}")
    if OPT.get('onepoll', 0): e("s_barrier")
    else: bell_wait(e, vBL, sMEM, vBR, f"b_{uid}_bell", 56)
    tr(e, 0)
    e.label(f"b_{uid}_gather")
    direct_gather(e, am); tmo(e)
    kmajor(e, am, acc[:4], lambda j,t: ('v', stg+8*t) if j == 0 else blocks[(j-1)*7+t], vC[0])
    defer = OPT.get('defer', 1)
    if not defer: e(f"s_cbranch_vccnz b_{uid}_redo")
    tr(e, 1)
    accof = {0:acc[0],1:acc[1],2:acc[2],3:acc[3],4:acc[4],5:acc[5],6:acc[0],7:acc[1]}
    def wr(j, c):
        a = accof[j]
        l = [f"v_cvt_pk_bf16_f32 v{c}, v{a}, v{a+1}", f"v_cvt_pk_bf16_f32 v{c+1}, v{a+2}, v{a+3}",
             f"ds_write_b64 v{vRTW}, v[{c}:{c+1}] offset:{tiles[j]*RT_TILE}"]
        if j in FLAG_AFTER: l.append(f"ds_write_b32 v{vFA}, v{vFV} offset:{FLAG_AFTER[j]*1024}")
        return l
    if OPT.get('burst', 1):
        e.nop(3)
        w01 = wr(0, vC[0]) + wr(1, vC[1])
        for l in w01[:-1]: e(l)
        if defer: e(f"s_cbranch_vccnz b_{uid}_redo")
        e(w01[-1])
        Q = {4: wr(2, vC[0]) + wr(3, vC[1]),
             5: zero4(acc[0]) + wr(4, vC[0]),
             6: zero4(acc[1]) + wr(5, vC[1]),
             7: [None, None] + wr(6, vC[0])}
    else:
        Q = {4: ["s_nop 0"] + wr(0, vC[0]) + wr(1, vC[1]) + wr(2, vC[0]),
             5: wr(3, vC[1]) + zero4(acc[0]) + wr(4, vC[0]),
             6: zero4(acc[1]) + wr(5, vC[1]),
             7: [None, None] + wr(6, vC[0])}
    for r in range(4, 8):
        q = Q[r]; n = len(q); qi = 0
        for t in range(7):
            if not (OPT.get('abl_r') and r in OPT['abl_r']):
                e(f"v_smfmac_f32_16x16x64_bf16 v[{accof[r]}:{accof[r]+3}], v[{am+4*t}:{am+4*t+3}], {reg(blocks[(r-1)*7+t],8)}, v{vIDX}")
            upto = -(-n*(t+1) // 7) if n > 7 else min(n, t+1)
            while qi < upto:
                if q[qi]: e(q[qi])
                qi += 1
            if defer and r == 4 and t == 1 and not OPT.get('burst', 1): e(f"s_cbranch_vccnz b_{uid}_redo")
    tr(e, 2)
    e.nop(8)
    for l in wr(7, vC[0])[:3]: e(l)
    e("s_waitcnt lgkmcnt(0)"); e("s_barrier")
    tr(e, 3)
    stage()
    for a in acc:
        for l in zero4(a): e(l)
    adv(e, sMEM, MEM_STRIDE)
    e(f"s_add_u32 s{sSTEP}, s{sSTEP}, 1")
    e(f"s_cmp_lt_u32 s{sSTEP}, {NSTEP}")
    e("s_waitcnt lgkmcnt(0)")
    e(f"s_cbranch_scc1 b_{uid}_step")
    tr_dump(e, (8, 9))
    e("s_endpgm")
    e.label(f"b_{uid}_redo")
    e.nop(8)
    for a in acc[:5]:
        for l in zero4(a): e(l)
    e(f"s_branch b_{uid}_gather")

def score_swave(e):
    uid = "sw"
    tiles = S_TILES[3]
    blocks = blocks_regs(28)
    dstamp(e, 0, 0, (102,103), sreg=96); dstamp(e, 1, 0, (102,103))
    load_weights(e, blocks, [t*TILE for t in tiles], 4)
    dstamp(e, 2, 0, (102,103))
    vX = 144; vB = [60, 76, 92]; vS = 108
    vFV, vBL2, vRTW, vTR0, vTR1, vFA = 0, 1, 4, 5, 6, 7
    vC = [8, 56]; vPX, vPM = 10, 11
    am = 12; acc = [40, 44, 48, 52]
    vBL, vF = 122, 123
    vXA = [120, 121, 104, 105]; vBR = [124, 125, 100, 101][:OPT.get('sdepth', 3)]
    vV, vE, vM, vT, vR, vL, vML, vF2, vO = 126, 132, 138, 139, 140, 141, 142, 143, 58
    vHF = 106
    T, A0, A1, A2, A3, G, N15 = 60, 61, 62, 63, 64, 65, 66
    rt_write_addr(e, vRTW, A0, A1, A2)
    e(f"v_and_b32 v{N15}, 15, v{vLANE}")
    e(f"v_lshrrev_b32 v{G}, 4, v{vLANE}")
    e(f"v_lshrrev_b32 v{A0}, 2, v{N15}")
    e(f"v_mul_u32_u24 v{A1}, 384, v{G}")
    e(f"v_lshl_add_u32 v{A1}, v{A0}, 5, v{A1}")
    e(f"v_and_b32 v{A2}, 3, v{N15}")
    e(f"v_lshlrev_b32 v{A3}, 1, v{G}")
    e(f"v_and_b32 v{A3}, 3, v{A3}")
    e(f"v_xor_b32 v{T}, v{A2}, v{A3}")
    e(f"v_lshl_add_u32 v{vTR0}, v{T}, 3, v{A1}")
    e(f"v_add_u32 v{vTR0}, {S_RT}, v{vTR0}")
    e(f"v_xor_b32 v{T}, 1, v{T}")
    e(f"v_lshl_add_u32 v{vTR1}, v{T}, 3, v{A1}")
    e(f"v_add_u32 v{vTR1}, {S_RT + 4*32}, v{vTR1}")
    e(f"v_and_b32 v{A0}, 3, v{vLANE}")
    e(f"v_min_u32 v{A0}, 2, v{A0}")
    e(f"v_lshlrev_b32 v{vFA}, 8, v{A0}")
    e(f"v_add_u32 v{vFA}, {S_FLAG}, v{vFA}")
    e(f"s_lshl_b32 s{sT0}, s{sROLE}, 9")
    e(f"v_lshrrev_b32 v{A1}, 3, v{N15}")
    e(f"v_and_b32 v{A0}, 7, v{vLANE}")
    e(f"v_lshrrev_b32 v{A3}, 1, v{G}")
    e(f"v_and_b32 v{T}, 1, v{G}")
    e(f"v_lshlrev_b32 v{A2}, 4, v{A0}")
    e(f"v_lshl_add_u32 v{A2}, v{A3}, 8, v{A2}")
    e(f"v_lshl_add_u32 v{A2}, v{T}, 3, v{A2}")
    e(f"v_lshl_add_u32 v{vPX}, v{A1}, 2, v{A2}")
    e(f"v_add_u32 v{vPX}, s{sT0}, v{vPX}")
    e(f"s_lshr_b32 s{sT0}, s{sROLE}, 1"); e(f"s_lshl_b32 s{sT0}, s{sT0}, 8")
    e(f"s_and_b32 s{sT1}, s{sROLE}, 1"); e(f"s_lshl_b32 s{sT1}, s{sT1}, 2")
    e(f"s_add_u32 s{sT0}, s{sT0}, s{sT1}"); e(f"s_add_u32 s{sT0}, s{sT0}, 8192")
    e(f"v_lshlrev_b32 v{A2}, 4, v{A0}")
    e(f"v_lshl_add_u32 v{A2}, v{A3}, 7, v{A2}")
    e(f"v_lshl_add_u32 v{vPM}, v{T}, 3, v{A2}")
    e(f"v_add_u32 v{vPM}, s{sT0}, v{vPM}")
    e(f"s_lshr_b32 s{sT0}, s{sROLE}, 2"); e(f"s_lshl_b32 s{sT0}, s{sT0}, 9")
    e(f"s_and_b32 s{sT1}, s{sROLE}, 3"); e(f"s_lshl_b32 s{sT1}, s{sT1}, 2")
    e(f"s_add_u32 s{sT0}, s{sT0}, s{sT1}"); e(f"s_add_u32 s{sT0}, s{sT0}, 10240")
    e(f"v_and_b32 v{A0}, 3, v{vLANE}")
    e(f"v_lshlrev_b32 v{vBL}, 7, v{A0}")
    e(f"v_add_u32 v{vBL}, s{sT0}, v{vBL}")
    bell2_addr(e, vBL2)
    for k in range(4): e(f"v_add_u32 v{vXA[k]}, {8192*k + 4096}, v{vL16}")
    def xloads():
        for u in range(14):
            for kt in range(2):
                o = kt*14336 + u*1024
                e(f"global_load_dwordx4 v[{vX+kt*56+4*u}:{vX+kt*56+4*u+3}], v{vXA[o//8192]}, s[{sXP}:{sXP+1}] offset:{o%8192-4096}")
    if OPT.get('cnt'):
        for t in range(64, 70): e(f"s_mov_b32 s{t}, 0")
    wait_xall_wave(e, 102, 103, "b_sw_x0", C_XRDY, 2)
    xloads()
    for a in acc + [vS]:
        for l in zero4(a): e(l)
    e(f"v_mov_b32 v{vFV}, 0"); e(f"v_mov_b32 v{vHF}, 0.5")
    e("s_waitcnt vmcnt(0)"); e("s_barrier")
    BUF = [60, 68, 76]; FLG = [84, 85, 86]
    CP = {0: None, 1: 0, 2: 1, 3: 2, 4: 3, 5: 4, 6: None}
    def reads(t):
        buf = BUF[t % 3]
        l = [f"ds_read_b32 v{FLG[t % 3]}, v{vFA} offset:{CP[t]*1024}"] if CP[t] is not None else []
        for hh in range(2):
            u = 2*t+hh
            l.append(f"ds_read_b64_tr_b16 v[{buf+4*hh}:{buf+4*hh+1}], v{vTR0} offset:{2*RT_TILE*u}")
            l.append(f"ds_read_b64_tr_b16 v[{buf+4*hh+2}:{buf+4*hh+3}], v{vTR1} offset:{2*RT_TILE*u}")
        return l
    def mfmas(t):
        buf = BUF[t % 3]
        l = [f"v_smfmac_f32_16x16x64_bf16 v[{vS}:{vS+3}], v[{am+4*t}:{am+4*t+3}], v[{buf}:{buf+7}], v{vIDX}"]
        for hh in range(2):
            u = 2*t+hh
            for kt in (1,2):
                a_ = f"v[{vX+(kt-1)*56+4*u}:{vX+(kt-1)*56+4*u+3}]"
                c = "0" if u == 0 else f"v[{vS+4*kt}:{vS+4*kt+3}]"
                l.append(f"v_mfma_f32_16x16x32_bf16 v[{vS+4*kt}:{vS+4*kt+3}], {a_}, v[{buf+4*hh}:{buf+4*hh+3}], {c}")
        return l
    retries = []
    e.label(f"b_{uid}_step")
    for k,st in enumerate((0,1,2,OPT.get('s0',10),32,OPT.get('s1',62))): dstamp(e, 4+k, 0, (102,103), step=st)
    if DIAG[0]:
        for k,st in enumerate((OPT.get('s0',10),OPT.get('s1',62))):
            e(f"s_cmp_lg_u32 s{sSTEP}, {st}"); e(f"s_cbranch_scc1 .Lmt{k}")
            e("s_memtime s[98:99]"); e("s_waitcnt lgkmcnt(0)")
            dstamp(e, 21+k, 0, (102,103), sreg=98)
            e.label(f".Lmt{k}")
    e(f"v_add_u32 v{vFV}, 1, v{vFV}")
    e(f"s_add_u32 s{sTGT}, s{sSTEP}, 1")
    bell_wait(e, vBL2, sMEM, vBR, f"b_{uid}_bell", 56)
    if OPT.get('onepoll', 0): e("s_barrier")
    tr(e, 0)
    e.label(f"b_{uid}_gather")
    direct_gather(e, am); tmo(e)
    kmajor(e, am, acc, lambda j,t: blocks[j*7+t], vC[0])
    defer = OPT.get('defer', 1)
    if not defer: e(f"s_cbranch_vccnz b_{uid}_redo")
    tr(e, 1)
    e.nop(3 if not defer else 4)
    for j in range(4):
        a = acc[j]; c = vC[j % 2]
        e(f"v_cvt_pk_bf16_f32 v{c}, v{a}, v{a+1}")
        e(f"v_cvt_pk_bf16_f32 v{c+1}, v{a+2}, v{a+3}")
        e(f"ds_write_b64 v{vRTW}, v[{c}:{c+1}] offset:{tiles[j]*RT_TILE}")
        if defer and j == 1: e(f"s_cbranch_vccnz b_{uid}_redo")
    def chk(t): return f"v_cmp_gt_u32 vcc, s{sTGT}, v{FLG[t % 3]}"
    def retry(t):
        lab = f"b_{uid}_cp{t}"
        e(f"s_cbranch_vccnz {lab}_retry"); e.label(f"{lab}_ok"); retries.append((lab, t))
    def batch(t, rd, mid=None, midpos=2):
        i = 0
        for j, m_ in enumerate(mfmas(t)):
            e(m_)
            for _ in range(2 if 'smfmac' not in m_ else 1):
                if i < len(rd): e(rd[i]); i += 1
            if mid and j == midpos:
                for l in mid(i): e(l)
        while i < len(rd): e(rd[i]); i += 1
    for l in reads(0): e(l)
    for l in reads(1): e(l)
    e("s_waitcnt lgkmcnt(0)"); e(chk(1)); retry(1)
    tr(e, 2)
    batch(0, reads(2))
    batch(1, reads(3), lambda i: [f"s_waitcnt lgkmcnt({i})", chk(2)]); retry(2)
    if OPT.get('d45', 0):
        batch(2, reads(4), lambda i: [f"s_waitcnt lgkmcnt({i})", chk(3)]); retry(3)
        batch(3, reads(5), lambda i: [f"s_waitcnt lgkmcnt({i})", chk(4)]); retry(4)
        batch(4, [], lambda i: ["s_waitcnt lgkmcnt(0)", chk(5)]); retry(5)
    else:
        batch(2, [], lambda i: ["s_waitcnt lgkmcnt(0)", chk(3)]); retry(3)
        batch(3, reads(4), lambda i: ["s_waitcnt lgkmcnt(0)", chk(4)], midpos=3); retry(4)
        batch(4, reads(5), lambda i: ["s_waitcnt lgkmcnt(0)", chk(5)], midpos=3); retry(5)
    tr(e, 3)
    e("s_barrier")
    tr(e, 4)
    batch(5, reads(6))
    e("s_waitcnt lgkmcnt(0)")
    batch(6, [])
    def ring1():
        e("s_mov_b64 exec, 15")
        e(f"global_store_dword v{vBL}, v{vFV}, s[{sP}:{sP+1}]")
        e("s_mov_b64 exec, -1")
    tr(e, 5)
    T0, T1, T2 = vS, vS+4, vS+8
    D = "row_ror:8"
    if OPT.get('sm3', 1):
        e(f"v_permlane32_swap_b32 v{T0}, v{T0+2}")
        e(f"v_permlane32_swap_b32 v{T0+1}, v{T0+3}")
        e(f"v_add_f32 v{T0}, v{T0}, v{T0+2}"); e(f"v_add_f32 v{T0+1}, v{T0+1}, v{T0+3}")
        e.nop(1)
        e(f"v_add_f32_dpp v{vV+4}, v{T0}, v{T0} {D} row_mask:0xf bank_mask:0xf")
        e(f"v_add_f32_dpp v{vV+5}, v{T0+1}, v{T0+1} {D} row_mask:0xf bank_mask:0xf")
        for r in range(4): e(f"v_add_f32_dpp v{vV+r}, v{T1+r}, v{T1+r} {D} row_mask:0xf bank_mask:0x3")
        for r in range(4): e(f"v_add_f32_dpp v{vV+r}, v{T2+r}, v{T2+r} {D} row_mask:0xf bank_mask:0xc")
    else:
        e.nop(8)
        e(f"v_permlane32_swap_b32 v{T0}, v{T0+2}")
        e(f"v_permlane32_swap_b32 v{T0+1}, v{T0+3}")
        for r in range(4): e(f"v_add_f32_dpp v{vV+r}, v{T1+r}, v{T1+r} {D} row_mask:0xf bank_mask:0x3")
        e(f"v_add_f32 v{T0}, v{T0}, v{T0+2}"); e(f"v_add_f32 v{T0+1}, v{T0+1}, v{T0+3}")
        for r in range(4): e(f"v_add_f32_dpp v{vV+r}, v{T2+r}, v{T2+r} {D} row_mask:0xf bank_mask:0xc")
        e(f"v_add_f32_dpp v{vV+4}, v{T0}, v{T0} {D} row_mask:0xf bank_mask:0xf")
        e(f"v_add_f32_dpp v{vV+5}, v{T0+1}, v{T0+1} {D} row_mask:0xf bank_mask:0xf")
    if OPT.get('ring1', 4) == 3: ring1()
    PK = "op_sel_hi:[1,0]"; neg = "neg_lo:[0,1] neg_hi:[0,1]"
    e(f"v_max3_f32 v{vML}, v{vV}, v{vV+1}, v{vV+2}")
    e(f"v_max3_f32 v{vML}, v{vML}, v{vV+3}, v{vV+4}")
    e(f"v_max_f32 v{vML}, v{vML}, v{vV+5}")
    e(f"v_pk_add_f32 v[{vE}:{vE+1}], v[{vV}:{vV+1}], v[{vML}:{vML+1}] {PK} {neg}")
    e(f"v_pk_add_f32 v[{vE+2}:{vE+3}], v[{vV+2}:{vV+3}], v[{vML}:{vML+1}] {PK} {neg}")
    e(f"v_max_f32_dpp v{vM}, v{vML}, v{vML} {D} row_mask:0xf bank_mask:0xf")
    e(f"v_pk_add_f32 v[{vE+4}:{vE+5}], v[{vV+4}:{vV+5}], v[{vML}:{vML+1}] {PK} {neg}")
    e(f"v_mov_b32 v{vT}, v{vM}")
    e(f"v_exp_f32 v{vE}, v{vE}"); e(f"v_exp_f32 v{vE+1}, v{vE+1}")
    e(f"v_permlane16_swap_b32 v{vM}, v{vT}")
    e(f"v_exp_f32 v{vE+2}, v{vE+2}")
    e(f"v_max_f32 v{vM}, v{vM}, v{vT}")
    if OPT.get('ring1', 4) == 1: ring1()
    e(f"v_exp_f32 v{vE+3}, v{vE+3}")
    e(f"v_mov_b32 v{vT}, v{vM}")
    e(f"v_exp_f32 v{vE+4}, v{vE+4}"); e(f"v_exp_f32 v{vE+5}, v{vE+5}")
    e(f"v_permlane32_swap_b32 v{vM}, v{vT}")
    e(f"v_pk_add_f32 v[{vV}:{vV+1}], v[{vE}:{vE+1}], v[{vE+2}:{vE+3}]")
    e(f"v_max_f32 v{vM}, v{vM}, v{vT}")
    e(f"v_pk_fma_f32 v[{vV}:{vV+1}], v[{vE+4}:{vE+5}], v[{vHF}:{vHF+1}], v[{vV}:{vV+1}] op_sel_hi:[1,0,1]")
    e(f"v_sub_f32 v{vF2}, v{vML}, v{vM}")
    if OPT.get('ring1', 4) == 4: ring1()
    e(f"v_add_f32 v{vL}, v{vV}, v{vV+1}")
    e(f"v_exp_f32 v{vF2}, v{vF2}")
    e.nop(1)
    e(f"v_mul_f32 v{vL}, v{vL}, v{vF2}")
    e.nop(2)
    e(f"v_add_f32_dpp v{vL}, v{vL}, v{vL} {D} row_mask:0xf bank_mask:0xf")
    e(f"v_mov_b32 v{vT}, v{vL}")
    if OPT.get('ring1', 4) == 5: ring1()
    else: e.nop(2)
    e(f"v_permlane16_swap_b32 v{vL}, v{vT}"); e(f"v_add_f32 v{vL}, v{vL}, v{vT}")
    e(f"v_mov_b32 v{vT}, v{vL}")
    if OPT.get('ring1', 4) == 6: ring1()
    else: e.nop(2)
    e(f"v_permlane32_swap_b32 v{vL}, v{vT}"); e(f"v_add_f32 v{vL}, v{vL}, v{vT}")
    e(f"v_rcp_f32 v{vR}, v{vL}"); e.nop(1)
    e(f"v_mul_f32 v{vR}, v{vR}, v{vF2}")
    for k in range(3): e(f"v_pk_mul_f32 v[{vE+2*k}:{vE+2*k+1}], v[{vE+2*k}:{vE+2*k+1}], v[{vR}:{vR+1}] {PK}")
    e(f"v_cvt_pk_bf16_f32 v{vO}, v{vE}, v{vE+1}")
    e(f"v_cvt_pk_bf16_f32 v{vO+1}, v{vE+2}, v{vE+3}")
    e(f"v_cvt_pk_bf16_f32 v{vC[0]}, v{vE+4}, v{vE+5}")
    e(f"global_store_dword v{vPX}, v{vO}, s[{sP}:{sP+1}]")
    e(f"global_store_dword v{vPX}, v{vO+1}, s[{sP}:{sP+1}] offset:128")
    e(f"global_store_dword v{vPM}, v{vC[0]}, s[{sP}:{sP+1}]")
    tr(e, 6)
    adv(e, sXP, XSEG)
    e(f"s_cmp_lg_u32 s{sSTEP}, 0"); e(f"s_cbranch_scc1 b_{uid}_xk")
    wait_xall_wave(e, 102, 103, "b_sw_xall")
    e.label(f"b_{uid}_xk")
    if OPT.get('sleep_x', 5): e(f"s_sleep {OPT.get('sleep_x', 5)}")
    xloads()
    for a in acc + [vS]:
        for l in zero4(a): e(l)
    adv(e, sP, P_STRIDE); adv(e, sMEM, MEM_STRIDE)
    e(f"s_add_u32 s{sSTEP}, s{sSTEP}, 1")
    e(f"s_cmp_lt_u32 s{sSTEP}, {NSTEP}")
    e(f"s_cbranch_scc1 b_{uid}_step")
    dstamp(e, 3, 0, (102,103))
    if OPT.get('cnt'):
        for t in range(1, 6): dstamp(e, 30+t, 0, (102,103), sreg=63+t)
        dstamp(e, 36, 0, (102,103), sreg=69)
    tr_dump(e, (8, 9))
    e("s_endpgm")
    e.label(f"b_{uid}_redo")
    if OPT.get('cnt'): e("s_add_u32 s69, s69, 1")
    e.nop(8)
    for a in acc:
        for l in zero4(a): e(l)
    e(f"s_branch b_{uid}_gather")
    for lab, t in retries:
        e.label(f"{lab}_retry")
        if OPT.get('cnt'): e(f"s_add_u32 s{63+t}, s{63+t}, 1")
        for l in reads(t): e(l)
        tmo(e)
        e("s_waitcnt lgkmcnt(0)")
        e(f"v_cmp_gt_u32 vcc, s{sTGT}, v{FLG[t % 3]}")
        e(f"s_cbranch_vccnz {lab}_retry")
        e(f"s_branch {lab}_ok")

def helper(e):
    uid = "hp"
    e(f"s_lshl_b32 s{sT0}, s{sWAVE}, 13")
    e(f"v_lshlrev_b32 v8, 7, v{vLANE}"); e(f"v_add_u32 v8, s{sT0}, v8"); e(f"v_min_u32 v8, {MEM_STRIDE-128}, v8")
    e(f"s_lshl_b32 s{sT0}, s{sWAVE}, 12")
    e(f"v_and_b32 v9, 31, v{vLANE}"); e("v_lshlrev_b32 v9, 7, v9"); e(f"v_add_u32 v9, s{sT0}, v9")
    e(f"v_min_u32 v9, {P_STRIDE-128}, v9")
    e(f"s_mul_i32 s{sT0}, s{sWAVE}, {75*128}")
    e(f"v_lshlrev_b32 v5, 7, v{vLANE}"); e(f"v_add_u32 v5, s{sT0}, v5"); e(f"v_add_u32 v7, {64*128}, v5")
    e(f"v_min_u32 v5, {XSEG-128}, v5"); e(f"v_min_u32 v7, {XSEG-128}, v7")
    e("v_mov_b32 v6, 0")
    e(f"s_sub_u32 s64, s{sMEM}, 3072"); e(f"s_subb_u32 s65, s{sMEM+1}, 0")
    e(f"s_mov_b64 s[66:67], s[{sP}:{sP+1}]")
    e(f"s_mov_b64 s[68:69], s[{sXP}:{sXP+1}]")
    def pfx():
        e("global_load_dword v41, v8, s[64:65]"); e("global_load_dword v42, v9, s[66:67]")
        adv(e, 64, MEM_STRIDE); adv(e, 66, P_STRIDE)
    def pfa():
        e("global_load_dword v40, v5, s[68:69]")
        e("s_mov_b64 exec, 0xfff"); e("global_load_dword v43, v7, s[68:69]"); e("s_mov_b64 exec, -1")
        adv(e, 68, XSEG)
    e(f"v_and_b32 v12, 7, v{vLANE}"); e("v_lshlrev_b32 v12, 8, v12"); e(f"v_add_u32 v12, {8192 + 56*4}, v12")
    e(f"s_cmp_eq_u32 s{sWAVE}, 3"); e(f"s_cbranch_scc1 b_{uid}_relay")
    pfx(); pfx(); pfx()
    wait_xall_wave(e, 10, 11, "b_hp_xall")
    pfa(); pfa()
    e("s_waitcnt vmcnt(0)")
    e.label(f"b_{uid}_step")
    e(f"global_load_dword v2, v6, s[{sMEM}:{sMEM+1}] offset:-3072 sc1")
    tmo(e)
    e("s_waitcnt vmcnt(0)")
    e("v_cmp_eq_u32 vcc, -1, v2")
    e(f"s_cbranch_vccz b_{uid}_go")
    e("s_sleep 4"); e(f"s_branch b_{uid}_step")
    e.label(f"b_{uid}_go")
    e(f"s_add_u32 s{sT1}, s{sSTEP}, 2"); e(f"s_cmp_ge_u32 s{sT1}, 64"); e(f"s_cbranch_scc1 b_{uid}_skip")
    pfx(); pfa()
    e.label(f"b_{uid}_skip")
    adv(e, sMEM, MEM_STRIDE)
    e(f"s_add_u32 s{sSTEP}, s{sSTEP}, 1"); e(f"s_cmp_lt_u32 s{sSTEP}, {NSTEP}")
    e(f"s_cbranch_scc1 b_{uid}_step")
    e("s_endpgm")
    e.label(f"b_{uid}_relay")
    e(f"v_mov_b32 v13, {C_URDY}"); e("v_mov_b32 v14, 1")
    e(f"s_sub_u32 s64, s{sMEM}, 3072"); e(f"s_subb_u32 s65, s{sMEM+1}, 0")
    e.label(f"b_{uid}_rl")
    e(f"global_load_dword v15, v13, s[{sCN}:{sCN+1}] sc1")
    tmo(e)
    e("s_waitcnt vmcnt(0)")
    e("v_cmp_ne_u32 vcc, 16, v15")
    e(f"s_cbranch_vccz b_{uid}_rl1")
    e("s_sleep 4"); e(f"s_branch b_{uid}_rl")
    e.label(f"b_{uid}_rl1")
    e("s_mov_b64 exec, 0xff")
    e("global_load_dword v16, v12, s[64:65]")
    e("s_waitcnt vmcnt(0)")
    e("global_store_dword v12, v14, s[64:65]")
    e("s_mov_b64 exec, -1")
    adv(e, 64, MEM_STRIDE)
    e("v_add_u32 v13, 4, v13")
    e(f"s_add_u32 s{sSTEP}, s{sSTEP}, 1")
    e(f"s_cmp_lt_u32 s{sSTEP}, 4"); e(f"s_cbranch_scc1 b_{uid}_rl2")
    e.label(f"b_{uid}_rl3")
    e(f"global_load_dword v16, v6, s[{sMEM}:{sMEM+1}] offset:-3072 sc1")
    tmo(e)
    e("s_waitcnt vmcnt(0)")
    e("v_cmp_eq_u32 vcc, -1, v16")
    e(f"s_cbranch_vccz b_{uid}_rl4")
    e("s_sleep 6"); e(f"s_branch b_{uid}_rl3")
    e.label(f"b_{uid}_rl4")
    adv(e, sMEM, MEM_STRIDE)
    e.label(f"b_{uid}_rl2")
    e(f"s_cmp_lt_u32 s{sSTEP}, {NSTEP}"); e(f"s_cbranch_scc1 b_{uid}_rl")
    e("s_endpgm")

def publisher(e):
    uid = "pb"
    own = {0:[0,4], 1:[1,5], 2:[2,6], 3:[3]}
    def chunk_addr(dstL, dstG, first):
        if first: e("v_mov_b32 v20, v0")
        else:
            e("v_add_u32 v20, 256, v0"); e("v_min_u32 v20, 447, v20")
        e(f"s_mov_b32 s{sT1}, {(2**32+55)//56}")
        e(f"v_mul_hi_u32 v21, v20, s{sT1}")
        e("v_mul_u32_u24 v22, 56, v21"); e("v_sub_u32 v22, v20, v22")
        e(f"v_lshlrev_b32 v{dstG}, 4, v20")
        e("v_lshrrev_b32 v23, 3, v22"); e("v_lshlrev_b32 v23, 10, v23")
        e("v_and_b32 v24, 7, v22"); e("v_lshrrev_b32 v24, 1, v24"); e("v_lshl_add_u32 v23, v24, 8, v23")
        e("v_lshl_add_u32 v23, v21, 4, v23")
        e("v_and_b32 v24, 1, v22"); e(f"v_lshl_add_u32 v{dstL}, v24, 3, v23")
    chunk_addr(30, 31, True); chunk_addr(32, 33, False)
    adv(e, sMEM, MEM_STRIDE); adv(e, sMX, W.MEMX_STRIDE); adv(e, sMXI, W.MEMX_STRIDE)
    e(f"s_mov_b32 s{sSTEP}, 1")
    e.label(f"b_{uid}_step")
    for w in range(4):
        lab = f"b_{uid}_w{w}"
        if w < 3:
            e(f"s_cmp_eq_u32 s{sWAVE}, {w}"); e(f"s_cbranch_scc0 {lab}_n")
        e.label(lab)
        for k,t in enumerate(own[w]): e(f"global_load_dwordx4 v[{8+4*k}:{11+4*k}], v{vL16}, s[{sMEM}:{sMEM+1}] offset:{t*1024-3072} sc1")
        tmo(e)
        e("s_waitcnt vmcnt(0)")
        for l in sentinel_tree([8+j for j in range(4*len(own[w]))], 16): e(l)
        e(f"s_cbranch_vccz {lab}_ok")
        e(f"s_sleep {OPT.get('pubsleep', 2)}"); e(f"s_branch {lab}")
        e.label(f"{lab}_ok")
        for k,t in enumerate(own[w]):
            e(f"ds_write_b128 v{vL16}, v[{8+4*k}:{11+4*k}] offset:{t*1024}")
            e(f"v_add_u32 v17, {t*1024}, v{vL16}")
            e(f"global_store_dwordx4 v17, v[{8+4*k}:{11+4*k}], s[{sMXI}:{sMXI+1}] sc1")
        if w < 3:
            e(f"s_branch b_{uid}_j"); e.label(f"{lab}_n")
    e.label(f"b_{uid}_j")
    e("s_waitcnt lgkmcnt(0)"); e("s_barrier")
    for (aL, aG, d) in ((30, 31, 40), (32, 33, 44)):
        e(f"ds_read_b32 v{d}, v{aL}"); e(f"ds_read_b32 v{d+1}, v{aL} offset:128")
        e(f"ds_read_b32 v{d+2}, v{aL} offset:4"); e(f"ds_read_b32 v{d+3}, v{aL} offset:132")
    e("s_waitcnt lgkmcnt(0)")
    e(f"global_store_dwordx4 v31, v[40:43], s[{sMX}:{sMX+1}] sc1")
    e(f"global_store_dwordx4 v33, v[44:47], s[{sMX}:{sMX+1}] sc1")
    e("s_barrier")
    adv(e, sMEM, MEM_STRIDE); adv(e, sMX, W.MEMX_STRIDE); adv(e, sMXI, W.MEMX_STRIDE)
    e(f"s_add_u32 s{sSTEP}, s{sSTEP}, 1"); e(f"s_cmp_lt_u32 s{sSTEP}, {NSTEP}")
    e(f"s_cbranch_scc1 b_{uid}_step")
    e("s_endpgm")

V_OWN = {0:[0,4], 1:[1,5], 2:[2,6], 3:[3]}
def value_wave(e, w):
    uid = f"vw{w}"
    vAM, vACC, vSTG = 12, 40, 52
    tl = [(hh, nt) for hh in range(4) for nt in range(2)]
    def toff(hh, nt): return (4*w+hh)*HEAD_IMG + nt*TILE
    blocks = blocks_regs(32, 176, 10)
    load_lds_tiles(e, [toff(*tl[0]), toff(*tl[1])], [V_WT + (2*w)*TILE, V_WT + (2*w+1)*TILE], vSTG, 4, 5)
    load_weights(e, blocks, [toff(*x) for x in tl[2:]], 4)
    if w == 0: dstamp(e, 10, 16, (174,175))
    vSA, vSB = 4, 5
    vT0, vT1, vT2, vT3 = 8, 9, 10, 11
    vZB = 108; vP = vACC; vO = vAM; vR = vAM+8; vU = 124
    vRW, vRR, vMS, vUA, vPA, vPMA, vZA, vMX = 156, 157, 158, 159, 160, 161, 162, 163
    vBL1, vBL2, vBS, vMI, vFA = 164, 165, 166, 167, 168
    vBR = [169,170,171,172,173][:OPT.get('vdepth', 3)]
    e(f"v_add_u32 v{vSA}, {V_WT + (2*w)*TILE}, v{vL16}")
    e(f"v_add_u32 v{vSB}, {V_WT + (2*w+1)*TILE}, v{vL16}")
    e(f"v_add_u32 v{vRW}, {V_RED + w*2048}, v{vL16}")
    nt_w, hf_w = w >> 1, w & 1
    e(f"v_lshrrev_b32 v{vT0}, 3, v{vLANE}")
    e(f"v_and_b32 v{vT1}, 7, v{vLANE}")
    e(f"v_lshrrev_b32 v{vT2}, 1, v{vT1}"); e(f"v_lshlrev_b32 v{vT2}, 2, v{vT2}")
    e(f"v_and_b32 v{vT1}, 1, v{vT1}")
    e(f"v_add_u32 v{vT2}, v{vT2}, v{vT1}"); e(f"v_add_u32 v{vT2}, {2*hf_w}, v{vT2}")
    e(f"s_sub_u32 s{sT0}, s{sROLE}, 16")
    e(f"s_lshl_b32 s{sT1}, s{sT0}, 6"); e(f"s_add_u32 s{sT1}, s{sT1}, {63*W.MEMX_STRIDE + 32*nt_w}")
    e(f"v_mul_u32_u24 v{vMX}, 896, v{vT0}"); e(f"v_lshl_add_u32 v{vMX}, v{vT2}, 1, v{vMX}"); e(f"v_add_u32 v{vMX}, s{sT1}, v{vMX}")
    e(f"v_lshrrev_b32 v{vT3}, 2, v{vT0}")
    e(f"v_lshl_add_u32 v{vT2}, v{vT3}, 4, v{vT2}"); e(f"v_lshlrev_b32 v{vT2}, 4, v{vT2}")
    e(f"v_and_b32 v{vT0}, 3, v{vT0}")
    e(f"v_lshl_add_u32 v{vRR}, v{vT0}, 2, v{vT2}"); e(f"v_add_u32 v{vRR}, {V_RED + nt_w*1024}, v{vRR}")
    e(f"s_lshr_b32 s{sT1}, s{sT0}, 1"); e(f"s_lshl_b32 s{sT1}, s{sT1}, 10")
    e(f"s_and_b32 s{sT2}, s{sT0}, 1"); e(f"s_lshl_b32 s{sT2}, s{sT2}, 9")
    e(f"s_add_u32 s{sT1}, s{sT1}, s{sT2}"); e(f"s_add_u32 s{sT1}, s{sT1}, {nt_w*256 + hf_w*128 + MEM_STRIDE - 3072}")
    e(f"v_lshl_add_u32 v{vMS}, v{vLANE}, 1, s{sT1}")
    e(f"v_add_u32 v{vMI}, {63*W.MEMX_STRIDE - (MEM_STRIDE - 3072)}, v{vMS}")
    e(f"s_lshl_b32 s{sT1}, s{sT0}, 15"); e(f"s_add_u32 s{sT1}, s{sT1}, {w*8192 + 4096}")
    e(f"v_add_u32 v{vUA}, s{sT1}, v{vL16}")
    e(f"v_add_u32 v{vPA}, {w*2048}, v{vL16}")
    e(f"v_lshrrev_b32 v{vT0}, 5, v{vLANE}"); e(f"v_lshlrev_b32 v{vT0}, 8, v{vT0}")
    e(f"v_and_b32 v{vT1}, 15, v{vLANE}")
    e(f"v_lshl_add_u32 v{vPMA}, v{vT1}, 4, v{vT0}"); e(f"v_add_u32 v{vPMA}, {8192 + w*512}, v{vPMA}")
    e(f"s_and_b32 s{sT1}, s{sT0}, 3"); e(f"s_lshl_b32 s{sT1}, s{sT1}, 7"); e(f"s_add_u32 s{sT1}, s{sT1}, {10240 + w*512}")
    e(f"v_and_b32 v{vT0}, 3, v{vLANE}")
    e(f"v_lshl_add_u32 v{vBL1}, v{vT0}, 2, s{sT1}")
    if OPT.get('onepoll1', 0) and w == 0:
        e(f"v_lshrrev_b32 v{vT0}, 2, v{vLANE}"); e(f"v_and_b32 v{vT0}, 3, v{vT0}"); e(f"v_lshl_add_u32 v{vBL1}, v{vT0}, 9, v{vBL1}")
    bell2_addr(e, vBL2, 56)
    e(f"s_sub_u32 s{sT0}, s{sROLE}, 16")
    e(f"s_lshl_b32 s{sT1}, s{sT0}, 4"); e(f"s_add_u32 s{sT1}, s{sT1}, {MEM_STRIDE + 8192 - 3072 + 4*w}")
    e(f"v_and_b32 v{vT0}, 7, v{vLANE}"); e(f"v_lshlrev_b32 v{vT0}, 8, v{vT0}")
    e(f"v_add_u32 v{vBS}, s{sT1}, v{vT0}")
    e(f"s_mov_b32 s{sEVEN}, 0x55555555"); e(f"s_mov_b32 s{sEVEN+1}, 0x55555555")
    def stg_read(vaddr, blk, tag):
        e.ds(f"ds_read_b128 v[{vSTG+8*blk}:{vSTG+8*blk+3}], v{vaddr} offset:{blk*2048}", tag)
        e.ds(f"ds_read_b128 v[{vSTG+8*blk+4}:{vSTG+8*blk+7}], v{vaddr} offset:{blk*2048+1024}", tag)
    e.lgkm = []
    for t in range(7): stg_read(vSA, t, 'sa')
    for l in zero4(vACC): e(l)
    if OPT.get('cnt'): e("s_mov_b32 s64, 0")
    e.wait_lgkm_all(); e("s_barrier")
    own = V_OWN[w]; others = [t for t in range(7) if t not in own]
    def cvt(r):
        hh, nt = tl[r]; accp = vACC + 4*(r % 3)
        return [f"v_cvt_pk_bf16_f32 v{vZB+8*nt+2*hh}, v{accp}, v{accp+1}", f"v_cvt_pk_bf16_f32 v{vZB+8*nt+2*hh+1}, v{accp+2}, v{accp+3}"]
    def zphase(tag, with_u):
        bell_wait(e, vBL2, sMEM, vBR, f"b_{uid}_bell2{tag}", 57)
        tr(e, 0)
        lab = f"b_{uid}_poll{tag}"
        e.label(lab)
        for t in own: e(gload(vAM, t))
        tmo(e)
        e("s_waitcnt vmcnt(0)")
        for l in sentinel_tree([vAM+4*t+k for t in own for k in range(4)], vT0): e(l)
        e(f"s_cbranch_vccnz {lab}")
        e.lgkm = []
        for t in own: e.ds(f"ds_write_b128 v{vL16}, v[{vAM+4*t}:{vAM+4*t+3}] offset:{V_LMEM+t*1024}", 'mw')
        e.wait_lgkm_all(); e("s_barrier")
        for t in others: e.ds(f"ds_read_b128 v[{vAM+4*t}:{vAM+4*t+3}], v{vL16} offset:{V_LMEM+t*1024}", f"am{t}")
        def uload(k):
            if OPT.get('nou'): return
            e(f"global_load_dwordx4 v[{vU+4*k}:{vU+4*k+3}], v{vUA}, s[{sUP}:{sUP+1}] offset:{k*1024-4096} {OPT.get('uflag','sc1')}")
        if with_u and not OPT.get('upace', 0):
            for k in range(8): uload(k)
        order = own + others
        for r in range(8):
            acc = vACC + 4*(r % 3); accn = vACC + 4*((r+1) % 3)
            fill = [None]*7
            if r + 1 < 8: fill[0], fill[1] = zero4(accn)
            if r > 0: fill[3], fill[4] = cvt(r-1)
            for k, t in enumerate(order if r == 0 else range(7)):
                if r == 0 and t in others: e.wait_lgkm(f"am{t}")
                if r == 0: b = ('v', vSTG+8*t)
                elif r == 1:
                    e.wait_lgkm(f"sb{t}"); b = ('v', vSTG+8*t)
                else: b = blocks[(r-2)*7+t]
                e(f"v_smfmac_f32_16x16x64_bf16 v[{acc}:{acc+3}], v[{vAM+4*t}:{vAM+4*t+3}], {reg(b,8)}, v{vIDX}")
                if r == 0: stg_read(vSB, t, f"sb{t}")
                if fill[k]: e(fill[k])
                up = OPT.get('upace', 0)
                if with_u and up == 1 and k == 5: uload(r)
                if with_u and up == 2 and r < 4 and k in (2, 5): uload(2*r + (k == 5))
                if with_u and up == 4 and r < 2 and k in (1, 2, 5, 6): uload(4*r + (1, 2, 5, 6).index(k))
        e.nop(4)
        for k in range(4): e(f"v_mov_b64 v[{vO+2*k}:{vO+2*k+1}], 0")
        for l in cvt(7): e(l)
    e.label(f"b_{uid}_step")
    zphase("", True)
    tr(e, 1)
    if OPT.get('onepoll1', 0):
        if w == 0: bell_wait(e, vBL1, sP, vBR, f"b_{uid}_bell1", 16)
        e("s_barrier")
    else:
        bell_wait(e, vBL1, sP, vBR, f"b_{uid}_bell1", 4)
    tr(e, 2)
    lab = f"b_{uid}_pollp"
    e.label(lab)
    e(f"global_load_dwordx4 v[{vP+8}:{vP+11}], v{vPMA}, s[{sP}:{sP+1}] sc1")
    e(f"global_load_dwordx4 v[{vP}:{vP+3}], v{vPA}, s[{sP}:{sP+1}] sc1")
    e(f"global_load_dwordx4 v[{vP+4}:{vP+7}], v{vPA}, s[{sP}:{sP+1}] offset:1024 sc1")
    tmo(e)
    smf2 = lambda nt, a_, b_: f"v_smfmac_f32_16x16x64_bf16 v[{vO+4*nt}:{vO+4*nt+3}], v[{a_}:{a_+3}], v[{b_}:{b_+7}], v{vIDX}"
    if OPT.get('prog', 1):
        e("s_waitcnt vmcnt(2)")
        e(smf2(0, vP+8, vZB)); e(f"v_max3_u32 v{vT0}, v{vP+8}, v{vP+9}, v{vP+10}")
        e(smf2(1, vP+8, vZB+8))
        e("s_waitcnt vmcnt(1)")
        e(smf2(0, vP, vU)); e(f"v_max3_u32 v{vT0}, v{vT0}, v{vP+11}, v{vP}")
        e(smf2(1, vP, vU+8)); e(f"v_max3_u32 v{vT0}, v{vT0}, v{vP+1}, v{vP+2}")
        e("s_waitcnt vmcnt(0)")
        e(smf2(0, vP+4, vU+16)); e(f"v_max3_u32 v{vT0}, v{vT0}, v{vP+3}, v{vP+4}")
        e(smf2(1, vP+4, vU+24)); e(f"v_max3_u32 v{vT0}, v{vT0}, v{vP+5}, v{vP+6}")
        e(f"v_max_u32 v{vT0}, v{vT0}, v{vP+7}")
        e(f"v_cmp_eq_u32 vcc, -1, v{vT0}")
        if not OPT.get('defer', 1): e(f"s_cbranch_vccnz {lab}_retry")
        tr(e, 3)
        e.nop(3 if not OPT.get('defer', 1) else 4)
        e(f"ds_write_b128 v{vRW}, v[{vO}:{vO+3}]")
        e.nop(1)
        e(f"ds_write_b128 v{vRW}, v[{vO+4}:{vO+7}] offset:1024")
        if OPT.get('defer', 1): e(f"s_cbranch_vccnz {lab}_retry")
    else:
        e("s_waitcnt vmcnt(0)")
        chk = sentinel_tree(list(range(vP, vP+12)), vT0)
        ms = [smf2(0, vP+8, vZB), smf2(0, vP, vU), smf2(0, vP+4, vU+16), smf2(1, vP+8, vZB+8), smf2(1, vP, vU+8), smf2(1, vP+4, vU+24)]
        ci = 0
        for m_ in ms:
            e(m_)
            if ci < len(chk): e(chk[ci]); ci += 1
        while ci < len(chk): e(chk[ci]); ci += 1
        e(f"s_cbranch_vccnz {lab}_retry")
        e.nop(2)
        e(f"ds_write_b128 v{vRW}, v[{vO}:{vO+3}]")
        e.nop(4)
        e(f"ds_write_b128 v{vRW}, v[{vO+4}:{vO+7}] offset:1024")
    def ring2():
        e("s_mov_b64 exec, 0xff")
        e(f"global_store_dword v{vBS}, v{vLANE}, s[{sMEM}:{sMEM+1}]")
        e("s_mov_b64 exec, -1")
    r2 = OPT.get('ring2', 1)
    if r2 == 0: ring2()
    e("s_waitcnt lgkmcnt(0)")
    if r2 == 3: ring2()
    e("s_barrier")
    tr(e, 4)
    if r2 == 1: ring2()
    for ww in range(4): e(f"ds_read2st64_b32 v[{vR+2*ww}:{vR+2*ww+1}], v{vRR} offset0:{ww*8} offset1:{ww*8+2}")
    if r2 == 4: ring2()
    e("s_waitcnt lgkmcnt(0)")
    if r2 == 5: ring2()
    e(f"v_pk_add_f32 v[{vR}:{vR+1}], v[{vR}:{vR+1}], v[{vR+2}:{vR+3}]")
    e(f"v_pk_add_f32 v[{vR+4}:{vR+5}], v[{vR+4}:{vR+5}], v[{vR+6}:{vR+7}]")
    e(f"v_pk_add_f32 v[{vR}:{vR+1}], v[{vR}:{vR+1}], v[{vR+4}:{vR+5}]")
    e(f"v_add_f32 v{vR}, v{vR}, v{vR+1}")
    if OPT.get('short', 0):
        e(f"v_cvt_pk_bf16_f32 v{vR+2}, v{vR}, v{vR}")
        e(f"global_store_short v{vMS}, v{vR+2}, s[{sMEM}:{sMEM+1}]")
    else:
        e.nop(2)
        e(f"v_mov_b32_dpp v{vR+1}, v{vR} quad_perm:[1,0,3,2] row_mask:0xf bank_mask:0xf")
        e(f"v_cvt_pk_bf16_f32 v{vR+2}, v{vR}, v{vR+1}")
        e(f"s_mov_b64 exec, s[{sEVEN}:{sEVEN+1}]")
        e(f"global_store_dword v{vMS}, v{vR+2}, s[{sMEM}:{sMEM+1}]")
        e("s_mov_b64 exec, -1")
    e(f"s_cmp_lg_u32 s{sSTEP}, {NSTEP-1}"); e(f"s_cbranch_scc1 b_{uid}_nolast")
    if OPT.get('short', 0): raise Exception("short not supported with direct publication")
    e(f"s_mov_b64 exec, s[{sEVEN}:{sEVEN+1}]")
    e(f"global_store_dword v{vMI}, v{vR+2}, s[{sMXI}:{sMXI+1}] sc1")
    e(f"global_store_dword v{vMX}, v{vR+2}, s[{sMX}:{sMX+1}] sc1")
    e("s_mov_b64 exec, -1")
    e.label(f"b_{uid}_nolast")
    tr(e, 5)
    e.lgkm = []
    for t in range(7): stg_read(vSA, t, 'sa')
    for l in zero4(vACC): e(l)
    adv(e, sMEM, MEM_STRIDE); adv(e, sP, P_STRIDE); adv(e, sUP, U_SEG)
    e(f"s_add_u32 s{sSTEP}, s{sSTEP}, 1")
    e(f"s_cmp_lt_u32 s{sSTEP}, {NSTEP}")
    e.wait_lgkm_all()
    e(f"s_cbranch_scc1 b_{uid}_step")
    if w == 0: dstamp(e, 11, 16, (174,175))
    if OPT.get('cnt'): dstamp(e, 40+w, 20, (174,175), sreg=64)
    tr_dump(e, (8, 9))
    e("s_endpgm")
    e.label(f"{lab}_retry")
    if OPT.get('cnt'): e("s_add_u32 s64, s64, 1")
    e.nop(8)
    for k in range(4): e(f"v_mov_b64 v[{vO+2*k}:{vO+2*k+1}], 0")
    e(f"s_branch {lab}")

NJ = 3; NJU = 2; NJZ = 2
XB0, XB1 = 0, XSEG
W_RED = 2*XSEG
W_MEMR = W_RED + 24576
def worker_common_setup(e, which):
    e(f"s_and_b32 s{sH}, s{sROLE}, 15"); e(f"s_lshr_b32 s{sJ}, s{sROLE}, 4")
    e(f"s_mul_i32 s{sT0}, s{sH}, {HEAD_IMG}")
    e(f"s_add_u32 s{sT0}, s{sT0}, {which*16*HEAD_IMG}")
    e(f"s_mul_i32 s{sT1}, s{sWAVE}, {7*TILE}")
    e(f"s_add_u32 s{sT0}, s{sT0}, s{sT1}")
    e(f"s_add_u32 s{sW}, s{sW}, s{sT0}"); e(f"s_addc_u32 s{sW+1}, s{sW+1}, 0")
def dma_xa(e, vsrc):
    e(f"s_mul_i32 s{sT0}, s{sT3}, {XSEG}")
    e(f"s_mul_i32 s{sT1}, s{sWAVE}, 7168")
    e(f"s_add_u32 s{sT0}, s{sT0}, s{sT1}")
    e(f"v_add_u32 v{vsrc}, s{sT0}, v{vL16}")
    e(f"s_add_u32 s{sT1}, s{sT1}, s{sT4}")
    for k in range(7):
        e(f"s_add_u32 m0, s{sT1}, {k*1024}")
        e("s_nop 0")
        e(f"global_load_lds_dwordx4 v{vsrc}, s[{sXP}:{sXP+1}] sc1")
        e(f"v_add_u32 v{vsrc}, 1024, v{vsrc}")
def gemm_main(e, blocks, acc, vXB, ring, swap):
    e.lgkm = []
    steps = [(u, kt) for u in range(14) for kt in range(2)]
    NR = len(ring)
    def rd(n):
        u, kt = steps[n]; r = ring[n % NR]
        e.ds(f"ds_read_b128 v[{r}:{r+3}], v{vXB} offset:{kt*14336 + u*1024}", f"x{n}")
    for n in range(NR): rd(n)
    for n, (u, kt) in enumerate(steps):
        e.wait_lgkm(f"x{n}")
        r = ring[n % NR]
        for i in range(7):
            b = blocks[i*7 + (u >> 1)]; wv = reg((b[0], b[1] + 4*(u & 1)), 4)
            a = acc(kt, i); c = "0" if u == 0 else f"v[{a}:{a+3}]"
            if swap: e(f"v_mfma_f32_16x16x32_bf16 v[{a}:{a+3}], {wv}, v[{r}:{r+3}], {c}")
            else:    e(f"v_mfma_f32_16x16x32_bf16 v[{a}:{a+3}], v[{r}:{r+3}], {wv}, {c}")
        if n + NR < len(steps): rd(n + NR)

def seg_loop_head(e, uid, vsrc):
    e(f"s_mov_b32 s{sSEG}, s{sJ}"); e(f"s_mov_b32 s{sBUF}, 0")
    e(f"s_mov_b32 s{sT3}, s{sSEG}"); e(f"s_mov_b32 s{sT4}, 0")
    dma_xa(e, vsrc)
    e.label(f"b_{uid}_seg")
    e("s_waitcnt vmcnt(0)"); e("s_barrier")
    e(f"s_add_u32 s{sT3}, s{sSEG}, {NJ}"); e(f"s_cmp_ge_u32 s{sT3}, 64"); e(f"s_cbranch_scc1 b_{uid}_nopf")
    e(f"s_xor_b32 s{sT4}, s{sBUF}, {XSEG}")
    dma_xa(e, vsrc)
    e.label(f"b_{uid}_nopf")
def seg_loop_tail(e, uid):
    e(f"s_add_u32 s{sSEG}, s{sSEG}, {NJ}"); e(f"s_xor_b32 s{sBUF}, s{sBUF}, {XSEG}")
    e(f"s_cmp_lt_u32 s{sSEG}, 64"); e(f"s_cbranch_scc1 b_{uid}_seg")

def signal_u(e, sseg, vA, vB_):
    e(f"s_lshl_b32 s{sT0}, s{sseg}, 2"); e(f"s_add_u32 s{sT0}, s{sT0}, {C_URDY}")
    signal_add(e, sT0, vA, vB_)
    e(f"s_lshl_b32 s{sT0}, s{sseg}, 7"); e(f"s_add_u32 s{sT0}, s{sT0}, {C_RDY2}")
    signal_add(e, sT0, vA, vB_)
def signal_add(e, soff, vA, vB_):
    signal_add.n += 1
    e(f"s_cmp_lg_u32 s{sWAVE}, 0"); e(f"s_cbranch_scc1 .Lsig{signal_add.n}")
    e(f"v_mov_b32 v{vA}, s{soff}"); e(f"v_mov_b32 v{vB_}, 1")
    e("s_mov_b64 exec, 1")
    e(f"global_atomic_add v{vA}, v{vB_}, s[{sCN}:{sCN+1}] sc1")
    e("s_mov_b64 exec, -1")
    e.label(f".Lsig{signal_add.n}")
signal_add.n = 0
def poll_sleep(e, sleep, fast, lab):
    if fast is not None:
        e(f"s_cmp_ge_u32 s{fast[0]}, {fast[1]}"); e(f"s_cbranch_scc1 {lab}")
    e(f"s_sleep {sleep}"); e(f"s_branch {lab}")
def wait_counter(e, soff, target, vA, vB_, lab, sleep=8, fast=None):
    e(f"s_cmp_lg_u32 s{sWAVE}, 0"); e(f"s_cbranch_scc1 {lab}_ok")
    e(f"v_mov_b32 v{vA}, s{soff}")
    e("s_mov_b64 exec, 1")
    e.label(lab)
    e(f"global_load_dword v{vB_}, v{vA}, s[{sCN}:{sCN+1}] sc1")
    tmo(e)
    e("s_waitcnt vmcnt(0)")
    e(f"v_cmp_ne_u32 vcc, {target}, v{vB_}")
    e(f"s_cbranch_vccz {lab}_got")
    poll_sleep(e, sleep, fast, lab)
    e.label(f"{lab}_got")
    e("s_mov_b64 exec, -1")
    e.label(f"{lab}_ok")
    e("s_barrier")

def wait_xall_wave(e, vA, vB_, lab, off=None, target=64):
    e(f"v_mov_b32 v{vA}, {C_XALL if off is None else off}")
    e("s_mov_b64 exec, 1")
    e.label(lab)
    e(f"global_load_dword v{vB_}, v{vA}, s[{sCN}:{sCN+1}] sc1")
    tmo(e)
    e("s_waitcnt vmcnt(0)")
    e(f"v_cmp_ne_u32 vcc, {target}, v{vB_}")
    e(f"s_cbranch_vccz {lab}_got")
    e("s_sleep 4"); e(f"s_branch {lab}")
    e.label(f"{lab}_got")
    e("s_mov_b64 exec, -1")

def wait_word(e, sbase, soff, vA, vB_, lab, sleep, fast=None):
    e(f"s_cmp_lg_u32 s{sWAVE}, 0"); e(f"s_cbranch_scc1 {lab}_ok")
    e(f"v_mov_b32 v{vA}, s{soff}")
    e("s_mov_b64 exec, 1")
    e.label(lab)
    e(f"global_load_dword v{vB_}, v{vA}, s[{sbase}:{sbase+1}] sc1")
    tmo(e)
    e("s_waitcnt vmcnt(0)")
    e(f"v_cmp_eq_u32 vcc, -1, v{vB_}")
    e(f"s_cbranch_vccz {lab}_got")
    poll_sleep(e, sleep, fast, lab)
    e.label(f"{lab}_got")
    e("s_mov_b64 exec, -1")
    e.label(f"{lab}_ok")
    e("s_barrier")

def u_worker(e):
    uid = "uw"
    worker_common_setup(e, 1)
    blocks = blocks_regs(32, 120, 17)
    load_weights(e, blocks, [i*TILE for i in range(7)], 4)
    dstamp(e, 12, 0, (116,117))
    wstamp(e, 0, (116,117))
    e(f"s_lshl_b32 s{sT0}, s{sJ}, 7"); e(f"s_add_u32 s{sT0}, s{sT0}, {C_XRDY}")
    wait_counter(e, sT0, 2, 4, 5, "b_uw_x0", 2)
    wstamp(e, 1, (116,117))
    vSRC, vXB, vUA = 4, 5, 6
    ACC = 8
    acc = lambda kt, i: ACC + (kt*7+i)*4
    ring = [64, 68, 72, 76]; vO = 80
    e(f"s_mov_b32 s{sPREV}, 255")
    e(f"s_mov_b32 s{sSEG}, s{sJ}"); e(f"s_mov_b32 s{sBUF}, 0")
    e(f"s_mov_b32 s{sT3}, s{sSEG}"); e(f"s_mov_b32 s{sT4}, 0")
    dma_xa(e, vSRC)
    e("s_waitcnt vmcnt(0)")
    e.label(f"b_{uid}_seg")
    e("s_barrier")
    e(f"s_add_u32 s{sT3}, s{sSEG}, {NJU}"); e(f"s_cmp_ge_u32 s{sT3}, 64"); e(f"s_cbranch_scc1 b_{uid}_nopf")
    e(f"s_cmp_lt_u32 s{sSEG}, {NJU}"); e(f"s_cbranch_scc1 b_{uid}_nopf")
    e(f"s_cmp_ge_u32 s{sSEG}, {3*NJU}"); e(f"s_cbranch_scc1 b_{uid}_xok")
    e(f"s_lshl_b32 s{sT0}, s{sT3}, 7"); e(f"s_add_u32 s{sT0}, s{sT0}, {C_XRDY}")
    wait_counter(e, sT0, 2, 4, 5, "b_uw_x1", 2)
    e(f"s_branch b_{uid}_xok2")
    e.label(f"b_{uid}_xok")
    e(f"s_cmp_ge_u32 s{sSEG}, {4*NJU}"); e(f"s_cbranch_scc1 b_{uid}_xok2")
    e(f"s_mov_b32 s{sT0}, {C_XALL}"); wait_counter(e, sT0, 64, 4, 5, "b_uw_x2", 8)
    e.label(f"b_{uid}_xok2")
    e(f"s_xor_b32 s{sT4}, s{sBUF}, {XSEG}")
    dma_xa(e, vSRC)
    e.label(f"b_{uid}_nopf")
    e(f"v_add_u32 v{vXB}, s{sBUF}, v{vL16}")
    gemm_main(e, blocks, acc, vXB, ring, False)
    e("s_waitcnt vmcnt(0)"); e("s_barrier")
    e(f"s_cmp_eq_u32 s{sPREV}, 255"); e(f"s_cbranch_scc1 b_{uid}_nosig")
    signal_u(e, sPREV, 80, 81)
    e.label(f"b_{uid}_nosig")
    e(f"s_mul_i32 s{sT0}, s{sSEG}, {U_SEG}")
    e(f"s_lshr_b32 s{sT1}, s{sH}, 1"); e(f"s_lshl_b32 s{sT1}, s{sT1}, 12"); e(f"s_add_u32 s{sT0}, s{sT0}, s{sT1}")
    e(f"s_and_b32 s{sT1}, s{sH}, 1"); e(f"s_lshl_b32 s{sT1}, s{sT1}, 10"); e(f"s_add_u32 s{sT0}, s{sT0}, s{sT1}")
    e(f"s_mul_i32 s{sT2}, s{sWAVE}, 7")
    for i in range(7):
        e(f"s_add_u32 s{sT1}, s{sT2}, {i}")
        e(f"s_lshr_b32 s{sT3}, s{sT1}, 1"); e(f"s_lshl_b32 s{sT3}, s{sT3}, 15")
        e(f"s_and_b32 s{sT1}, s{sT1}, 1"); e(f"s_lshl_b32 s{sT1}, s{sT1}, 11")
        e(f"s_add_u32 s{sT3}, s{sT3}, s{sT1}"); e(f"s_add_u32 s{sT3}, s{sT3}, s{sT0}")
        e(f"v_add_u32 v{vUA}, s{sT3}, v{vL16}")
        o = vO + 4*(i % 2)
        a0, a1 = acc(0,i), acc(1,i)
        e(f"v_cvt_pk_bf16_f32 v{o}, v{a0}, v{a0+1}"); e(f"v_cvt_pk_bf16_f32 v{o+1}, v{a0+2}, v{a0+3}")
        e(f"v_cvt_pk_bf16_f32 v{o+2}, v{a1}, v{a1+1}"); e(f"v_cvt_pk_bf16_f32 v{o+3}, v{a1+2}, v{a1+3}")
        e(f"global_store_dwordx4 v{vUA}, v[{o}:{o+3}], s[{sUP}:{sUP+1}] sc1")
    e(f"s_mov_b32 s{sPREV}, s{sSEG}")
    e(f"s_cmp_ge_u32 s{sSEG}, {2*NJU}"); e(f"s_cbranch_scc1 b_{uid}_lazy")
    e("s_waitcnt vmcnt(0)"); e("s_barrier")
    signal_u(e, sPREV, 80, 81)
    e(f"s_mov_b32 s{sPREV}, 255")
    e(f"s_cmp_ge_u32 s{sSEG}, {NJU}"); e(f"s_cbranch_scc1 b_{uid}_lazy")
    e(f"s_add_u32 s{sT3}, s{sSEG}, {NJU}")
    e(f"s_lshl_b32 s{sT0}, s{sT3}, 7"); e(f"s_add_u32 s{sT0}, s{sT0}, {C_XRDY}")
    wait_counter(e, sT0, 2, 4, 5, "b_uw_x3", 2)
    e(f"s_add_u32 s{sT3}, s{sSEG}, {NJU}"); e(f"s_xor_b32 s{sT4}, s{sBUF}, {XSEG}")
    dma_xa(e, vSRC)
    e("s_waitcnt vmcnt(0)")
    e.label(f"b_{uid}_lazy")
    if DIAG[0]:
        e(f"s_mov_b32 s{sSTEP}, s{sSEG}"); dstamp(e, 13, 0, (116,117), step=0)
        e(f"s_cmp_ge_u32 s{sSEG}, {NJU}"); e("s_cbranch_scc1 .Lws2"); wstamp(e, 2, (116,117)); e.label(".Lws2")
    e(f"s_add_u32 s{sSEG}, s{sSEG}, {NJU}"); e(f"s_xor_b32 s{sBUF}, s{sBUF}, {XSEG}")
    e(f"s_cmp_lt_u32 s{sSEG}, 64"); e(f"s_cbranch_scc1 b_{uid}_seg")
    e("s_waitcnt vmcnt(0)"); e("s_barrier")
    e(f"s_cmp_eq_u32 s{sPREV}, 255"); e(f"s_cbranch_scc1 b_{uid}_fin")
    signal_u(e, sPREV, 80, 81)
    e.label(f"b_{uid}_fin")
    dstamp(e, 14, 0, (116,117))
    e("s_endpgm")

def z_worker(e):
    worker_common_setup(e, 1)
    blocks = blocks_regs(32, 120, 17)
    e(f"s_mov_b32 s{sT0}, {C_XALL}"); wait_counter(e, sT0, 64, 4, 5, "b_zw_xall", 8)
    load_weights(e, blocks, [i*TILE for i in range(7)], 4)
    vIDX_, am = vIDX, 12
    ACC = 40
    vZA, vT = 4, 5
    e(f"s_mov_b32 s{sSEG}, s{sJ}")
    e.label("b_zw_seg")
    e(f"s_mul_i32 s{sT0}, s{sSEG}, {W.MEMX_STRIDE}")
    e(f"s_add_u32 s{sT1}, s{sT0}, 7164")
    wait_word(e, sMXI, sT1, 6, 7, "b_zw_pre", OPT.get('zsleep', 8), fast=(sSEG, 61))
    e(f"v_add_u32 v{vT}, s{sT0}, v{vL16}"); e(f"v_add_u32 v6, 4096, v{vT}")
    e.label("b_zw_poll")
    for t in range(7):
        if t < 4: e(f"global_load_dwordx4 v[{am+4*t}:{am+4*t+3}], v{vT}, s[{sMXI}:{sMXI+1}] offset:{t*1024} sc1")
        else:     e(f"global_load_dwordx4 v[{am+4*t}:{am+4*t+3}], v6, s[{sMXI}:{sMXI+1}] offset:{(t-4)*1024} sc1")
    tmo(e)
    for i in range(7):
        for l in zero4(ACC+4*i): e(l)
    e("s_waitcnt vmcnt(0)")
    for l in sentinel_tree([am+k for k in range(28)], 7): e(l)
    e("s_cbranch_vccz b_zw_ok")
    e("s_sleep 2"); e("s_branch b_zw_poll")
    e.label("b_zw_ok")
    for t in range(7):
        for i in range(7):
            e(f"v_smfmac_f32_16x16x64_bf16 v[{ACC+4*i}:{ACC+4*i+3}], v[{am+4*t}:{am+4*t+3}], {reg(blocks[i*7+t],8)}, v{vIDX_}")
    e(f"s_mul_i32 s{sT0}, s{sSEG}, {W.ZM_SEG}")
    e(f"s_lshr_b32 s{sT1}, s{sH}, 2"); e(f"s_lshl_b32 s{sT1}, s{sT1}, 12"); e(f"s_add_u32 s{sT0}, s{sT0}, s{sT1}")
    e(f"s_lshr_b32 s{sT1}, s{sH}, 1"); e(f"s_and_b32 s{sT1}, s{sT1}, 1"); e(f"s_lshl_b32 s{sT1}, s{sT1}, 10"); e(f"s_add_u32 s{sT0}, s{sT0}, s{sT1}")
    e(f"s_and_b32 s{sT1}, s{sH}, 1"); e(f"s_lshl_b32 s{sT1}, s{sT1}, 3"); e(f"s_add_u32 s{sT0}, s{sT0}, s{sT1}")
    e(f"s_mul_i32 s{sT2}, s{sWAVE}, 7")
    e.nop(2)
    for i in range(7):
        e(f"s_add_u32 s{sT1}, s{sT2}, {i}")
        e(f"s_lshr_b32 s{sT3}, s{sT1}, 1"); e(f"s_lshl_b32 s{sT3}, s{sT3}, 14")
        e(f"s_and_b32 s{sT1}, s{sT1}, 1"); e(f"s_lshl_b32 s{sT1}, s{sT1}, 11")
        e(f"s_add_u32 s{sT3}, s{sT3}, s{sT1}"); e(f"s_add_u32 s{sT3}, s{sT3}, s{sT0}")
        e(f"v_add_u32 v{vZA}, s{sT3}, v{vL16}")
        a = ACC+4*i; o = 8 + 2*(i % 2)
        e(f"v_cvt_pk_bf16_f32 v{o}, v{a}, v{a+1}"); e(f"v_cvt_pk_bf16_f32 v{o+1}, v{a+2}, v{a+3}")
        e(f"global_store_dwordx2 v{vZA}, v[{o}:{o+1}], s[{sZM}:{sZM+1}] sc1")
    e("s_waitcnt vmcnt(0)"); e("s_barrier")
    e(f"s_lshl_b32 s{sT0}, s{sSEG}, 7"); e(f"s_add_u32 s{sT0}, s{sT0}, {C_RDY2}")
    signal_add(e, sT0, 80, 81)
    e(f"s_add_u32 s{sSEG}, s{sSEG}, {NJZ}"); e(f"s_cmp_lt_u32 s{sSEG}, 64"); e("s_cbranch_scc1 b_zw_seg")
    e("s_endpgm")

def pv_loop(e):
    vA, vB_, vT, vRes = 4, 5, 6, 8
    PX, PM, UU, ZZ, ACC = 16, 48, 64, 96, 112
    vRW, vRR, vXO, vOUTA = 128, 129, 130, 131
    sTASK, sC = sPREV, sJ
    e(f"s_mov_b32 s{sTASK}, s{sROLE}")
    e(f"s_lshl_b32 s{sT0}, s{sWAVE}, 12"); e(f"v_add_u32 v{vRW}, s{sT0}, v{vL16}")
    e("v_lshrrev_b32 v10, 3, v0"); e("v_and_b32 v11, 7, v0")
    e("v_lshrrev_b32 v12, 4, v10"); e("v_lshlrev_b32 v12, 11, v12")
    e("v_lshrrev_b32 v13, 2, v11"); e("v_lshl_add_u32 v12, v13, 10, v12")
    e("v_and_b32 v13, 15, v10"); e("v_lshrrev_b32 v13, 2, v13"); e("v_lshl_add_u32 v12, v13, 8, v12")
    e("v_and_b32 v13, 3, v11"); e("v_lshl_add_u32 v12, v13, 6, v12")
    e("v_and_b32 v13, 3, v10"); e(f"v_lshl_add_u32 v{vRR}, v13, 2, v12")
    e(f"v_mul_u32_u24 v{vXO}, 896, v10"); e(f"v_lshl_add_u32 v{vXO}, v11, 3, v{vXO}")
    e.label("b_pv_task")
    e(f"s_mul_hi_u32 s{sSEG}, s{sTASK}, {(2**32+13)//14}")
    e(f"s_mul_i32 s{sT0}, s{sSEG}, 14"); e(f"s_sub_u32 s{sC}, s{sTASK}, s{sT0}")
    e(f"s_lshl_b32 s{sT0}, s{sSEG}, 2"); e(f"s_add_u32 s{sT0}, s{sT0}, {C_URDY}")
    wait_counter(e, sT0, 16, vA, vB_, "b_pv_wu", 10)
    e(f"s_mul_i32 s{sT0}, s{sSEG}, {U_SEG}"); e(f"s_lshl_b32 s{sT1}, s{sC}, 15"); e(f"s_add_u32 s{sT0}, s{sT0}, s{sT1}")
    e(f"s_lshl_b32 s{sT1}, s{sWAVE}, 13"); e(f"s_add_u32 s{sT0}, s{sT0}, s{sT1}")
    e(f"v_add_u32 v{vT}, s{sT0}, v{vL16}")
    for k in range(8):
        e(f"global_load_dwordx4 v[{UU+4*k}:{UU+4*k+3}], v{vT}, s[{sUP}:{sUP+1}] offset:{(k%4)*1024} sc1")
        if k == 3: e(f"v_add_u32 v{vT}, 4096, v{vT}")
    e(f"s_mul_i32 s{sT0}, s{sSEG}, {32*896}"); e(f"s_lshl_b32 s{sT1}, s{sC}, 6"); e(f"s_add_u32 s{sT0}, s{sT0}, s{sT1}")
    e(f"v_add_u32 v{vOUTA}, s{sT0}, v{vXO}")
    e(f"global_load_dwordx2 v[{vRes}:{vRes+1}], v{vOUTA}, s[{sRES}:{sRES+1}] sc1")
    e(f"s_lshl_b32 s{sT0}, s{sSEG}, 7"); e(f"s_add_u32 s{sT0}, s{sT0}, {C_RDY2}")
    wait_counter(e, sT0, 48, vA, vB_, "b_pv_wp", OPT.get('pvsleep', 10), fast=(sSEG, 61))
    e(f"s_mul_i32 s{sT0}, s{sSEG}, {W.PX_SEG}"); e(f"s_lshl_b32 s{sT1}, s{sWAVE}, 13"); e(f"s_add_u32 s{sT1}, s{sT1}, s{sT0}")
    e(f"v_add_u32 v{vT}, s{sT1}, v{vL16}")
    for k in range(8):
        e(f"global_load_dwordx4 v[{PX+4*k}:{PX+4*k+3}], v{vT}, s[{sPX}:{sPX+1}] offset:{(k%4)*1024} sc1")
        if k == 3: e(f"v_add_u32 v{vT}, 4096, v{vT}")
    e(f"s_lshl_b32 s{sT1}, s{sWAVE}, 12"); e(f"s_add_u32 s{sT1}, s{sT1}, s{sT0}"); e(f"s_add_u32 s{sT1}, s{sT1}, 32768")
    e(f"v_add_u32 v{vT}, s{sT1}, v{vL16}")
    for k in range(4): e(f"global_load_dwordx4 v[{PM+4*k}:{PM+4*k+3}], v{vT}, s[{sPX}:{sPX+1}] offset:{k*1024} sc1")
    e(f"s_mul_i32 s{sT0}, s{sSEG}, {W.ZM_SEG}"); e(f"s_lshl_b32 s{sT1}, s{sC}, 14"); e(f"s_add_u32 s{sT0}, s{sT0}, s{sT1}")
    e(f"s_lshl_b32 s{sT1}, s{sWAVE}, 12"); e(f"s_add_u32 s{sT0}, s{sT0}, s{sT1}")
    e(f"v_add_u32 v{vT}, s{sT0}, v{vL16}")
    for k in range(4): e(f"global_load_dwordx4 v[{ZZ+4*k}:{ZZ+4*k+3}], v{vT}, s[{sZM}:{sZM+1}] offset:{k*1024} sc1")
    e("s_waitcnt vmcnt(0)")
    for qt in range(2):
        for nt in range(2):
            a = ACC + 4*(2*qt+nt); first = True
            for hh in range(4):
                kp, b = hh >> 1, hh & 1
                c = "0" if first else f"v[{a}:{a+3}]"; first = False
                e(f"v_mfma_f32_16x16x32_bf16 v[{a}:{a+3}], v[{PX+4*(2*hh+qt)}:{PX+4*(2*hh+qt)+3}], v[{UU+4*(4*kp+2*nt+b)}:{UU+4*(4*kp+2*nt+b)+3}], {c}")
            for pp in range(2):
                e(f"v_mfma_f32_16x16x32_bf16 v[{a}:{a+3}], v[{PM+4*(2*pp+qt)}:{PM+4*(2*pp+qt)+3}], v[{ZZ+4*(2*nt+pp)}:{ZZ+4*(2*nt+pp)+3}], v[{a}:{a+3}]")
    e.nop(8)
    for k in range(4): e(f"ds_write_b128 v{vRW}, v[{ACC+4*k}:{ACC+4*k+3}] offset:{k*1024}")
    e("s_waitcnt lgkmcnt(0)"); e("s_barrier")
    for ww in range(4):
        for k in range(4): e(f"ds_read_b32 v{16+4*ww+k}, v{vRR} offset:{ww*4096 + k*16}")
    e("s_waitcnt lgkmcnt(0)")
    for k in range(4):
        e(f"v_add_f32 v{16+k}, v{16+k}, v{20+k}"); e(f"v_add_f32 v{24+k}, v{24+k}, v{28+k}"); e(f"v_add_f32 v{16+k}, v{16+k}, v{24+k}")
    for h2 in range(2):
        e(f"v_cvt_pk_bf16_f32 v32, v{16+2*h2}, v{17+2*h2}")
        e("v_lshlrev_b32 v33, 16, v32"); e("v_and_b32 v34, 0xffff0000, v32")
        e(f"v_lshlrev_b32 v35, 16, v{vRes+h2}"); e(f"v_and_b32 v36, 0xffff0000, v{vRes+h2}")
        e("v_add_f32 v33, v33, v35"); e("v_add_f32 v34, v34, v36")
        e(f"v_cvt_pk_bf16_f32 v{38+h2}, v33, v34")
    e(f"global_store_dwordx2 v{vOUTA}, v[38:39], s[{sOUT}:{sOUT+1}]")
    e(f"s_add_u32 s{sTASK}, s{sTASK}, 64"); e(f"s_cmp_lt_u32 s{sTASK}, 896"); e("s_cbranch_scc1 b_pv_task")
    dstamp(e, 15, 0, (116,117)); dstamp(e, 18, 63, (116,117)); dstamp(e, 19, 50, (116,117))
    e("s_endpgm")

def fcpv_worker(e):
    smap = {2: sROLE, 3: sWAVE}
    for k in range(6, 24): smap[k] = 70 + k
    k_fft.fc_body(e, smap, "sc1")
    e("s_waitcnt vmcnt(0)"); e("s_barrier")
    for p in range(2):
        e(f"s_lshr_b32 s{sT0}, s{sROLE}, 2"); e(f"s_lshl_b32 s{sT0}, s{sT0}, 2"); e(f"s_lshr_b32 s{sT1}, s{sROLE}, 1"); e(f"s_and_b32 s{sT1}, s{sT1}, 1")
        e(f"s_add_u32 s{sT0}, s{sT0}, s{sT1}"); e(f"s_add_u32 s{sT0}, s{sT0}, {2*p}")
        e(f"s_lshl_b32 s{sT0}, s{sT0}, 7"); e(f"s_add_u32 s{sT0}, s{sT0}, {C_XRDY}")
        signal_add(e, sT0, 4, 5)
    e(f"s_mov_b32 s{sT0}, {C_XALL}"); signal_add(e, sT0, 4, 5)
    dstamp(e, 20, 0, (116,117)); wstamp(e, 3, (116,117))
    e(f"v_lshlrev_b32 v{vL16}, 4, v{vLANE}")
    pv_loop(e)

def p_worker(e):
    if OPT.get('nopw'): e("s_endpgm")
    uid = "pw"
    worker_common_setup(e, 0)
    blocks = blocks_regs(32, 120, 17)
    e(f"s_mov_b32 s{sT0}, {C_XALL}"); wait_counter(e, sT0, 64, 4, 5, "b_pw_xall", 8)
    load_weights(e, blocks, [i*TILE for i in range(7)], 4)
    dstamp(e, 16, 0, (116,117))
    vSRC, vXB, vKA, vMA = 4, 5, 6, 7
    ACC = 8
    acc = lambda qt, i: ACC + (qt*7+i)*4
    ring = [64, 68, 72, 76]
    RB = 80
    SA = 64
    vT = 112; vT2 = 113; vT3 = 114; vMEM = 116
    e(f"v_and_b32 v{vT}, 15, v{vLANE}"); e(f"v_lshrrev_b32 v{vT2}, 4, v{vLANE}")
    e(f"v_lshlrev_b32 v{vKA}, 4, v{vT}")
    e(f"v_lshrrev_b32 v{vT3}, 1, v{vT2}"); e(f"v_lshl_add_u32 v{vKA}, v{vT3}, 8, v{vKA}")
    e(f"v_and_b32 v{vT3}, 1, v{vT2}"); e(f"v_lshl_add_u32 v{vKA}, v{vT3}, 3, v{vKA}")
    e(f"s_mul_i32 s{sT0}, s{sWAVE}, 3584"); e(f"v_add_u32 v{vKA}, s{sT0}, v{vKA}")
    e(f"v_and_b32 v{vMA}, 7, v{vT}"); e(f"v_mul_u32_u24 v{vMA}, 912, v{vMA}")
    e(f"v_lshl_add_u32 v{vMA}, v{vT2}, 3, v{vMA}")
    e(f"s_mul_i32 s{sT0}, s{sWAVE}, 224"); e(f"s_add_u32 s{sT0}, s{sT0}, {W_MEMR}"); e(f"v_add_u32 v{vMA}, s{sT0}, v{vMA}")
    seg_loop_head(e, uid, vSRC)
    e(f"v_add_u32 v{vXB}, s{sBUF}, v{vL16}")
    gemm_main(e, blocks, acc, vXB, ring, True)
    e.nop(8)
    for qt in range(2):
        for p in range(4):
            o = RB + 16*qt + 4*p
            a0 = acc(qt, 2*p)
            e(f"v_cvt_pk_bf16_f32 v{o}, v{a0}, v{a0+1}"); e(f"v_cvt_pk_bf16_f32 v{o+1}, v{a0+2}, v{a0+3}")
            if p < 3:
                a1 = acc(qt, 2*p+1)
                e(f"v_cvt_pk_bf16_f32 v{o+2}, v{a1}, v{a1+1}"); e(f"v_cvt_pk_bf16_f32 v{o+3}, v{a1+2}, v{a1+3}")
            else:
                e(f"v_mov_b64 v[{o+2}:{o+3}], 0")
    S = lambda kt, qt: 8 + (kt*2+qt)*4
    e(f"v_add_u32 v{vT}, s{sBUF}, v{vKA}")
    def key_reads(kt, p, dst):
        i0, i1 = 2*p, min(2*p+1, 6)
        if kt == 0:
            e(f"ds_read_b64 v[{dst}:{dst+1}], v{vMA} offset:{i0*32}"); e(f"ds_read_b64 v[{dst+2}:{dst+3}], v{vMA} offset:{i1*32}")
        else:
            e(f"ds_read_b64 v[{dst}:{dst+1}], v{vT} offset:{(kt-1)*14336 + i0*512}"); e(f"ds_read_b64 v[{dst+2}:{dst+3}], v{vT} offset:{(kt-1)*14336 + i1*512}")
    def s_mfmas(kts):
        for kt in kts:
            for p in range(4): key_reads(kt, p, 32+4*p)
            e("s_waitcnt lgkmcnt(0)")
            for p in range(4):
                for qt in range(2):
                    a = S(kt, qt); c = "0" if p == 0 else f"v[{a}:{a+3}]"
                    e(f"v_mfma_f32_16x16x32_bf16 v[{a}:{a+3}], v[{32+4*p}:{35+4*p}], v[{RB+16*qt+4*p}:{RB+16*qt+4*p+3}], {c}")
            e.nop(2)
    s_mfmas([1, 2])
    e(f"s_mul_i32 s{sT0}, s{sSEG}, {W.MEMX_STRIDE}")
    e(f"s_add_u32 s{sT1}, s{sT0}, 7164")
    wait_word(e, sMX, sT1, 56, 57, "b_pw_pre", OPT.get('psleep', 8), fast=(sSEG, 61))
    e(f"v_lshlrev_b32 v{vT2}, 4, v0"); e(f"v_add_u32 v{vT2}, s{sT0}, v{vT2}")
    e(f"v_add_u32 v{vT3}, 256, v0"); e(f"v_min_u32 v{vT3}, 447, v{vT3}"); e(f"v_lshlrev_b32 v{vT3}, 4, v{vT3}"); e(f"v_add_u32 v{vT3}, s{sT0}, v{vT3}")
    e.label("b_pw_wm")
    e(f"global_load_dwordx4 v[48:51], v{vT2}, s[{sMX}:{sMX+1}] sc1")
    e(f"global_load_dwordx4 v[52:55], v{vT3}, s[{sMX}:{sMX+1}] sc1")
    tmo(e)
    e("s_waitcnt vmcnt(0)")
    for l in sentinel_tree(list(range(48, 56)), 56): e(l)
    e("s_cbranch_vccz b_pw_wm_ok")
    e("s_sleep 2"); e("s_branch b_pw_wm")
    e.label("b_pw_wm_ok")
    for k,(src, dat) in enumerate(((0, 48), (1, 52))):
        if k == 0: e("v_mov_b32 v56, v0")
        else:
            e("v_add_u32 v56, 256, v0"); e("v_min_u32 v56, 447, v56")
        e(f"s_mov_b32 s{sT1}, {(2**32+55)//56}")
        e(f"v_mul_hi_u32 v57, v56, s{sT1}"); e("v_mul_u32_u24 v58, 56, v57"); e("v_sub_u32 v58, v56, v58")
        e("v_mul_u32_u24 v57, 912, v57"); e("v_lshl_add_u32 v57, v58, 4, v57")
        e(f"v_add_u32 v57, {W_MEMR}, v57")
        e(f"ds_write_b128 v57, v[{dat}:{dat+3}]")
    e("s_waitcnt lgkmcnt(0)"); e("s_barrier")
    s_mfmas([0])
    e(f"s_mul_i32 s{sT0}, s{sWAVE}, 6144"); e(f"s_add_u32 s{sT0}, s{sT0}, {W_RED}")
    e(f"v_add_u32 v{vT2}, s{sT0}, v{vL16}")
    e.nop(6)
    for k in range(6): e(f"ds_write_b128 v{vT2}, v[{8+4*k}:{11+4*k}] offset:{k*1024}")
    e("s_waitcnt lgkmcnt(0)"); e("s_barrier")
    e(f"s_cmp_ge_u32 s{sWAVE}, 2"); e("s_cbranch_scc1 b_pw_fin")
    e(f"s_lshl_b32 s{sT0}, s{sWAVE}, 10"); e(f"s_add_u32 s{sT0}, s{sT0}, {W_RED}")
    e(f"v_add_u32 v{vT2}, s{sT0}, v{vL16}")
    for ww in range(4):
        for kt in range(3): e(f"ds_read_b128 v[{64+12*ww+4*kt}:{67+12*ww+4*kt}], v{vT2} offset:{ww*6144 + kt*2048}")
    e("s_waitcnt lgkmcnt(0)")
    for k in range(12):
        e(f"v_add_f32 v{8+k}, v{64+k}, v{76+k}"); e(f"v_add_f32 v{24+k}, v{88+k}, v{100+k}"); e(f"v_add_f32 v{8+k}, v{8+k}, v{24+k}")
    e(f"v_and_b32 v40, 15, v{vLANE}"); e(f"v_lshrrev_b32 v41, 4, v{vLANE}"); e("v_lshlrev_b32 v41, 2, v41")
    e("v_mov_b32 v42, 0xf149f2ca")
    e(f"s_cmp_eq_u32 s{sWAVE}, 0"); e("s_cbranch_scc0 b_pw_q1")
    for r in range(4):
        e(f"v_add_u32 v43, {r}, v41"); e("v_cmp_le_u32 vcc, v43, v40"); e("s_nop 1")
        e(f"v_cndmask_b32 v{12+r}, v42, v{12+r}, vcc"); e(f"v_mov_b32 v{16+r}, v42")
    e("s_branch b_pw_sm")
    e.label("b_pw_q1")
    for r in range(4):
        e(f"v_add_u32 v43, {r}, v41"); e("v_cmp_le_u32 vcc, v43, v40"); e("s_nop 1")
        e(f"v_cndmask_b32 v{16+r}, v42, v{16+r}, vcc")
    e.label("b_pw_sm")
    e("v_max3_f32 v44, v8, v9, v10")
    for k in range(11, 19, 2): e(f"v_max3_f32 v44, v44, v{k}, v{k+1}")
    e("v_max_f32 v44, v44, v19")
    for sw in ("v_permlane16_swap_b32", "v_permlane32_swap_b32"):
        e("v_mov_b32 v45, v44"); e.nop(2); e(f"{sw} v44, v45"); e("v_max_f32 v44, v44, v45")
    for k in range(12): e(f"v_sub_f32 v{8+k}, v{8+k}, v44")
    for k in range(12): e(f"v_exp_f32 v{8+k}, v{8+k}")
    e.nop(1)
    e("v_add_f32 v46, v8, v9"); e("v_add_f32 v47, v10, v11"); e("v_add_f32 v46, v46, v47"); e("v_mul_f32 v46, 0.5, v46")
    for k in range(12, 20): e(f"v_add_f32 v46, v46, v{k}")
    for sw in ("v_permlane16_swap_b32", "v_permlane32_swap_b32"):
        e("v_mov_b32 v45, v46"); e.nop(2); e(f"{sw} v46, v45"); e("v_add_f32 v46, v46, v45")
    e("v_rcp_f32 v46, v46"); e.nop(1)
    for k in range(12): e(f"v_mul_f32 v{8+k}, v{8+k}, v46")
    for k in range(6): e(f"v_cvt_pk_bf16_f32 v{48+k}, v{8+2*k}, v{9+2*k}")
    e(f"s_mul_i32 s{sT0}, s{sSEG}, {W.PX_SEG}"); e(f"s_lshl_b32 s{sT1}, s{sWAVE}, 10"); e(f"s_add_u32 s{sT0}, s{sT0}, s{sT1}")
    e(f"s_lshl_b32 s{sT1}, s{sH}, 11"); e(f"s_add_u32 s{sT1}, s{sT1}, s{sT0}")
    e(f"v_add_u32 v{vT2}, s{sT1}, v{vL16}")
    e(f"v_mov_b32 v54, v50"); e("v_mov_b32 v55, v51"); e("v_mov_b32 v56, v52"); e("v_mov_b32 v57, v53")
    e(f"global_store_dwordx4 v{vT2}, v[54:57], s[{sPX}:{sPX+1}] sc1")
    e(f"s_lshr_b32 s{sT1}, s{sH}, 1"); e(f"s_lshl_b32 s{sT1}, s{sT1}, 11"); e(f"s_add_u32 s{sT1}, s{sT1}, s{sT0}")
    e(f"s_and_b32 s{sT2}, s{sH}, 1"); e(f"s_lshl_b32 s{sT2}, s{sT2}, 3"); e(f"s_add_u32 s{sT1}, s{sT1}, s{sT2}"); e(f"s_add_u32 s{sT1}, s{sT1}, 32768")
    e(f"v_add_u32 v{vT3}, s{sT1}, v{vL16}")
    e(f"global_store_dwordx2 v{vT3}, v[48:49], s[{sPX}:{sPX+1}] sc1")
    e.label("b_pw_fin")
    e("s_waitcnt vmcnt(0)"); e("s_barrier")
    e(f"s_lshl_b32 s{sT0}, s{sSEG}, 7"); e(f"s_add_u32 s{sT0}, s{sT0}, {C_RDY2}")
    signal_add(e, sT0, 48, 49)
    seg_loop_tail(e, uid)
    dstamp(e, 17, 0, (116,117))
    e("s_endpgm")

def gen(e):
    global NJ, NJU, NJZ
    NJ = OPT.get('nj', 3); NJU = OPT.get('nju', 2); NJZ = OPT.get('njz', 2)
    for L in range(2):
        kernel_head(e, f"b{L}_kernel")
        e(f"s_mov_b32 s{sLAY}, {L}")
        if L == 0: e("s_branch b_body")
    e.label("b_body")
    e("s_cmp_ge_u32 s2, 256"); e("s_cbranch_scc1 b_end")
    load_ptr(e, sWS, 'ws'); load_ptr(e, sOUT, 'out')
    if DIAG[0]:
        load_ptr(e, sDBG, 'dbg'); e("s_memrealtime s[96:97]")
    lane_wave(e, vLANE, sWAVE, 4)
    e(f"v_lshlrev_b32 v{vL16}, 4, v{vLANE}")
    e(f"s_getreg_b32 s{sXCC}, hwreg(HW_REG_XCC_ID)"); e(f"s_and_b32 s{sXCC}, s{sXCC}, 15")
    e("s_waitcnt lgkmcnt(0)")
    e(f"s_mul_i32 s{sT0}, s{sLAY}, 32768"); e(f"s_add_u32 s{sT0}, s{sT0}, {W.CNT}")
    e(f"s_add_u32 s{sCN}, s{sWS}, s{sT0}"); e(f"s_addc_u32 s{sCN+1}, s{sWS+1}, 0")
    ws_ptr(e, sW, sWS, W.WIMG); ws_ptr(e, sXP, sWS, W.XA); ws_ptr(e, sUP, sWS, W.UIMG); ws_ptr(e, sZM, sWS, W.ZM); ws_ptr(e, sPX, sWS, W.PX)
    def lay_ptr(dst, o0, o1):
        e(f"s_cmp_eq_u32 s{sLAY}, 0"); e(f"s_mov_b32 s{sT1}, {o1}"); e(f"s_cselect_b32 s{sT0}, {o0}, s{sT1}")
        e(f"s_add_u32 s{dst}, s{sWS}, s{sT0}"); e(f"s_addc_u32 s{dst+1}, s{sWS+1}, 0")
    lay_ptr(sMEM, W.MEMB[0] + 3072, W.MEMB[1] + 3072); lay_ptr(sP, W.PB[0], W.PB[1]); lay_ptr(sMX, W.MEMX[0], W.MEMX[1])
    lay_ptr(sRES, W.X1, W.X3); lay_ptr(sMXI, W.MEMXI[0], W.MEMXI[1])
    e(f"s_add_u32 s{sT0}, s{sWS}, {W.X2}"); e(f"s_addc_u32 s{sT1}, s{sWS+1}, 0")
    e(f"s_cmp_eq_u32 s{sLAY}, 0")
    e(f"s_cselect_b32 s{sOUT}, s{sT0}, s{sOUT}"); e(f"s_cselect_b32 s{sOUT+1}, s{sT1}, s{sOUT+1}")
    e(f"s_mov_b32 s{sTMO}, 4000000"); e(f"s_mov_b32 s{sSTEP}, 0")
    e(f"s_mov_b32 s{sM56}, -1"); e(f"s_mov_b32 s{sM56+1}, 0x00ffffff")
    e(f"s_mov_b32 s{sM57}, -1"); e(f"s_mov_b32 s{sM57+1}, 0x01ffffff")
    e(f"s_cmp_lg_u32 s{sWAVE}, 0"); e("s_cbranch_scc1 b_el_wait")
    e("s_mov_b64 exec, 1")
    e(f"s_lshl_b32 s{sT0}, s{sXCC}, 7"); e(f"v_mov_b32 v4, s{sT0}"); e("v_mov_b32 v5, 1")
    e(f"global_atomic_add v6, v4, v5, s[{sCN}:{sCN+1}] sc0 sc1")
    e("s_waitcnt vmcnt(0)")
    e("v_cmp_eq_u32 vcc, 31, v6"); e("s_cbranch_vccz b_el_poll")
    e(f"s_add_u32 s{sT0}, s{sXCC}, 1"); e(f"v_mov_b32 v8, s{sT0}"); e("v_mov_b32 v9, 0"); e(f"v_mov_b32 v4, {C_WIN}")
    e(f"global_atomic_cmpswap v4, v[8:9], s[{sCN}:{sCN+1}] sc1")
    e.label("b_el_poll")
    e(f"v_mov_b32 v4, {C_WIN}")
    e(f"global_load_dword v7, v4, s[{sCN}:{sCN+1}] sc1")
    tmo(e)
    e("s_waitcnt vmcnt(0)")
    e("v_cmp_eq_u32 vcc, 0, v7"); e("s_cbranch_vccnz b_el_poll")
    e(f"s_add_u32 s{sT0}, s{sXCC}, 1")
    e(f"v_cmp_eq_u32 vcc, s{sT0}, v7"); e("v_cmp_ge_u32 s[50:51], 31, v6"); e("s_and_b64 vcc, vcc, s[50:51]")
    e("s_cbranch_vccnz b_el_chain")
    e(f"v_mov_b32 v4, {C_SLOT}"); e("v_mov_b32 v5, 1")
    e(f"global_atomic_add v6, v4, v5, s[{sCN}:{sCN+1}] sc0 sc1")
    e("s_waitcnt vmcnt(0)")
    e("v_add_u32 v6, 32, v6")
    e.label("b_el_chain")
    e("v_mov_b32 v4, 0")
    e("ds_write_b32 v4, v6")
    e("s_waitcnt lgkmcnt(0)")
    e("s_mov_b64 exec, -1")
    e.label("b_el_wait")
    e("s_barrier")
    e("v_mov_b32 v4, 0"); e("ds_read_b32 v6, v4"); e("s_waitcnt lgkmcnt(0)")
    e(f"v_readfirstlane_b32 s{sROLE}, v6"); e("s_nop 3")
    e("s_barrier")
    e(f"v_and_b32 v4, 8, v{vLANE}"); e("v_cmp_ne_u32 vcc, 0, v4"); e("v_mov_b32 v5, 0x4444"); e("v_mov_b32 v6, 0xeeee"); e("s_nop 1")
    e(f"v_cndmask_b32 v{vIDX}, v5, v6, vcc")
    e(f"s_cmp_ge_u32 s{sROLE}, 32"); e("s_cbranch_scc1 b_worker")
    tr_init(e)
    e(f"s_cmp_eq_u32 s{sROLE}, 30"); e("s_cbranch_scc1 b_helper")
    e(f"s_cmp_eq_u32 s{sROLE}, 31"); e("s_cbranch_scc1 b_pub")
    e(f"s_cmp_ge_u32 s{sROLE}, 16"); e("s_cbranch_scc1 b_value")
    e(f"s_mul_i32 s{sT0}, s{sROLE}, {HEAD_IMG}"); e(f"s_add_u32 s{sW}, s{sW}, s{sT0}"); e(f"s_addc_u32 s{sW+1}, s{sW+1}, 0")
    for w in range(3):
        e(f"s_cmp_eq_u32 s{sWAVE}, {w}"); e(f"s_cbranch_scc1 b_sp{w}")
    e("s_branch b_sw")
    e.label("b_value")
    e(f"s_sub_u32 s{sT0}, s{sROLE}, 16"); e(f"s_mul_i32 s{sT0}, s{sT0}, {2*TILE}"); e(f"s_add_u32 s{sT0}, s{sT0}, {16*HEAD_IMG}")
    e(f"s_add_u32 s{sW}, s{sW}, s{sT0}"); e(f"s_addc_u32 s{sW+1}, s{sW+1}, 0")
    for w in range(3):
        e(f"s_cmp_eq_u32 s{sWAVE}, {w}"); e(f"s_cbranch_scc1 b_vw{w}")
    e("s_branch b_vw3")
    e.label("b_worker")
    e(f"s_sub_u32 s{sROLE}, s{sROLE}, 32")
    e(f"s_cmp_lt_u32 s{sROLE}, 64"); e("s_cbranch_scc1 b_fcpv")
    e(f"s_sub_u32 s{sROLE}, s{sROLE}, 64")
    e(f"s_cmp_lt_u32 s{sROLE}, {16*NJU}"); e("s_cbranch_scc1 b_uw")
    e(f"s_sub_u32 s{sROLE}, s{sROLE}, {16*NJU}")
    e(f"s_cmp_lt_u32 s{sROLE}, {16*NJZ}"); e("s_cbranch_scc1 b_zw")
    e(f"s_sub_u32 s{sROLE}, s{sROLE}, {16*NJZ}")
    e(f"s_cmp_lt_u32 s{sROLE}, {16*NJ}"); e("s_cbranch_scc1 b_pw")
    e("s_endpgm")
    for w in range(3):
        e.label(f"b_sp{w}"); score_producer(e, w)
    e.label("b_sw"); score_swave(e)
    for w in range(4):
        e.label(f"b_vw{w}"); value_wave(e, w)
    e.label("b_helper"); helper(e)
    e.label("b_pub"); publisher(e)
    e.label("b_uw"); u_worker(e)
    e.label("b_zw"); z_worker(e)
    e.label("b_pw"); p_worker(e)
    e.label("b_fcpv"); fcpv_worker(e)
    e.label(FAIL)
    e.label("b_end")
    e("s_endpgm")
    for L in range(2): e.raw(kernel_desc(f"b{L}_kernel", 512, 256))
```

```python
from common import *
import k_fft
NSTEP = 63
MEM_STRIDE, P_STRIDE, U_SEG, TILE, HEAD_IMG = W.MEM_STRIDE, W.P_STRIDE, W.U_SEG, W.TILE, W.HEAD_IMG
XSEG = 28672
C_TICK, C_WIN, C_SLOT, C_XALL, C_URDY, C_RDY2, C_XRDY = 0, 1024, 1152, 1280, 2048, 4096, 16384
sWS=4; sW=6; sXP=8; sUP=10; sMEM=12; sP=14; sCN=16; sMX=18; sZM=20
sROLE=22; sWAVE=23; sSTEP=24; sTMO=25; sT0=26; sT1=27; sT2=28; sTGT=29
sM56=30; sEVEN=32; sOUT=34; sRES=36; sPX=38; sMXI=52; sPREV=54; sM57=56; sLAY=60; sXCC=40; sSEG=41; sBUF=42; sH=43; sJ=44; sT3=45; sT4=46; sSV=48
vLANE=1; vL16=2; vIDX=3
FAIL="b_fail"
DIAG=[False]
OPT={}
sDBG=70
def dstamp(e, slot, role, regs, sreg=None, step=None):
    if not DIAG[0]: return
    dstamp.n += 1; lab = f".Lds{dstamp.n}"
    e(f"s_cmp_lg_u32 s{sROLE}, {role}"); e(f"s_cbranch_scc1 {lab}")
    if step is not None:
        e(f"s_cmp_lg_u32 s{sSTEP}, {step}"); e(f"s_cbranch_scc1 {lab}")
    if sreg is None:
        e("s_memrealtime s[72:73]"); e("s_waitcnt lgkmcnt(0)"); sreg = 72
    e(f"s_mov_b64 s[74:75], exec"); e("s_mov_b64 exec, 1")
    e(f"v_mov_b32 v{regs[0]}, s{sreg}"); e(f"v_mov_b32 v{regs[1]}, {slot*4}")
    e(f"global_store_dword v{regs[1]}, v{regs[0]}, s[{sDBG}:{sDBG+1}]")
    e("s_waitcnt vmcnt(0)")
    e("s_mov_b64 exec, s[74:75]")
    e.label(lab)
dstamp.n = 0
def wstamp(e, base, regs):
    if not DIAG[0]: return
    e("s_memrealtime s[72:73]"); e("s_waitcnt lgkmcnt(0)")
    e(f"s_lshl_b32 s73, s{sROLE}, 2"); e(f"s_add_u32 s73, s73, {W.TRACE + 32768 + base*1024}")
    e("s_mov_b64 s[74:75], exec"); e("s_mov_b64 exec, 1")
    e(f"v_mov_b32 v{regs[0]}, s72"); e(f"v_mov_b32 v{regs[1]}, s73")
    e(f"global_store_dword v{regs[1]}, v{regs[0]}, s[{sWS}:{sWS+1}]")
    e("s_waitcnt vmcnt(0)"); e("s_mov_b64 exec, s[74:75]")
def tr(e, k):
    st = OPT.get('trace')
    if st is None: return
    tr.n += 1
    e(f"s_cmp_lg_u32 s{sSTEP}, {st}"); e(f"s_cbranch_scc1 .Ltr{tr.n}")
    e(f"s_memtime s[{78+2*k}:{79+2*k}]")
    e.label(f".Ltr{tr.n}")
tr.n = 0
def tr_init(e):
    if OPT.get('trace') is None: return
    for k in range(78, 94): e(f"s_mov_b32 s{k}, 0")
    e("s_mov_b32 s94, 0"); e("s_mov_b32 s95, 0")
    e("s_memrealtime s[96:97]"); e("s_memtime s[98:99]"); e("s_waitcnt lgkmcnt(0)")
    for k in range(8):
        e("s_mov_b32 s100, s96"); e("s_mov_b32 s101, s98")
        e("s_memrealtime s[96:97]"); e("s_memtime s[98:99]"); e("s_waitcnt lgkmcnt(0)")
        e("s_cmp_lg_u32 s96, s100"); e("s_cselect_b32 s100, 1, 0"); e("s_cmp_eq_u32 s94, 0"); e("s_cselect_b32 s100, s100, 0")
        e("s_cmp_lg_u32 s100, 0"); e("s_cselect_b32 s94, s96, s94"); e("s_cselect_b32 s95, s98, s95")
def tr_dump(e, regs):
    if OPT.get('trace') is None: return
    a, d = regs
    e("s_waitcnt vmcnt(0) lgkmcnt(0)")
    e(f"s_lshl_b32 s{sT0}, s{sROLE}, 2"); e(f"s_add_u32 s{sT0}, s{sT0}, s{sWAVE}"); e(f"s_lshl_b32 s{sT0}, s{sT0}, 6")
    e(f"s_add_u32 s{sT0}, s{sT0}, {W.TRACE}")
    e("s_mov_b64 exec, 1")
    for k in range(10):
        src = 78+2*k if k < 8 else (94 if k == 8 else 95)
        e(f"v_mov_b32 v{a}, s{sT0}"); e(f"v_mov_b32 v{d}, s{src}")
        e(f"global_store_dword v{a}, v{d}, s[{sWS}:{sWS+1}] offset:{4*k}")
    e("s_waitcnt vmcnt(0)")
RT_TILE=768
S_WT=0; S_RT=3*TILE; S_FLAG=S_RT+28*RT_TILE
V_LMEM=0; V_RED=8192; V_WT=16384
B_LDS = V_WT + 8*TILE
def blocks_regs(na, vstart=None, nv=0): return [('a', 8*i) for i in range(na)] + [('v', vstart+8*i) for i in range(nv)]
def tmo(e):
    e(f"s_sub_u32 s{sTMO}, s{sTMO}, 1"); e(f"s_cbranch_scc1 {FAIL}")
def zero4(a): return [f"v_mov_b64 v[{a}:{a+1}], 0", f"v_mov_b64 v[{a+2}:{a+3}], 0"]
def sentinel_tree(regs, t):
    out = []; rs = list(regs)
    out.append(f"v_max3_u32 v{t}, v{rs[0]}, v{rs[1]}, v{rs[2]}"); rs = rs[3:]
    while len(rs) >= 2:
        out.append(f"v_max3_u32 v{t}, v{t}, v{rs[0]}, v{rs[1]}"); rs = rs[2:]
    if rs: out.append(f"v_max_u32 v{t}, v{t}, v{rs[0]}")
    out.append(f"v_cmp_eq_u32 vcc, -1, v{t}")
    return out
def bell_wait(e, vaddr, sbase, regs, lab, nl):
    d = len(regs)
    ld = lambda r: e(f"global_load_dword v{r}, v{vaddr}, s[{sbase}:{sbase+1}] sc1")
    e(f"s_mov_b64 exec, {hex((1<<nl)-1) if nl <= 16 else (f's[{sM56}:{sM56+1}]' if nl == 56 else f's[{sM57}:{sM57+1}]')}")
    for r in regs[:-1]:
        ld(r); e.nop(OPT.get('stag', 64) // d)
    e.label(lab)
    for k in range(d):
        ld(regs[(k-1) % d])
        e(f"s_waitcnt vmcnt({d-1})")
        e(f"v_cmp_eq_u32 vcc, -1, v{regs[k]}")
        if k == d-1: tmo(e)
        e(f"s_cbranch_vccz {lab}_ok")
    e(f"s_branch {lab}")
    e.label(f"{lab}_ok")
    e("s_mov_b64 exec, -1")
def load_weights(e, blocks, tiles, vtmp, soff=None):
    n = 0; bi = 0
    for toff in tiles:
        for t in range(7):
            b = blocks[bi]; bi += 1
            e(f"v_add_u32 v{vtmp}, {toff + t*2048}, v{vL16}")
            if soff is not None: e(f"v_add_u32 v{vtmp}, s{soff}, v{vtmp}")
            e(f"global_load_dwordx4 {reg(b,4)}, v{vtmp}, s[{sW}:{sW+1}]")
            e(f"global_load_dwordx4 {reg((b[0], b[1]+4),4)}, v{vtmp}, s[{sW}:{sW+1}] offset:1024")
            n += 2
            if n % 32 == 0: e("s_waitcnt vmcnt(32)")
    e("s_waitcnt vmcnt(0)")
def load_lds_tiles(e, tiles, ldsoffs, stg, v0_, v1_):
    for toff, lo in zip(tiles, ldsoffs):
        for k in range(14):
            e(f"v_add_u32 v{v0_}, {toff + k*1024}, v{vL16}")
            e(f"global_load_dwordx4 v[{stg+4*k}:{stg+4*k+3}], v{v0_}, s[{sW}:{sW+1}]")
        e(f"v_add_u32 v{v1_}, {lo}, v{vL16}")
        e("s_waitcnt vmcnt(0)")
        for k in range(14):
            e(f"ds_write_b128 v{v1_}, v[{stg+4*k}:{stg+4*k+3}] offset:{k*1024}")
        e("s_waitcnt lgkmcnt(0)")
def bell2_addr(e, vBL, last=55):
    e(f"v_min_u32 v{vBL}, {last}, v{vLANE}")
    e(f"v_lshlrev_b32 v{vBL}, 2, v{vBL}")
    e(f"s_and_b32 s{sT0}, s{sROLE}, 7")
    e(f"s_lshl_b32 s{sT0}, s{sT0}, 8")
    e(f"s_add_u32 s{sT0}, s{sT0}, {8192-3072}")
    e(f"v_add_u32 v{vBL}, s{sT0}, v{vBL}")
def rt_write_addr(e, vRTW, t0, t1, t2):
    e(f"v_and_b32 v{t0}, 15, v{vLANE}")
    e(f"v_lshrrev_b32 v{t1}, 4, v{vLANE}")
    e(f"v_lshrrev_b32 v{t2}, 2, v{t0}")
    e(f"v_xor_b32 v{t1}, v{t1}, v{t2}")
    e(f"v_lshlrev_b32 v{t1}, 3, v{t1}")
    e(f"v_lshl_add_u32 v{t1}, v{t0}, 5, v{t1}")
    e(f"v_lshrrev_b32 v{t2}, 3, v{t0}")
    e(f"v_lshl_add_u32 v{vRTW}, v{t2}, 7, v{t1}")
    e(f"v_add_u32 v{vRTW}, {S_RT}, v{vRTW}")
def adv(e, s, n):
    e(f"s_add_u32 s{s}, s{s}, {n}"); e(f"s_addc_u32 s{s+1}, s{s+1}, 0")
def gload(am, t):
    return f"global_load_dwordx4 v[{am+4*t}:{am+4*t+3}], v{vL16}, s[{sMEM}:{sMEM+1}] offset:{t*1024-3072} sc1"
PACE_N, PACE_NOP = 4, 12
def direct_gather(e, am):
    for t in range(PACE_N):
        e(gload(am, t))
        if t+1 < PACE_N: e.nop(PACE_NOP)
def kmajor(e, am, accs, wregs, vtmp):
    chk = sentinel_tree([am+k for k in range(28)], vtmp)
    ci = 0; issued = PACE_N
    for t in range(7):
        e(f"s_waitcnt vmcnt({issued-1-t})")
        for j in range(4):
            e(f"v_smfmac_f32_16x16x64_bf16 v[{accs[j]}:{accs[j]+3}], v[{am+4*t}:{am+4*t+3}], {reg(wregs(j,t),8)}, v{vIDX}")
            if j == 0 and issued < 7:
                e(gload(am, issued)); issued += 1
            elif ci < len(chk) and (ci == len(chk)-1 and t == 6 or (ci < len(chk)-1 and min(2*ci+2, 27) < 4*(t+1))):
                e(chk[ci]); ci += 1
    while ci < len(chk): e(chk[ci]); ci += 1

S_TILES = {0:[4,7,10,13,16,19,22,25], 1:[5,8,11,14,17,20,23,26], 2:[6,9,12,15,18,21,24,27], 3:[0,1,2,3]}
FLAG_AFTER = {1:0, 2:1, 3:2, 5:3, 6:4}
NCP = 5
def score_producer(e, w):
    uid = f"sp{w}"
    tiles = S_TILES[w]
    blocks = blocks_regs(32, 120, 17)
    load_lds_tiles(e, [tiles[0]*TILE], [S_WT + w*TILE], 60, 4, 5)
    load_weights(e, blocks, [t*TILE for t in tiles[1:]], 4)
    vFV, vBL, vRTW, vFA = 0, 1, 4, 5
    vC = [6, 8]; vBR = [6, 7, 8, 9, 10, 11][:OPT.get('pdepth', 3)]
    am = 12; acc = [40, 44, 48, 52, 56, 116]; stg = 60
    rt_write_addr(e, vRTW, 8, 9, 10)
    e(f"v_lshlrev_b32 v{vFA}, 2, v{vLANE}")
    e(f"v_add_u32 v{vFA}, {S_FLAG + 256*w}, v{vFA}")
    e(f"v_mov_b32 v{vFV}, 0")
    for cp in range(NCP): e(f"ds_write_b32 v{vFA}, v{vFV} offset:{cp*1024}")
    bell2_addr(e, vBL)
    def stage():
        for k in range(14): e(f"ds_read_b128 v[{stg+4*k}:{stg+4*k+3}], v{vL16} offset:{S_WT + w*TILE + k*1024}")
    stage()
    for a in acc:
        for l in zero4(a): e(l)
    e("s_waitcnt lgkmcnt(0)"); e("s_barrier")
    e.label(f"b_{uid}_step")
    e(f"v_add_u32 v{vFV}, 1, v{vFV}")
    if OPT.get('onepoll', 0): e("s_barrier")
    else: bell_wait(e, vBL, sMEM, vBR, f"b_{uid}_bell", 56)
    tr(e, 0)
    e.label(f"b_{uid}_gather")
    direct_gather(e, am); tmo(e)
    kmajor(e, am, acc[:4], lambda j,t: ('v', stg+8*t) if j == 0 else blocks[(j-1)*7+t], vC[0])
    defer = OPT.get('defer', 1)
    if not defer: e(f"s_cbranch_vccnz b_{uid}_redo")
    tr(e, 1)
    accof = {0:acc[0],1:acc[1],2:acc[2],3:acc[3],4:acc[4],5:acc[5],6:acc[0],7:acc[1]}
    def wr(j, c):
        a = accof[j]
        l = [f"v_cvt_pk_bf16_f32 v{c}, v{a}, v{a+1}", f"v_cvt_pk_bf16_f32 v{c+1}, v{a+2}, v{a+3}",
             f"ds_write_b64 v{vRTW}, v[{c}:{c+1}] offset:{tiles[j]*RT_TILE}"]
        if j in FLAG_AFTER: l.append(f"ds_write_b32 v{vFA}, v{vFV} offset:{FLAG_AFTER[j]*1024}")
        return l
    if OPT.get('burst', 1):
        e.nop(3)
        w01 = wr(0, vC[0]) + wr(1, vC[1])
        for l in w01[:-1]: e(l)
        if defer: e(f"s_cbranch_vccnz b_{uid}_redo")
        e(w01[-1])
        Q = {4: wr(2, vC[0]) + wr(3, vC[1]),
             5: zero4(acc[0]) + wr(4, vC[0]),
             6: zero4(acc[1]) + wr(5, vC[1]),
             7: [None, None] + wr(6, vC[0])}
    else:
        Q = {4: ["s_nop 0"] + wr(0, vC[0]) + wr(1, vC[1]) + wr(2, vC[0]),
             5: wr(3, vC[1]) + zero4(acc[0]) + wr(4, vC[0]),
             6: zero4(acc[1]) + wr(5, vC[1]),
             7: [None, None] + wr(6, vC[0])}
    for r in range(4, 8):
        q = Q[r]; n = len(q); qi = 0
        for t in range(7):
            if not (OPT.get('abl_r') and r in OPT['abl_r']):
                e(f"v_smfmac_f32_16x16x64_bf16 v[{accof[r]}:{accof[r]+3}], v[{am+4*t}:{am+4*t+3}], {reg(blocks[(r-1)*7+t],8)}, v{vIDX}")
            upto = -(-n*(t+1) // 7) if n > 7 else min(n, t+1)
            while qi < upto:
                if q[qi]: e(q[qi])
                qi += 1
            if defer and r == 4 and t == 1 and not OPT.get('burst', 1): e(f"s_cbranch_vccnz b_{uid}_redo")
    tr(e, 2)
    e.nop(8)
    for l in wr(7, vC[0])[:3]: e(l)
    e("s_waitcnt lgkmcnt(0)"); e("s_barrier")
    tr(e, 3)
    stage()
    for a in acc:
        for l in zero4(a): e(l)
    adv(e, sMEM, MEM_STRIDE)
    e(f"s_add_u32 s{sSTEP}, s{sSTEP}, 1")
    e(f"s_cmp_lt_u32 s{sSTEP}, {NSTEP}")
    e("s_waitcnt lgkmcnt(0)")
    e(f"s_cbranch_scc1 b_{uid}_step")
    tr_dump(e, (8, 9))
    e("s_endpgm")
    e.label(f"b_{uid}_redo")
    e.nop(8)
    for a in acc[:5]:
        for l in zero4(a): e(l)
    e(f"s_branch b_{uid}_gather")

def score_swave(e):
    uid = "sw"
    tiles = S_TILES[3]
    blocks = blocks_regs(28)
    dstamp(e, 0, 0, (102,103), sreg=96); dstamp(e, 1, 0, (102,103))
    load_weights(e, blocks, [t*TILE for t in tiles], 4)
    dstamp(e, 2, 0, (102,103))
    vX = 144; vB = [60, 76, 92]; vS = 108
    vFV, vBL2, vRTW, vTR0, vTR1, vFA = 0, 1, 4, 5, 6, 7
    vC = [8, 56]; vPX, vPM = 10, 11
    am = 12; acc = [40, 44, 48, 52]
    vBL, vF = 122, 123
    vXA = [120, 121, 104, 105]; vBR = [124, 125, 100, 101][:OPT.get('sdepth', 3)]
    vV, vE, vM, vT, vR, vL, vML, vF2, vO = 126, 132, 138, 139, 140, 141, 142, 143, 58
    vHF = 106
    T, A0, A1, A2, A3, G, N15 = 60, 61, 62, 63, 64, 65, 66
    rt_write_addr(e, vRTW, A0, A1, A2)
    e(f"v_and_b32 v{N15}, 15, v{vLANE}")
    e(f"v_lshrrev_b32 v{G}, 4, v{vLANE}")
    e(f"v_lshrrev_b32 v{A0}, 2, v{N15}")
    e(f"v_mul_u32_u24 v{A1}, 384, v{G}")
    e(f"v_lshl_add_u32 v{A1}, v{A0}, 5, v{A1}")
    e(f"v_and_b32 v{A2}, 3, v{N15}")
    e(f"v_lshlrev_b32 v{A3}, 1, v{G}")
    e(f"v_and_b32 v{A3}, 3, v{A3}")
    e(f"v_xor_b32 v{T}, v{A2}, v{A3}")
    e(f"v_lshl_add_u32 v{vTR0}, v{T}, 3, v{A1}")
    e(f"v_add_u32 v{vTR0}, {S_RT}, v{vTR0}")
    e(f"v_xor_b32 v{T}, 1, v{T}")
    e(f"v_lshl_add_u32 v{vTR1}, v{T}, 3, v{A1}")
    e(f"v_add_u32 v{vTR1}, {S_RT + 4*32}, v{vTR1}")
    e(f"v_and_b32 v{A0}, 3, v{vLANE}")
    e(f"v_min_u32 v{A0}, 2, v{A0}")
    e(f"v_lshlrev_b32 v{vFA}, 8, v{A0}")
    e(f"v_add_u32 v{vFA}, {S_FLAG}, v{vFA}")
    e(f"s_lshl_b32 s{sT0}, s{sROLE}, 9")
    e(f"v_lshrrev_b32 v{A1}, 3, v{N15}")
    e(f"v_and_b32 v{A0}, 7, v{vLANE}")
    e(f"v_lshrrev_b32 v{A3}, 1, v{G}")
    e(f"v_and_b32 v{T}, 1, v{G}")
    e(f"v_lshlrev_b32 v{A2}, 4, v{A0}")
    e(f"v_lshl_add_u32 v{A2}, v{A3}, 8, v{A2}")
    e(f"v_lshl_add_u32 v{A2}, v{T}, 3, v{A2}")
    e(f"v_lshl_add_u32 v{vPX}, v{A1}, 2, v{A2}")
    e(f"v_add_u32 v{vPX}, s{sT0}, v{vPX}")
    e(f"s_lshr_b32 s{sT0}, s{sROLE}, 1"); e(f"s_lshl_b32 s{sT0}, s{sT0}, 8")
    e(f"s_and_b32 s{sT1}, s{sROLE}, 1"); e(f"s_lshl_b32 s{sT1}, s{sT1}, 2")
    e(f"s_add_u32 s{sT0}, s{sT0}, s{sT1}"); e(f"s_add_u32 s{sT0}, s{sT0}, 8192")
    e(f"v_lshlrev_b32 v{A2}, 4, v{A0}")
    e(f"v_lshl_add_u32 v{A2}, v{A3}, 7, v{A2}")
    e(f"v_lshl_add_u32 v{vPM}, v{T}, 3, v{A2}")
    e(f"v_add_u32 v{vPM}, s{sT0}, v{vPM}")
    e(f"s_lshr_b32 s{sT0}, s{sROLE}, 2"); e(f"s_lshl_b32 s{sT0}, s{sT0}, 9")
    e(f"s_and_b32 s{sT1}, s{sROLE}, 3"); e(f"s_lshl_b32 s{sT1}, s{sT1}, 2")
    e(f"s_add_u32 s{sT0}, s{sT0}, s{sT1}"); e(f"s_add_u32 s{sT0}, s{sT0}, 10240")
    e(f"v_and_b32 v{A0}, 3, v{vLANE}")
    e(f"v_lshlrev_b32 v{vBL}, 7, v{A0}")
    e(f"v_add_u32 v{vBL}, s{sT0}, v{vBL}")
    bell2_addr(e, vBL2)
    for k in range(4): e(f"v_add_u32 v{vXA[k]}, {8192*k + 4096}, v{vL16}")
    def xloads():
        for u in range(14):
            for kt in range(2):
                o = kt*14336 + u*1024
                e(f"global_load_dwordx4 v[{vX+kt*56+4*u}:{vX+kt*56+4*u+3}], v{vXA[o//8192]}, s[{sXP}:{sXP+1}] offset:{o%8192-4096}")
    if OPT.get('cnt'):
        for t in range(64, 70): e(f"s_mov_b32 s{t}, 0")
    wait_xall_wave(e, 102, 103, "b_sw_x0", C_XRDY, 2)
    xloads()
    for a in acc + [vS]:
        for l in zero4(a): e(l)
    e(f"v_mov_b32 v{vFV}, 0"); e(f"v_mov_b32 v{vHF}, 0.5")
    e("s_waitcnt vmcnt(0)"); e("s_barrier")
    BUF = [60, 68, 76]; FLG = [84, 85, 86]
    CP = {0: None, 1: 0, 2: 1, 3: 2, 4: 3, 5: 4, 6: None}
    def reads(t):
        buf = BUF[t % 3]
        l = [f"ds_read_b32 v{FLG[t % 3]}, v{vFA} offset:{CP[t]*1024}"] if CP[t] is not None else []
        for hh in range(2):
            u = 2*t+hh
            l.append(f"ds_read_b64_tr_b16 v[{buf+4*hh}:{buf+4*hh+1}], v{vTR0} offset:{2*RT_TILE*u}")
            l.append(f"ds_read_b64_tr_b16 v[{buf+4*hh+2}:{buf+4*hh+3}], v{vTR1} offset:{2*RT_TILE*u}")
        return l
    def mfmas(t):
        buf = BUF[t % 3]
        l = [f"v_smfmac_f32_16x16x64_bf16 v[{vS}:{vS+3}], v[{am+4*t}:{am+4*t+3}], v[{buf}:{buf+7}], v{vIDX}"]
        for hh in range(2):
            u = 2*t+hh
            for kt in (1,2):
                a_ = f"v[{vX+(kt-1)*56+4*u}:{vX+(kt-1)*56+4*u+3}]"
                c = "0" if u == 0 else f"v[{vS+4*kt}:{vS+4*kt+3}]"
                l.append(f"v_mfma_f32_16x16x32_bf16 v[{vS+4*kt}:{vS+4*kt+3}], {a_}, v[{buf+4*hh}:{buf+4*hh+3}], {c}")
        return l
    retries = []
    e.label(f"b_{uid}_step")
    for k,st in enumerate((0,1,2,OPT.get('s0',10),32,OPT.get('s1',62))): dstamp(e, 4+k, 0, (102,103), step=st)
    if DIAG[0]:
        for k,st in enumerate((OPT.get('s0',10),OPT.get('s1',62))):
            e(f"s_cmp_lg_u32 s{sSTEP}, {st}"); e(f"s_cbranch_scc1 .Lmt{k}")
            e("s_memtime s[98:99]"); e("s_waitcnt lgkmcnt(0)")
            dstamp(e, 21+k, 0, (102,103), sreg=98)
            e.label(f".Lmt{k}")
    e(f"v_add_u32 v{vFV}, 1, v{vFV}")
    e(f"s_add_u32 s{sTGT}, s{sSTEP}, 1")
    bell_wait(e, vBL2, sMEM, vBR, f"b_{uid}_bell", 56)
    if OPT.get('onepoll', 0): e("s_barrier")
    tr(e, 0)
    e.label(f"b_{uid}_gather")
    direct_gather(e, am); tmo(e)
    kmajor(e, am, acc, lambda j,t: blocks[j*7+t], vC[0])
    defer = OPT.get('defer', 1)
    if not defer: e(f"s_cbranch_vccnz b_{uid}_redo")
    tr(e, 1)
    e.nop(3 if not defer else 4)
    for j in range(4):
        a = acc[j]; c = vC[j % 2]
        e(f"v_cvt_pk_bf16_f32 v{c}, v{a}, v{a+1}")
        e(f"v_cvt_pk_bf16_f32 v{c+1}, v{a+2}, v{a+3}")
        e(f"ds_write_b64 v{vRTW}, v[{c}:{c+1}] offset:{tiles[j]*RT_TILE}")
        if defer and j == 1: e(f"s_cbranch_vccnz b_{uid}_redo")
    def chk(t): return f"v_cmp_gt_u32 vcc, s{sTGT}, v{FLG[t % 3]}"
    def retry(t):
        lab = f"b_{uid}_cp{t}"
        e(f"s_cbranch_vccnz {lab}_retry"); e.label(f"{lab}_ok"); retries.append((lab, t))
    def batch(t, rd, mid=None, midpos=2):
        i = 0
        for j, m_ in enumerate(mfmas(t)):
            e(m_)
            for _ in range(2 if 'smfmac' not in m_ else 1):
                if i < len(rd): e(rd[i]); i += 1
            if mid and j == midpos:
                for l in mid(i): e(l)
        while i < len(rd): e(rd[i]); i += 1
    for l in reads(0): e(l)
    for l in reads(1): e(l)
    e("s_waitcnt lgkmcnt(0)"); e(chk(1)); retry(1)
    tr(e, 2)
    batch(0, reads(2))
    batch(1, reads(3), lambda i: [f"s_waitcnt lgkmcnt({i})", chk(2)]); retry(2)
    if OPT.get('d45', 0):
        batch(2, reads(4), lambda i: [f"s_waitcnt lgkmcnt({i})", chk(3)]); retry(3)
        batch(3, reads(5), lambda i: [f"s_waitcnt lgkmcnt({i})", chk(4)]); retry(4)
        batch(4, [], lambda i: ["s_waitcnt lgkmcnt(0)", chk(5)]); retry(5)
    else:
        batch(2, [], lambda i: ["s_waitcnt lgkmcnt(0)", chk(3)]); retry(3)
        batch(3, reads(4), lambda i: ["s_waitcnt lgkmcnt(0)", chk(4)], midpos=3); retry(4)
        batch(4, reads(5), lambda i: ["s_waitcnt lgkmcnt(0)", chk(5)], midpos=3); retry(5)
    tr(e, 3)
    e("s_barrier")
    tr(e, 4)
    batch(5, reads(6))
    e("s_waitcnt lgkmcnt(0)")
    batch(6, [])
    def ring1():
        e("s_mov_b64 exec, 15")
        e(f"global_store_dword v{vBL}, v{vFV}, s[{sP}:{sP+1}]")
        e("s_mov_b64 exec, -1")
    tr(e, 5)
    T0, T1, T2 = vS, vS+4, vS+8
    D = "row_ror:8"
    if OPT.get('sm3', 1):
        e(f"v_permlane32_swap_b32 v{T0}, v{T0+2}")
        e(f"v_permlane32_swap_b32 v{T0+1}, v{T0+3}")
        e(f"v_add_f32 v{T0}, v{T0}, v{T0+2}"); e(f"v_add_f32 v{T0+1}, v{T0+1}, v{T0+3}")
        e.nop(1)
        e(f"v_add_f32_dpp v{vV+4}, v{T0}, v{T0} {D} row_mask:0xf bank_mask:0xf")
        e(f"v_add_f32_dpp v{vV+5}, v{T0+1}, v{T0+1} {D} row_mask:0xf bank_mask:0xf")
        for r in range(4): e(f"v_add_f32_dpp v{vV+r}, v{T1+r}, v{T1+r} {D} row_mask:0xf bank_mask:0x3")
        for r in range(4): e(f"v_add_f32_dpp v{vV+r}, v{T2+r}, v{T2+r} {D} row_mask:0xf bank_mask:0xc")
    else:
        e.nop(8)
        e(f"v_permlane32_swap_b32 v{T0}, v{T0+2}")
        e(f"v_permlane32_swap_b32 v{T0+1}, v{T0+3}")
        for r in range(4): e(f"v_add_f32_dpp v{vV+r}, v{T1+r}, v{T1+r} {D} row_mask:0xf bank_mask:0x3")
        e(f"v_add_f32 v{T0}, v{T0}, v{T0+2}"); e(f"v_add_f32 v{T0+1}, v{T0+1}, v{T0+3}")
        for r in range(4): e(f"v_add_f32_dpp v{vV+r}, v{T2+r}, v{T2+r} {D} row_mask:0xf bank_mask:0xc")
        e(f"v_add_f32_dpp v{vV+4}, v{T0}, v{T0} {D} row_mask:0xf bank_mask:0xf")
        e(f"v_add_f32_dpp v{vV+5}, v{T0+1}, v{T0+1} {D} row_mask:0xf bank_mask:0xf")
    if OPT.get('ring1', 4) == 3: ring1()
    PK = "op_sel_hi:[1,0]"; neg = "neg_lo:[0,1] neg_hi:[0,1]"
    e(f"v_max3_f32 v{vML}, v{vV}, v{vV+1}, v{vV+2}")
    e(f"v_max3_f32 v{vML}, v{vML}, v{vV+3}, v{vV+4}")
    e(f"v_max_f32 v{vML}, v{vML}, v{vV+5}")
    e(f"v_pk_add_f32 v[{vE}:{vE+1}], v[{vV}:{vV+1}], v[{vML}:{vML+1}] {PK} {neg}")
    e(f"v_pk_add_f32 v[{vE+2}:{vE+3}], v[{vV+2}:{vV+3}], v[{vML}:{vML+1}] {PK} {neg}")
    e(f"v_max_f32_dpp v{vM}, v{vML}, v{vML} {D} row_mask:0xf bank_mask:0xf")
    e(f"v_pk_add_f32 v[{vE+4}:{vE+5}], v[{vV+4}:{vV+5}], v[{vML}:{vML+1}] {PK} {neg}")
    e(f"v_mov_b32 v{vT}, v{vM}")
    e(f"v_exp_f32 v{vE}, v{vE}"); e(f"v_exp_f32 v{vE+1}, v{vE+1}")
    e(f"v_permlane16_swap_b32 v{vM}, v{vT}")
    e(f"v_exp_f32 v{vE+2}, v{vE+2}")
    e(f"v_max_f32 v{vM}, v{vM}, v{vT}")
    if OPT.get('ring1', 4) == 1: ring1()
    e(f"v_exp_f32 v{vE+3}, v{vE+3}")
    e(f"v_mov_b32 v{vT}, v{vM}")
    e(f"v_exp_f32 v{vE+4}, v{vE+4}"); e(f"v_exp_f32 v{vE+5}, v{vE+5}")
    e(f"v_permlane32_swap_b32 v{vM}, v{vT}")
    e(f"v_pk_add_f32 v[{vV}:{vV+1}], v[{vE}:{vE+1}], v[{vE+2}:{vE+3}]")
    e(f"v_max_f32 v{vM}, v{vM}, v{vT}")
    e(f"v_pk_fma_f32 v[{vV}:{vV+1}], v[{vE+4}:{vE+5}], v[{vHF}:{vHF+1}], v[{vV}:{vV+1}] op_sel_hi:[1,0,1]")
    e(f"v_sub_f32 v{vF2}, v{vML}, v{vM}")
    if OPT.get('ring1', 4) == 4: ring1()
    e(f"v_add_f32 v{vL}, v{vV}, v{vV+1}")
    e(f"v_exp_f32 v{vF2}, v{vF2}")
    e.nop(1)
    e(f"v_mul_f32 v{vL}, v{vL}, v{vF2}")
    e.nop(2)
    e(f"v_add_f32_dpp v{vL}, v{vL}, v{vL} {D} row_mask:0xf bank_mask:0xf")
    e(f"v_mov_b32 v{vT}, v{vL}")
    if OPT.get('ring1', 4) == 5: ring1()
    else: e.nop(2)
    e(f"v_permlane16_swap_b32 v{vL}, v{vT}"); e(f"v_add_f32 v{vL}, v{vL}, v{vT}")
    e(f"v_mov_b32 v{vT}, v{vL}")
    if OPT.get('ring1', 4) == 6: ring1()
    else: e.nop(2)
    e(f"v_permlane32_swap_b32 v{vL}, v{vT}"); e(f"v_add_f32 v{vL}, v{vL}, v{vT}")
    e(f"v_rcp_f32 v{vR}, v{vL}"); e.nop(1)
    e(f"v_mul_f32 v{vR}, v{vR}, v{vF2}")
    for k in range(3): e(f"v_pk_mul_f32 v[{vE+2*k}:{vE+2*k+1}], v[{vE+2*k}:{vE+2*k+1}], v[{vR}:{vR+1}] {PK}")
    e(f"v_cvt_pk_bf16_f32 v{vO}, v{vE}, v{vE+1}")
    e(f"v_cvt_pk_bf16_f32 v{vO+1}, v{vE+2}, v{vE+3}")
    e(f"v_cvt_pk_bf16_f32 v{vC[0]}, v{vE+4}, v{vE+5}")
    e(f"global_store_dword v{vPX}, v{vO}, s[{sP}:{sP+1}]")
    e(f"global_store_dword v{vPX}, v{vO+1}, s[{sP}:{sP+1}] offset:128")
    e(f"global_store_dword v{vPM}, v{vC[0]}, s[{sP}:{sP+1}]")
    tr(e, 6)
    adv(e, sXP, XSEG)
    e(f"s_cmp_lg_u32 s{sSTEP}, 0"); e(f"s_cbranch_scc1 b_{uid}_xk")
    wait_xall_wave(e, 102, 103, "b_sw_xall")
    e.label(f"b_{uid}_xk")
    if OPT.get('sleep_x', 5): e(f"s_sleep {OPT.get('sleep_x', 5)}")
    xloads()
    for a in acc + [vS]:
        for l in zero4(a): e(l)
    adv(e, sP, P_STRIDE); adv(e, sMEM, MEM_STRIDE)
    e(f"s_add_u32 s{sSTEP}, s{sSTEP}, 1")
    e(f"s_cmp_lt_u32 s{sSTEP}, {NSTEP}")
    e(f"s_cbranch_scc1 b_{uid}_step")
    dstamp(e, 3, 0, (102,103))
    if OPT.get('cnt'):
        for t in range(1, 6): dstamp(e, 30+t, 0, (102,103), sreg=63+t)
        dstamp(e, 36, 0, (102,103), sreg=69)
    tr_dump(e, (8, 9))
    e("s_endpgm")
    e.label(f"b_{uid}_redo")
    if OPT.get('cnt'): e("s_add_u32 s69, s69, 1")
    e.nop(8)
    for a in acc:
        for l in zero4(a): e(l)
    e(f"s_branch b_{uid}_gather")
    for lab, t in retries:
        e.label(f"{lab}_retry")
        if OPT.get('cnt'): e(f"s_add_u32 s{63+t}, s{63+t}, 1")
        for l in reads(t): e(l)
        tmo(e)
        e("s_waitcnt lgkmcnt(0)")
        e(f"v_cmp_gt_u32 vcc, s{sTGT}, v{FLG[t % 3]}")
        e(f"s_cbranch_vccnz {lab}_retry")
        e(f"s_branch {lab}_ok")

def helper(e):
    uid = "hp"
    e(f"s_lshl_b32 s{sT0}, s{sWAVE}, 13")
    e(f"v_lshlrev_b32 v8, 7, v{vLANE}"); e(f"v_add_u32 v8, s{sT0}, v8"); e(f"v_min_u32 v8, {MEM_STRIDE-128}, v8")
    e(f"s_lshl_b32 s{sT0}, s{sWAVE}, 12")
    e(f"v_and_b32 v9, 31, v{vLANE}"); e("v_lshlrev_b32 v9, 7, v9"); e(f"v_add_u32 v9, s{sT0}, v9")
    e(f"v_min_u32 v9, {P_STRIDE-128}, v9")
    e(f"s_mul_i32 s{sT0}, s{sWAVE}, {75*128}")
    e(f"v_lshlrev_b32 v5, 7, v{vLANE}"); e(f"v_add_u32 v5, s{sT0}, v5"); e(f"v_add_u32 v7, {64*128}, v5")
    e(f"v_min_u32 v5, {XSEG-128}, v5"); e(f"v_min_u32 v7, {XSEG-128}, v7")
    e("v_mov_b32 v6, 0")
    e(f"s_sub_u32 s64, s{sMEM}, 3072"); e(f"s_subb_u32 s65, s{sMEM+1}, 0")
    e(f"s_mov_b64 s[66:67], s[{sP}:{sP+1}]")
    e(f"s_mov_b64 s[68:69], s[{sXP}:{sXP+1}]")
    def pfx():
        e("global_load_dword v41, v8, s[64:65]"); e("global_load_dword v42, v9, s[66:67]")
        adv(e, 64, MEM_STRIDE); adv(e, 66, P_STRIDE)
    def pfa():
        e("global_load_dword v40, v5, s[68:69]")
        e("s_mov_b64 exec, 0xfff"); e("global_load_dword v43, v7, s[68:69]"); e("s_mov_b64 exec, -1")
        adv(e, 68, XSEG)
    e(f"v_and_b32 v12, 7, v{vLANE}"); e("v_lshlrev_b32 v12, 8, v12"); e(f"v_add_u32 v12, {8192 + 56*4}, v12")
    e(f"s_cmp_eq_u32 s{sWAVE}, 3"); e(f"s_cbranch_scc1 b_{uid}_relay")
    pfx(); pfx(); pfx()
    wait_xall_wave(e, 10, 11, "b_hp_xall")
    pfa(); pfa()
    e("s_waitcnt vmcnt(0)")
    e.label(f"b_{uid}_step")
    e(f"global_load_dword v2, v6, s[{sMEM}:{sMEM+1}] offset:-3072 sc1")
    tmo(e)
    e("s_waitcnt vmcnt(0)")
    e("v_cmp_eq_u32 vcc, -1, v2")
    e(f"s_cbranch_vccz b_{uid}_go")
    e("s_sleep 4"); e(f"s_branch b_{uid}_step")
    e.label(f"b_{uid}_go")
    e(f"s_add_u32 s{sT1}, s{sSTEP}, 2"); e(f"s_cmp_ge_u32 s{sT1}, 64"); e(f"s_cbranch_scc1 b_{uid}_skip")
    pfx(); pfa()
    e.label(f"b_{uid}_skip")
    adv(e, sMEM, MEM_STRIDE)
    e(f"s_add_u32 s{sSTEP}, s{sSTEP}, 1"); e(f"s_cmp_lt_u32 s{sSTEP}, {NSTEP}")
    e(f"s_cbranch_scc1 b_{uid}_step")
    e("s_endpgm")
    e.label(f"b_{uid}_relay")
    e(f"v_mov_b32 v13, {C_URDY}"); e("v_mov_b32 v14, 1")
    e(f"s_sub_u32 s64, s{sMEM}, 3072"); e(f"s_subb_u32 s65, s{sMEM+1}, 0")
    e.label(f"b_{uid}_rl")
    e(f"global_load_dword v15, v13, s[{sCN}:{sCN+1}] sc1")
    tmo(e)
    e("s_waitcnt vmcnt(0)")
    e("v_cmp_ne_u32 vcc, 16, v15")
    e(f"s_cbranch_vccz b_{uid}_rl1")
    e("s_sleep 4"); e(f"s_branch b_{uid}_rl")
    e.label(f"b_{uid}_rl1")
    e("s_mov_b64 exec, 0xff")
    e("global_load_dword v16, v12, s[64:65]")
    e("s_waitcnt vmcnt(0)")
    e("global_store_dword v12, v14, s[64:65]")
    e("s_mov_b64 exec, -1")
    adv(e, 64, MEM_STRIDE)
    e("v_add_u32 v13, 4, v13")
    e(f"s_add_u32 s{sSTEP}, s{sSTEP}, 1")
    e(f"s_cmp_lt_u32 s{sSTEP}, 4"); e(f"s_cbranch_scc1 b_{uid}_rl2")
    e.label(f"b_{uid}_rl3")
    e(f"global_load_dword v16, v6, s[{sMEM}:{sMEM+1}] offset:-3072 sc1")
    tmo(e)
    e("s_waitcnt vmcnt(0)")
    e("v_cmp_eq_u32 vcc, -1, v16")
    e(f"s_cbranch_vccz b_{uid}_rl4")
    e("s_sleep 6"); e(f"s_branch b_{uid}_rl3")
    e.label(f"b_{uid}_rl4")
    adv(e, sMEM, MEM_STRIDE)
    e.label(f"b_{uid}_rl2")
    e(f"s_cmp_lt_u32 s{sSTEP}, {NSTEP}"); e(f"s_cbranch_scc1 b_{uid}_rl")
    e("s_endpgm")

def publisher(e):
    uid = "pb"
    own = {0:[0,4], 1:[1,5], 2:[2,6], 3:[3]}
    def chunk_addr(dstL, dstG, first):
        if first: e("v_mov_b32 v20, v0")
        else:
            e("v_add_u32 v20, 256, v0"); e("v_min_u32 v20, 447, v20")
        e(f"s_mov_b32 s{sT1}, {(2**32+55)//56}")
        e(f"v_mul_hi_u32 v21, v20, s{sT1}")
        e("v_mul_u32_u24 v22, 56, v21"); e("v_sub_u32 v22, v20, v22")
        e(f"v_lshlrev_b32 v{dstG}, 4, v20")
        e("v_lshrrev_b32 v23, 3, v22"); e("v_lshlrev_b32 v23, 10, v23")
        e("v_and_b32 v24, 7, v22"); e("v_lshrrev_b32 v24, 1, v24"); e("v_lshl_add_u32 v23, v24, 8, v23")
        e("v_lshl_add_u32 v23, v21, 4, v23")
        e("v_and_b32 v24, 1, v22"); e(f"v_lshl_add_u32 v{dstL}, v24, 3, v23")
    chunk_addr(30, 31, True); chunk_addr(32, 33, False)
    adv(e, sMEM, MEM_STRIDE); adv(e, sMX, W.MEMX_STRIDE); adv(e, sMXI, W.MEMX_STRIDE)
    e(f"s_mov_b32 s{sSTEP}, 1")
    e.label(f"b_{uid}_step")
    for w in range(4):
        lab = f"b_{uid}_w{w}"
        if w < 3:
            e(f"s_cmp_eq_u32 s{sWAVE}, {w}"); e(f"s_cbranch_scc0 {lab}_n")
        e.label(lab)
        for k,t in enumerate(own[w]): e(f"global_load_dwordx4 v[{8+4*k}:{11+4*k}], v{vL16}, s[{sMEM}:{sMEM+1}] offset:{t*1024-3072} sc1")
        tmo(e)
        e("s_waitcnt vmcnt(0)")
        for l in sentinel_tree([8+j for j in range(4*len(own[w]))], 16): e(l)
        e(f"s_cbranch_vccz {lab}_ok")
        e(f"s_sleep {OPT.get('pubsleep', 2)}"); e(f"s_branch {lab}")
        e.label(f"{lab}_ok")
        for k,t in enumerate(own[w]):
            e(f"ds_write_b128 v{vL16}, v[{8+4*k}:{11+4*k}] offset:{t*1024}")
            e(f"v_add_u32 v17, {t*1024}, v{vL16}")
            e(f"global_store_dwordx4 v17, v[{8+4*k}:{11+4*k}], s[{sMXI}:{sMXI+1}] sc1")
        if w < 3:
            e(f"s_branch b_{uid}_j"); e.label(f"{lab}_n")
    e.label(f"b_{uid}_j")
    e("s_waitcnt lgkmcnt(0)"); e("s_barrier")
    for (aL, aG, d) in ((30, 31, 40), (32, 33, 44)):
        e(f"ds_read_b32 v{d}, v{aL}"); e(f"ds_read_b32 v{d+1}, v{aL} offset:128")
        e(f"ds_read_b32 v{d+2}, v{aL} offset:4"); e(f"ds_read_b32 v{d+3}, v{aL} offset:132")
    e("s_waitcnt lgkmcnt(0)")
    e(f"global_store_dwordx4 v31, v[40:43], s[{sMX}:{sMX+1}] sc1")
    e(f"global_store_dwordx4 v33, v[44:47], s[{sMX}:{sMX+1}] sc1")
    e("s_barrier")
    adv(e, sMEM, MEM_STRIDE); adv(e, sMX, W.MEMX_STRIDE); adv(e, sMXI, W.MEMX_STRIDE)
    e(f"s_add_u32 s{sSTEP}, s{sSTEP}, 1"); e(f"s_cmp_lt_u32 s{sSTEP}, {NSTEP}")
    e(f"s_cbranch_scc1 b_{uid}_step")
    e("s_endpgm")

V_OWN = {0:[0,4], 1:[1,5], 2:[2,6], 3:[3]}
def value_wave(e, w):
    uid = f"vw{w}"
    vAM, vACC, vSTG = 12, 40, 52
    tl = [(hh, nt) for hh in range(4) for nt in range(2)]
    def toff(hh, nt): return (4*w+hh)*HEAD_IMG + nt*TILE
    blocks = blocks_regs(32, 176, 10)
    load_lds_tiles(e, [toff(*tl[0]), toff(*tl[1])], [V_WT + (2*w)*TILE, V_WT + (2*w+1)*TILE], vSTG, 4, 5)
    load_weights(e, blocks, [toff(*x) for x in tl[2:]], 4)
    if w == 0: dstamp(e, 10, 16, (174,175))
    vSA, vSB = 4, 5
    vT0, vT1, vT2, vT3 = 8, 9, 10, 11
    vZB = 108; vP = vACC; vO = vAM; vR = vAM+8; vU = 124
    vRW, vRR, vMS, vUA, vPA, vPMA, vZA, vMX = 156, 157, 158, 159, 160, 161, 162, 163
    vBL1, vBL2, vBS, vMI, vFA = 164, 165, 166, 167, 168
    vBR = [169,170,171,172,173][:OPT.get('vdepth', 3)]
    e(f"v_add_u32 v{vSA}, {V_WT + (2*w)*TILE}, v{vL16}")
    e(f"v_add_u32 v{vSB}, {V_WT + (2*w+1)*TILE}, v{vL16}")
    e(f"v_add_u32 v{vRW}, {V_RED + w*2048}, v{vL16}")
    nt_w, hf_w = w >> 1, w & 1
    e(f"v_lshrrev_b32 v{vT0}, 3, v{vLANE}")
    e(f"v_and_b32 v{vT1}, 7, v{vLANE}")
    e(f"v_lshrrev_b32 v{vT2}, 1, v{vT1}"); e(f"v_lshlrev_b32 v{vT2}, 2, v{vT2}")
    e(f"v_and_b32 v{vT1}, 1, v{vT1}")
    e(f"v_add_u32 v{vT2}, v{vT2}, v{vT1}"); e(f"v_add_u32 v{vT2}, {2*hf_w}, v{vT2}")
    e(f"s_sub_u32 s{sT0}, s{sROLE}, 16")
    e(f"s_lshl_b32 s{sT1}, s{sT0}, 6"); e(f"s_add_u32 s{sT1}, s{sT1}, {63*W.MEMX_STRIDE + 32*nt_w}")
    e(f"v_mul_u32_u24 v{vMX}, 896, v{vT0}"); e(f"v_lshl_add_u32 v{vMX}, v{vT2}, 1, v{vMX}"); e(f"v_add_u32 v{vMX}, s{sT1}, v{vMX}")
    e(f"v_lshrrev_b32 v{vT3}, 2, v{vT0}")
    e(f"v_lshl_add_u32 v{vT2}, v{vT3}, 4, v{vT2}"); e(f"v_lshlrev_b32 v{vT2}, 4, v{vT2}")
    e(f"v_and_b32 v{vT0}, 3, v{vT0}")
    e(f"v_lshl_add_u32 v{vRR}, v{vT0}, 2, v{vT2}"); e(f"v_add_u32 v{vRR}, {V_RED + nt_w*1024}, v{vRR}")
    e(f"s_lshr_b32 s{sT1}, s{sT0}, 1"); e(f"s_lshl_b32 s{sT1}, s{sT1}, 10")
    e(f"s_and_b32 s{sT2}, s{sT0}, 1"); e(f"s_lshl_b32 s{sT2}, s{sT2}, 9")
    e(f"s_add_u32 s{sT1}, s{sT1}, s{sT2}"); e(f"s_add_u32 s{sT1}, s{sT1}, {nt_w*256 + hf_w*128 + MEM_STRIDE - 3072}")
    e(f"v_lshl_add_u32 v{vMS}, v{vLANE}, 1, s{sT1}")
    e(f"v_add_u32 v{vMI}, {63*W.MEMX_STRIDE - (MEM_STRIDE - 3072)}, v{vMS}")
    e(f"s_lshl_b32 s{sT1}, s{sT0}, 15"); e(f"s_add_u32 s{sT1}, s{sT1}, {w*8192 + 4096}")
    e(f"v_add_u32 v{vUA}, s{sT1}, v{vL16}")
    e(f"v_add_u32 v{vPA}, {w*2048}, v{vL16}")
    e(f"v_lshrrev_b32 v{vT0}, 5, v{vLANE}"); e(f"v_lshlrev_b32 v{vT0}, 8, v{vT0}")
    e(f"v_and_b32 v{vT1}, 15, v{vLANE}")
    e(f"v_lshl_add_u32 v{vPMA}, v{vT1}, 4, v{vT0}"); e(f"v_add_u32 v{vPMA}, {8192 + w*512}, v{vPMA}")
    e(f"s_and_b32 s{sT1}, s{sT0}, 3"); e(f"s_lshl_b32 s{sT1}, s{sT1}, 7"); e(f"s_add_u32 s{sT1}, s{sT1}, {10240 + w*512}")
    e(f"v_and_b32 v{vT0}, 3, v{vLANE}")
    e(f"v_lshl_add_u32 v{vBL1}, v{vT0}, 2, s{sT1}")
    if OPT.get('onepoll1', 0) and w == 0:
        e(f"v_lshrrev_b32 v{vT0}, 2, v{vLANE}"); e(f"v_and_b32 v{vT0}, 3, v{vT0}"); e(f"v_lshl_add_u32 v{vBL1}, v{vT0}, 9, v{vBL1}")
    bell2_addr(e, vBL2, 56)
    e(f"s_sub_u32 s{sT0}, s{sROLE}, 16")
    e(f"s_lshl_b32 s{sT1}, s{sT0}, 4"); e(f"s_add_u32 s{sT1}, s{sT1}, {MEM_STRIDE + 8192 - 3072 + 4*w}")
    e(f"v_and_b32 v{vT0}, 7, v{vLANE}"); e(f"v_lshlrev_b32 v{vT0}, 8, v{vT0}")
    e(f"v_add_u32 v{vBS}, s{sT1}, v{vT0}")
    e(f"s_mov_b32 s{sEVEN}, 0x55555555"); e(f"s_mov_b32 s{sEVEN+1}, 0x55555555")
    def stg_read(vaddr, blk, tag):
        e.ds(f"ds_read_b128 v[{vSTG+8*blk}:{vSTG+8*blk+3}], v{vaddr} offset:{blk*2048}", tag)
        e.ds(f"ds_read_b128 v[{vSTG+8*blk+4}:{vSTG+8*blk+7}], v{vaddr} offset:{blk*2048+1024}", tag)
    e.lgkm = []
    for t in range(7): stg_read(vSA, t, 'sa')
    for l in zero4(vACC): e(l)
    if OPT.get('cnt'): e("s_mov_b32 s64, 0")
    e.wait_lgkm_all(); e("s_barrier")
    own = V_OWN[w]; others = [t for t in range(7) if t not in own]
    def cvt(r):
        hh, nt = tl[r]; accp = vACC + 4*(r % 3)
        return [f"v_cvt_pk_bf16_f32 v{vZB+8*nt+2*hh}, v{accp}, v{accp+1}", f"v_cvt_pk_bf16_f32 v{vZB+8*nt+2*hh+1}, v{accp+2}, v{accp+3}"]
    def zphase(tag, with_u):
        bell_wait(e, vBL2, sMEM, vBR, f"b_{uid}_bell2{tag}", 57)
        tr(e, 0)
        lab = f"b_{uid}_poll{tag}"
        e.label(lab)
        for t in own: e(gload(vAM, t))
        tmo(e)
        e("s_waitcnt vmcnt(0)")
        for l in sentinel_tree([vAM+4*t+k for t in own for k in range(4)], vT0): e(l)
        e(f"s_cbranch_vccnz {lab}")
        e.lgkm = []
        for t in own: e.ds(f"ds_write_b128 v{vL16}, v[{vAM+4*t}:{vAM+4*t+3}] offset:{V_LMEM+t*1024}", 'mw')
        e.wait_lgkm_all(); e("s_barrier")
        for t in others: e.ds(f"ds_read_b128 v[{vAM+4*t}:{vAM+4*t+3}], v{vL16} offset:{V_LMEM+t*1024}", f"am{t}")
        def uload(k):
            if OPT.get('nou'): return
            e(f"global_load_dwordx4 v[{vU+4*k}:{vU+4*k+3}], v{vUA}, s[{sUP}:{sUP+1}] offset:{k*1024-4096} {OPT.get('uflag','sc1')}")
        if with_u and not OPT.get('upace', 0):
            for k in range(8): uload(k)
        order = own + others
        for r in range(8):
            acc = vACC + 4*(r % 3); accn = vACC + 4*((r+1) % 3)
            fill = [None]*7
            if r + 1 < 8: fill[0], fill[1] = zero4(accn)
            if r > 0: fill[3], fill[4] = cvt(r-1)
            for k, t in enumerate(order if r == 0 else range(7)):
                if r == 0 and t in others: e.wait_lgkm(f"am{t}")
                if r == 0: b = ('v', vSTG+8*t)
                elif r == 1:
                    e.wait_lgkm(f"sb{t}"); b = ('v', vSTG+8*t)
                else: b = blocks[(r-2)*7+t]
                e(f"v_smfmac_f32_16x16x64_bf16 v[{acc}:{acc+3}], v[{vAM+4*t}:{vAM+4*t+3}], {reg(b,8)}, v{vIDX}")
                if r == 0: stg_read(vSB, t, f"sb{t}")
                if fill[k]: e(fill[k])
                up = OPT.get('upace', 0)
                if with_u and up == 1 and k == 5: uload(r)
                if with_u and up == 2 and r < 4 and k in (2, 5): uload(2*r + (k == 5))
                if with_u and up == 4 and r < 2 and k in (1, 2, 5, 6): uload(4*r + (1, 2, 5, 6).index(k))
        e.nop(4)
        for k in range(4): e(f"v_mov_b64 v[{vO+2*k}:{vO+2*k+1}], 0")
        for l in cvt(7): e(l)
    e.label(f"b_{uid}_step")
    zphase("", True)
    tr(e, 1)
    if OPT.get('onepoll1', 0):
        if w == 0: bell_wait(e, vBL1, sP, vBR, f"b_{uid}_bell1", 16)
        e("s_barrier")
    else:
        bell_wait(e, vBL1, sP, vBR, f"b_{uid}_bell1", 4)
    tr(e, 2)
    lab = f"b_{uid}_pollp"
    e.label(lab)
    e(f"global_load_dwordx4 v[{vP+8}:{vP+11}], v{vPMA}, s[{sP}:{sP+1}] sc1")
    e(f"global_load_dwordx4 v[{vP}:{vP+3}], v{vPA}, s[{sP}:{sP+1}] sc1")
    e(f"global_load_dwordx4 v[{vP+4}:{vP+7}], v{vPA}, s[{sP}:{sP+1}] offset:1024 sc1")
    tmo(e)
    smf2 = lambda nt, a_, b_: f"v_smfmac_f32_16x16x64_bf16 v[{vO+4*nt}:{vO+4*nt+3}], v[{a_}:{a_+3}], v[{b_}:{b_+7}], v{vIDX}"
    if OPT.get('prog', 1):
        e("s_waitcnt vmcnt(2)")
        e(smf2(0, vP+8, vZB)); e(f"v_max3_u32 v{vT0}, v{vP+8}, v{vP+9}, v{vP+10}")
        e(smf2(1, vP+8, vZB+8))
        e("s_waitcnt vmcnt(1)")
        e(smf2(0, vP, vU)); e(f"v_max3_u32 v{vT0}, v{vT0}, v{vP+11}, v{vP}")
        e(smf2(1, vP, vU+8)); e(f"v_max3_u32 v{vT0}, v{vT0}, v{vP+1}, v{vP+2}")
        e("s_waitcnt vmcnt(0)")
        e(smf2(0, vP+4, vU+16)); e(f"v_max3_u32 v{vT0}, v{vT0}, v{vP+3}, v{vP+4}")
        e(smf2(1, vP+4, vU+24)); e(f"v_max3_u32 v{vT0}, v{vT0}, v{vP+5}, v{vP+6}")
        e(f"v_max_u32 v{vT0}, v{vT0}, v{vP+7}")
        e(f"v_cmp_eq_u32 vcc, -1, v{vT0}")
        if not OPT.get('defer', 1): e(f"s_cbranch_vccnz {lab}_retry")
        tr(e, 3)
        e.nop(3 if not OPT.get('defer', 1) else 4)
        e(f"ds_write_b128 v{vRW}, v[{vO}:{vO+3}]")
        e.nop(1)
        e(f"ds_write_b128 v{vRW}, v[{vO+4}:{vO+7}] offset:1024")
        if OPT.get('defer', 1): e(f"s_cbranch_vccnz {lab}_retry")
    else:
        e("s_waitcnt vmcnt(0)")
        chk = sentinel_tree(list(range(vP, vP+12)), vT0)
        ms = [smf2(0, vP+8, vZB), smf2(0, vP, vU), smf2(0, vP+4, vU+16), smf2(1, vP+8, vZB+8), smf2(1, vP, vU+8), smf2(1, vP+4, vU+24)]
        ci = 0
        for m_ in ms:
            e(m_)
            if ci < len(chk): e(chk[ci]); ci += 1
        while ci < len(chk): e(chk[ci]); ci += 1
        e(f"s_cbranch_vccnz {lab}_retry")
        e.nop(2)
        e(f"ds_write_b128 v{vRW}, v[{vO}:{vO+3}]")
        e.nop(4)
        e(f"ds_write_b128 v{vRW}, v[{vO+4}:{vO+7}] offset:1024")
    def ring2():
        e("s_mov_b64 exec, 0xff")
        e(f"global_store_dword v{vBS}, v{vLANE}, s[{sMEM}:{sMEM+1}]")
        e("s_mov_b64 exec, -1")
    r2 = OPT.get('ring2', 1)
    if r2 == 0: ring2()
    e("s_waitcnt lgkmcnt(0)")
    if r2 == 3: ring2()
    e("s_barrier")
    tr(e, 4)
    if r2 == 1: ring2()
    for ww in range(4): e(f"ds_read2st64_b32 v[{vR+2*ww}:{vR+2*ww+1}], v{vRR} offset0:{ww*8} offset1:{ww*8+2}")
    if r2 == 4: ring2()
    e("s_waitcnt lgkmcnt(0)")
    if r2 == 5: ring2()
    e(f"v_pk_add_f32 v[{vR}:{vR+1}], v[{vR}:{vR+1}], v[{vR+2}:{vR+3}]")
    e(f"v_pk_add_f32 v[{vR+4}:{vR+5}], v[{vR+4}:{vR+5}], v[{vR+6}:{vR+7}]")
    e(f"v_pk_add_f32 v[{vR}:{vR+1}], v[{vR}:{vR+1}], v[{vR+4}:{vR+5}]")
    e(f"v_add_f32 v{vR}, v{vR}, v{vR+1}")
    if OPT.get('short', 0):
        e(f"v_cvt_pk_bf16_f32 v{vR+2}, v{vR}, v{vR}")
        e(f"global_store_short v{vMS}, v{vR+2}, s[{sMEM}:{sMEM+1}]")
    else:
        e.nop(2)
        e(f"v_mov_b32_dpp v{vR+1}, v{vR} quad_perm:[1,0,3,2] row_mask:0xf bank_mask:0xf")
        e(f"v_cvt_pk_bf16_f32 v{vR+2}, v{vR}, v{vR+1}")
        e(f"s_mov_b64 exec, s[{sEVEN}:{sEVEN+1}]")
        e(f"global_store_dword v{vMS}, v{vR+2}, s[{sMEM}:{sMEM+1}]")
        e("s_mov_b64 exec, -1")
    e(f"s_cmp_lg_u32 s{sSTEP}, {NSTEP-1}"); e(f"s_cbranch_scc1 b_{uid}_nolast")
    if OPT.get('short', 0): raise Exception("short not supported with direct publication")
    e(f"s_mov_b64 exec, s[{sEVEN}:{sEVEN+1}]")
    e(f"global_store_dword v{vMI}, v{vR+2}, s[{sMXI}:{sMXI+1}] sc1")
    e(f"global_store_dword v{vMX}, v{vR+2}, s[{sMX}:{sMX+1}] sc1")
    e("s_mov_b64 exec, -1")
    e.label(f"b_{uid}_nolast")
    tr(e, 5)
    e.lgkm = []
    for t in range(7): stg_read(vSA, t, 'sa')
    for l in zero4(vACC): e(l)
    adv(e, sMEM, MEM_STRIDE); adv(e, sP, P_STRIDE); adv(e, sUP, U_SEG)
    e(f"s_add_u32 s{sSTEP}, s{sSTEP}, 1")
    e(f"s_cmp_lt_u32 s{sSTEP}, {NSTEP}")
    e.wait_lgkm_all()
    e(f"s_cbranch_scc1 b_{uid}_step")
    if w == 0: dstamp(e, 11, 16, (174,175))
    if OPT.get('cnt'): dstamp(e, 40+w, 20, (174,175), sreg=64)
    tr_dump(e, (8, 9))
    e("s_endpgm")
    e.label(f"{lab}_retry")
    if OPT.get('cnt'): e("s_add_u32 s64, s64, 1")
    e.nop(8)
    for k in range(4): e(f"v_mov_b64 v[{vO+2*k}:{vO+2*k+1}], 0")
    e(f"s_branch {lab}")

NJ = 3; NJU = 2; NJZ = 2
XB0, XB1 = 0, XSEG
W_RED = 2*XSEG
W_MEMR = W_RED + 24576
def worker_common_setup(e, which):
    e(f"s_and_b32 s{sH}, s{sROLE}, 15"); e(f"s_lshr_b32 s{sJ}, s{sROLE}, 4")
    e(f"s_mul_i32 s{sT0}, s{sH}, {HEAD_IMG}")
    e(f"s_add_u32 s{sT0}, s{sT0}, {which*16*HEAD_IMG}")
    e(f"s_mul_i32 s{sT1}, s{sWAVE}, {7*TILE}")
    e(f"s_add_u32 s{sT0}, s{sT0}, s{sT1}")
    e(f"s_add_u32 s{sW}, s{sW}, s{sT0}"); e(f"s_addc_u32 s{sW+1}, s{sW+1}, 0")
def dma_xa(e, vsrc):
    e(f"s_mul_i32 s{sT0}, s{sT3}, {XSEG}")
    e(f"s_mul_i32 s{sT1}, s{sWAVE}, 7168")
    e(f"s_add_u32 s{sT0}, s{sT0}, s{sT1}")
    e(f"v_add_u32 v{vsrc}, s{sT0}, v{vL16}")
    e(f"s_add_u32 s{sT1}, s{sT1}, s{sT4}")
    for k in range(7):
        e(f"s_add_u32 m0, s{sT1}, {k*1024}")
        e("s_nop 0")
        e(f"global_load_lds_dwordx4 v{vsrc}, s[{sXP}:{sXP+1}] sc1")
        e(f"v_add_u32 v{vsrc}, 1024, v{vsrc}")
def gemm_main(e, blocks, acc, vXB, ring, swap):
    e.lgkm = []
    steps = [(u, kt) for u in range(14) for kt in range(2)]
    NR = len(ring)
    def rd(n):
        u, kt = steps[n]; r = ring[n % NR]
        e.ds(f"ds_read_b128 v[{r}:{r+3}], v{vXB} offset:{kt*14336 + u*1024}", f"x{n}")
    for n in range(NR): rd(n)
    for n, (u, kt) in enumerate(steps):
        e.wait_lgkm(f"x{n}")
        r = ring[n % NR]
        for i in range(7):
            b = blocks[i*7 + (u >> 1)]; wv = reg((b[0], b[1] + 4*(u & 1)), 4)
            a = acc(kt, i); c = "0" if u == 0 else f"v[{a}:{a+3}]"
            if swap: e(f"v_mfma_f32_16x16x32_bf16 v[{a}:{a+3}], {wv}, v[{r}:{r+3}], {c}")
            else:    e(f"v_mfma_f32_16x16x32_bf16 v[{a}:{a+3}], v[{r}:{r+3}], {wv}, {c}")
        if n + NR < len(steps): rd(n + NR)

def seg_loop_head(e, uid, vsrc):
    e(f"s_mov_b32 s{sSEG}, s{sJ}"); e(f"s_mov_b32 s{sBUF}, 0")
    e(f"s_mov_b32 s{sT3}, s{sSEG}"); e(f"s_mov_b32 s{sT4}, 0")
    dma_xa(e, vsrc)
    e.label(f"b_{uid}_seg")
    e("s_waitcnt vmcnt(0)"); e("s_barrier")
    e(f"s_add_u32 s{sT3}, s{sSEG}, {NJ}"); e(f"s_cmp_ge_u32 s{sT3}, 64"); e(f"s_cbranch_scc1 b_{uid}_nopf")
    e(f"s_xor_b32 s{sT4}, s{sBUF}, {XSEG}")
    dma_xa(e, vsrc)
    e.label(f"b_{uid}_nopf")
def seg_loop_tail(e, uid):
    e(f"s_add_u32 s{sSEG}, s{sSEG}, {NJ}"); e(f"s_xor_b32 s{sBUF}, s{sBUF}, {XSEG}")
    e(f"s_cmp_lt_u32 s{sSEG}, 64"); e(f"s_cbranch_scc1 b_{uid}_seg")

def signal_u(e, sseg, vA, vB_):
    e(f"s_lshl_b32 s{sT0}, s{sseg}, 2"); e(f"s_add_u32 s{sT0}, s{sT0}, {C_URDY}")
    signal_add(e, sT0, vA, vB_)
    e(f"s_lshl_b32 s{sT0}, s{sseg}, 7"); e(f"s_add_u32 s{sT0}, s{sT0}, {C_RDY2}")
    signal_add(e, sT0, vA, vB_)
def signal_add(e, soff, vA, vB_):
    signal_add.n += 1
    e(f"s_cmp_lg_u32 s{sWAVE}, 0"); e(f"s_cbranch_scc1 .Lsig{signal_add.n}")
    e(f"v_mov_b32 v{vA}, s{soff}"); e(f"v_mov_b32 v{vB_}, 1")
    e("s_mov_b64 exec, 1")
    e(f"global_atomic_add v{vA}, v{vB_}, s[{sCN}:{sCN+1}] sc1")
    e("s_mov_b64 exec, -1")
    e.label(f".Lsig{signal_add.n}")
signal_add.n = 0
def poll_sleep(e, sleep, fast, lab):
    if fast is not None:
        e(f"s_cmp_ge_u32 s{fast[0]}, {fast[1]}"); e(f"s_cbranch_scc1 {lab}")
    e(f"s_sleep {sleep}"); e(f"s_branch {lab}")
def wait_counter(e, soff, target, vA, vB_, lab, sleep=8, fast=None):
    e(f"s_cmp_lg_u32 s{sWAVE}, 0"); e(f"s_cbranch_scc1 {lab}_ok")
    e(f"v_mov_b32 v{vA}, s{soff}")
    e("s_mov_b64 exec, 1")
    e.label(lab)
    e(f"global_load_dword v{vB_}, v{vA}, s[{sCN}:{sCN+1}] sc1")
    tmo(e)
    e("s_waitcnt vmcnt(0)")
    e(f"v_cmp_ne_u32 vcc, {target}, v{vB_}")
    e(f"s_cbranch_vccz {lab}_got")
    poll_sleep(e, sleep, fast, lab)
    e.label(f"{lab}_got")
    e("s_mov_b64 exec, -1")
    e.label(f"{lab}_ok")
    e("s_barrier")

def wait_xall_wave(e, vA, vB_, lab, off=None, target=64):
    e(f"v_mov_b32 v{vA}, {C_XALL if off is None else off}")
    e("s_mov_b64 exec, 1")
    e.label(lab)
    e(f"global_load_dword v{vB_}, v{vA}, s[{sCN}:{sCN+1}] sc1")
    tmo(e)
    e("s_waitcnt vmcnt(0)")
    e(f"v_cmp_ne_u32 vcc, {target}, v{vB_}")
    e(f"s_cbranch_vccz {lab}_got")
    e("s_sleep 4"); e(f"s_branch {lab}")
    e.label(f"{lab}_got")
    e("s_mov_b64 exec, -1")

def wait_word(e, sbase, soff, vA, vB_, lab, sleep, fast=None):
    e(f"s_cmp_lg_u32 s{sWAVE}, 0"); e(f"s_cbranch_scc1 {lab}_ok")
    e(f"v_mov_b32 v{vA}, s{soff}")
    e("s_mov_b64 exec, 1")
    e.label(lab)
    e(f"global_load_dword v{vB_}, v{vA}, s[{sbase}:{sbase+1}] sc1")
    tmo(e)
    e("s_waitcnt vmcnt(0)")
    e(f"v_cmp_eq_u32 vcc, -1, v{vB_}")
    e(f"s_cbranch_vccz {lab}_got")
    poll_sleep(e, sleep, fast, lab)
    e.label(f"{lab}_got")
    e("s_mov_b64 exec, -1")
    e.label(f"{lab}_ok")
    e("s_barrier")

def u_worker(e):
    uid = "uw"
    worker_common_setup(e, 1)
    blocks = blocks_regs(32, 120, 17)
    load_weights(e, blocks, [i*TILE for i in range(7)], 4)
    dstamp(e, 12, 0, (116,117))
    wstamp(e, 0, (116,117))
    e(f"s_lshl_b32 s{sT0}, s{sJ}, 7"); e(f"s_add_u32 s{sT0}, s{sT0}, {C_XRDY}")
    wait_counter(e, sT0, 2, 4, 5, "b_uw_x0", 2)
    wstamp(e, 1, (116,117))
    vSRC, vXB, vUA = 4, 5, 6
    ACC = 8
    acc = lambda kt, i: ACC + (kt*7+i)*4
    ring = [64, 68, 72, 76]; vO = 80
    e(f"s_mov_b32 s{sPREV}, 255")
    e(f"s_mov_b32 s{sSEG}, s{sJ}"); e(f"s_mov_b32 s{sBUF}, 0")
    e(f"s_mov_b32 s{sT3}, s{sSEG}"); e(f"s_mov_b32 s{sT4}, 0")
    dma_xa(e, vSRC)
    e("s_waitcnt vmcnt(0)")
    e.label(f"b_{uid}_seg")
    e("s_barrier")
    e(f"s_add_u32 s{sT3}, s{sSEG}, {NJU}"); e(f"s_cmp_ge_u32 s{sT3}, 64"); e(f"s_cbranch_scc1 b_{uid}_nopf")
    e(f"s_cmp_lt_u32 s{sSEG}, {NJU}"); e(f"s_cbranch_scc1 b_{uid}_nopf")
    e(f"s_cmp_ge_u32 s{sSEG}, {3*NJU}"); e(f"s_cbranch_scc1 b_{uid}_xok")
    e(f"s_lshl_b32 s{sT0}, s{sT3}, 7"); e(f"s_add_u32 s{sT0}, s{sT0}, {C_XRDY}")
    wait_counter(e, sT0, 2, 4, 5, "b_uw_x1", 2)
    e(f"s_branch b_{uid}_xok2")
    e.label(f"b_{uid}_xok")
    e(f"s_cmp_ge_u32 s{sSEG}, {4*NJU}"); e(f"s_cbranch_scc1 b_{uid}_xok2")
    e(f"s_mov_b32 s{sT0}, {C_XALL}"); wait_counter(e, sT0, 64, 4, 5, "b_uw_x2", 8)
    e.label(f"b_{uid}_xok2")
    e(f"s_xor_b32 s{sT4}, s{sBUF}, {XSEG}")
    dma_xa(e, vSRC)
    e.label(f"b_{uid}_nopf")
    e(f"v_add_u32 v{vXB}, s{sBUF}, v{vL16}")
    gemm_main(e, blocks, acc, vXB, ring, False)
    e("s_waitcnt vmcnt(0)"); e("s_barrier")
    e(f"s_cmp_eq_u32 s{sPREV}, 255"); e(f"s_cbranch_scc1 b_{uid}_nosig")
    signal_u(e, sPREV, 80, 81)
    e.label(f"b_{uid}_nosig")
    e(f"s_mul_i32 s{sT0}, s{sSEG}, {U_SEG}")
    e(f"s_lshr_b32 s{sT1}, s{sH}, 1"); e(f"s_lshl_b32 s{sT1}, s{sT1}, 12"); e(f"s_add_u32 s{sT0}, s{sT0}, s{sT1}")
    e(f"s_and_b32 s{sT1}, s{sH}, 1"); e(f"s_lshl_b32 s{sT1}, s{sT1}, 10"); e(f"s_add_u32 s{sT0}, s{sT0}, s{sT1}")
    e(f"s_mul_i32 s{sT2}, s{sWAVE}, 7")
    for i in range(7):
        e(f"s_add_u32 s{sT1}, s{sT2}, {i}")
        e(f"s_lshr_b32 s{sT3}, s{sT1}, 1"); e(f"s_lshl_b32 s{sT3}, s{sT3}, 15")
        e(f"s_and_b32 s{sT1}, s{sT1}, 1"); e(f"s_lshl_b32 s{sT1}, s{sT1}, 11")
        e(f"s_add_u32 s{sT3}, s{sT3}, s{sT1}"); e(f"s_add_u32 s{sT3}, s{sT3}, s{sT0}")
        e(f"v_add_u32 v{vUA}, s{sT3}, v{vL16}")
        o = vO + 4*(i % 2)
        a0, a1 = acc(0,i), acc(1,i)
        e(f"v_cvt_pk_bf16_f32 v{o}, v{a0}, v{a0+1}"); e(f"v_cvt_pk_bf16_f32 v{o+1}, v{a0+2}, v{a0+3}")
        e(f"v_cvt_pk_bf16_f32 v{o+2}, v{a1}, v{a1+1}"); e(f"v_cvt_pk_bf16_f32 v{o+3}, v{a1+2}, v{a1+3}")
        e(f"global_store_dwordx4 v{vUA}, v[{o}:{o+3}], s[{sUP}:{sUP+1}] sc1")
    e(f"s_mov_b32 s{sPREV}, s{sSEG}")
    e(f"s_cmp_ge_u32 s{sSEG}, {2*NJU}"); e(f"s_cbranch_scc1 b_{uid}_lazy")
    e("s_waitcnt vmcnt(0)"); e("s_barrier")
    signal_u(e, sPREV, 80, 81)
    e(f"s_mov_b32 s{sPREV}, 255")
    e(f"s_cmp_ge_u32 s{sSEG}, {NJU}"); e(f"s_cbranch_scc1 b_{uid}_lazy")
    e(f"s_add_u32 s{sT3}, s{sSEG}, {NJU}")
    e(f"s_lshl_b32 s{sT0}, s{sT3}, 7"); e(f"s_add_u32 s{sT0}, s{sT0}, {C_XRDY}")
    wait_counter(e, sT0, 2, 4, 5, "b_uw_x3", 2)
    e(f"s_add_u32 s{sT3}, s{sSEG}, {NJU}"); e(f"s_xor_b32 s{sT4}, s{sBUF}, {XSEG}")
    dma_xa(e, vSRC)
    e("s_waitcnt vmcnt(0)")
    e.label(f"b_{uid}_lazy")
    if DIAG[0]:
        e(f"s_mov_b32 s{sSTEP}, s{sSEG}"); dstamp(e, 13, 0, (116,117), step=0)
        e(f"s_cmp_ge_u32 s{sSEG}, {NJU}"); e("s_cbranch_scc1 .Lws2"); wstamp(e, 2, (116,117)); e.label(".Lws2")
    e(f"s_add_u32 s{sSEG}, s{sSEG}, {NJU}"); e(f"s_xor_b32 s{sBUF}, s{sBUF}, {XSEG}")
    e(f"s_cmp_lt_u32 s{sSEG}, 64"); e(f"s_cbranch_scc1 b_{uid}_seg")
    e("s_waitcnt vmcnt(0)"); e("s_barrier")
    e(f"s_cmp_eq_u32 s{sPREV}, 255"); e(f"s_cbranch_scc1 b_{uid}_fin")
    signal_u(e, sPREV, 80, 81)
    e.label(f"b_{uid}_fin")
    dstamp(e, 14, 0, (116,117))
    e("s_endpgm")

def z_worker(e):
    worker_common_setup(e, 1)
    blocks = blocks_regs(32, 120, 17)
    e(f"s_mov_b32 s{sT0}, {C_XALL}"); wait_counter(e, sT0, 64, 4, 5, "b_zw_xall", 8)
    load_weights(e, blocks, [i*TILE for i in range(7)], 4)
    vIDX_, am = vIDX, 12
    ACC = 40
    vZA, vT = 4, 5
    e(f"s_mov_b32 s{sSEG}, s{sJ}")
    e.label("b_zw_seg")
    e(f"s_mul_i32 s{sT0}, s{sSEG}, {W.MEMX_STRIDE}")
    e(f"s_add_u32 s{sT1}, s{sT0}, 7164")
    wait_word(e, sMXI, sT1, 6, 7, "b_zw_pre", OPT.get('zsleep', 8), fast=(sSEG, 61))
    e(f"v_add_u32 v{vT}, s{sT0}, v{vL16}"); e(f"v_add_u32 v6, 4096, v{vT}")
    e.label("b_zw_poll")
    for t in range(7):
        if t < 4: e(f"global_load_dwordx4 v[{am+4*t}:{am+4*t+3}], v{vT}, s[{sMXI}:{sMXI+1}] offset:{t*1024} sc1")
        else:     e(f"global_load_dwordx4 v[{am+4*t}:{am+4*t+3}], v6, s[{sMXI}:{sMXI+1}] offset:{(t-4)*1024} sc1")
    tmo(e)
    for i in range(7):
        for l in zero4(ACC+4*i): e(l)
    e("s_waitcnt vmcnt(0)")
    for l in sentinel_tree([am+k for k in range(28)], 7): e(l)
    e("s_cbranch_vccz b_zw_ok")
    e("s_sleep 2"); e("s_branch b_zw_poll")
    e.label("b_zw_ok")
    for t in range(7):
        for i in range(7):
            e(f"v_smfmac_f32_16x16x64_bf16 v[{ACC+4*i}:{ACC+4*i+3}], v[{am+4*t}:{am+4*t+3}], {reg(blocks[i*7+t],8)}, v{vIDX_}")
    e(f"s_mul_i32 s{sT0}, s{sSEG}, {W.ZM_SEG}")
    e(f"s_lshr_b32 s{sT1}, s{sH}, 2"); e(f"s_lshl_b32 s{sT1}, s{sT1}, 12"); e(f"s_add_u32 s{sT0}, s{sT0}, s{sT1}")
    e(f"s_lshr_b32 s{sT1}, s{sH}, 1"); e(f"s_and_b32 s{sT1}, s{sT1}, 1"); e(f"s_lshl_b32 s{sT1}, s{sT1}, 10"); e(f"s_add_u32 s{sT0}, s{sT0}, s{sT1}")
    e(f"s_and_b32 s{sT1}, s{sH}, 1"); e(f"s_lshl_b32 s{sT1}, s{sT1}, 3"); e(f"s_add_u32 s{sT0}, s{sT0}, s{sT1}")
    e(f"s_mul_i32 s{sT2}, s{sWAVE}, 7")
    e.nop(2)
    for i in range(7):
        e(f"s_add_u32 s{sT1}, s{sT2}, {i}")
        e(f"s_lshr_b32 s{sT3}, s{sT1}, 1"); e(f"s_lshl_b32 s{sT3}, s{sT3}, 14")
        e(f"s_and_b32 s{sT1}, s{sT1}, 1"); e(f"s_lshl_b32 s{sT1}, s{sT1}, 11")
        e(f"s_add_u32 s{sT3}, s{sT3}, s{sT1}"); e(f"s_add_u32 s{sT3}, s{sT3}, s{sT0}")
        e(f"v_add_u32 v{vZA}, s{sT3}, v{vL16}")
        a = ACC+4*i; o = 8 + 2*(i % 2)
        e(f"v_cvt_pk_bf16_f32 v{o}, v{a}, v{a+1}"); e(f"v_cvt_pk_bf16_f32 v{o+1}, v{a+2}, v{a+3}")
        e(f"global_store_dwordx2 v{vZA}, v[{o}:{o+1}], s[{sZM}:{sZM+1}] sc1")
    e("s_waitcnt vmcnt(0)"); e("s_barrier")
    e(f"s_lshl_b32 s{sT0}, s{sSEG}, 7"); e(f"s_add_u32 s{sT0}, s{sT0}, {C_RDY2}")
    signal_add(e, sT0, 80, 81)
    e(f"s_add_u32 s{sSEG}, s{sSEG}, {NJZ}"); e(f"s_cmp_lt_u32 s{sSEG}, 64"); e("s_cbranch_scc1 b_zw_seg")
    e("s_endpgm")

def pv_loop(e):
    vA, vB_, vT, vRes = 4, 5, 6, 8
    PX, PM, UU, ZZ, ACC = 16, 48, 64, 96, 112
    vRW, vRR, vXO, vOUTA = 128, 129, 130, 131
    sTASK, sC = sPREV, sJ
    e(f"s_mov_b32 s{sTASK}, s{sROLE}")
    e(f"s_lshl_b32 s{sT0}, s{sWAVE}, 12"); e(f"v_add_u32 v{vRW}, s{sT0}, v{vL16}")
    e("v_lshrrev_b32 v10, 3, v0"); e("v_and_b32 v11, 7, v0")
    e("v_lshrrev_b32 v12, 4, v10"); e("v_lshlrev_b32 v12, 11, v12")
    e("v_lshrrev_b32 v13, 2, v11"); e("v_lshl_add_u32 v12, v13, 10, v12")
    e("v_and_b32 v13, 15, v10"); e("v_lshrrev_b32 v13, 2, v13"); e("v_lshl_add_u32 v12, v13, 8, v12")
    e("v_and_b32 v13, 3, v11"); e("v_lshl_add_u32 v12, v13, 6, v12")
    e("v_and_b32 v13, 3, v10"); e(f"v_lshl_add_u32 v{vRR}, v13, 2, v12")
    e(f"v_mul_u32_u24 v{vXO}, 896, v10"); e(f"v_lshl_add_u32 v{vXO}, v11, 3, v{vXO}")
    e.label("b_pv_task")
    e(f"s_mul_hi_u32 s{sSEG}, s{sTASK}, {(2**32+13)//14}")
    e(f"s_mul_i32 s{sT0}, s{sSEG}, 14"); e(f"s_sub_u32 s{sC}, s{sTASK}, s{sT0}")
    e(f"s_lshl_b32 s{sT0}, s{sSEG}, 2"); e(f"s_add_u32 s{sT0}, s{sT0}, {C_URDY}")
    wait_counter(e, sT0, 16, vA, vB_, "b_pv_wu", 10)
    e(f"s_mul_i32 s{sT0}, s{sSEG}, {U_SEG}"); e(f"s_lshl_b32 s{sT1}, s{sC}, 15"); e(f"s_add_u32 s{sT0}, s{sT0}, s{sT1}")
    e(f"s_lshl_b32 s{sT1}, s{sWAVE}, 13"); e(f"s_add_u32 s{sT0}, s{sT0}, s{sT1}")
    e(f"v_add_u32 v{vT}, s{sT0}, v{vL16}")
    for k in range(8):
        e(f"global_load_dwordx4 v[{UU+4*k}:{UU+4*k+3}], v{vT}, s[{sUP}:{sUP+1}] offset:{(k%4)*1024} sc1")
        if k == 3: e(f"v_add_u32 v{vT}, 4096, v{vT}")
    e(f"s_mul_i32 s{sT0}, s{sSEG}, {32*896}"); e(f"s_lshl_b32 s{sT1}, s{sC}, 6"); e(f"s_add_u32 s{sT0}, s{sT0}, s{sT1}")
    e(f"v_add_u32 v{vOUTA}, s{sT0}, v{vXO}")
    e(f"global_load_dwordx2 v[{vRes}:{vRes+1}], v{vOUTA}, s[{sRES}:{sRES+1}] sc1")
    e(f"s_lshl_b32 s{sT0}, s{sSEG}, 7"); e(f"s_add_u32 s{sT0}, s{sT0}, {C_RDY2}")
    wait_counter(e, sT0, 48, vA, vB_, "b_pv_wp", OPT.get('pvsleep', 10), fast=(sSEG, 61))
    e(f"s_mul_i32 s{sT0}, s{sSEG}, {W.PX_SEG}"); e(f"s_lshl_b32 s{sT1}, s{sWAVE}, 13"); e(f"s_add_u32 s{sT1}, s{sT1}, s{sT0}")
    e(f"v_add_u32 v{vT}, s{sT1}, v{vL16}")
    for k in range(8):
        e(f"global_load_dwordx4 v[{PX+4*k}:{PX+4*k+3}], v{vT}, s[{sPX}:{sPX+1}] offset:{(k%4)*1024} sc1")
        if k == 3: e(f"v_add_u32 v{vT}, 4096, v{vT}")
    e(f"s_lshl_b32 s{sT1}, s{sWAVE}, 12"); e(f"s_add_u32 s{sT1}, s{sT1}, s{sT0}"); e(f"s_add_u32 s{sT1}, s{sT1}, 32768")
    e(f"v_add_u32 v{vT}, s{sT1}, v{vL16}")
    for k in range(4): e(f"global_load_dwordx4 v[{PM+4*k}:{PM+4*k+3}], v{vT}, s[{sPX}:{sPX+1}] offset:{k*1024} sc1")
    e(f"s_mul_i32 s{sT0}, s{sSEG}, {W.ZM_SEG}"); e(f"s_lshl_b32 s{sT1}, s{sC}, 14"); e(f"s_add_u32 s{sT0}, s{sT0}, s{sT1}")
    e(f"s_lshl_b32 s{sT1}, s{sWAVE}, 12"); e(f"s_add_u32 s{sT0}, s{sT0}, s{sT1}")
    e(f"v_add_u32 v{vT}, s{sT0}, v{vL16}")
    for k in range(4): e(f"global_load_dwordx4 v[{ZZ+4*k}:{ZZ+4*k+3}], v{vT}, s[{sZM}:{sZM+1}] offset:{k*1024} sc1")
    e("s_waitcnt vmcnt(0)")
    for qt in range(2):
        for nt in range(2):
            a = ACC + 4*(2*qt+nt); first = True
            for hh in range(4):
                kp, b = hh >> 1, hh & 1
                c = "0" if first else f"v[{a}:{a+3}]"; first = False
                e(f"v_mfma_f32_16x16x32_bf16 v[{a}:{a+3}], v[{PX+4*(2*hh+qt)}:{PX+4*(2*hh+qt)+3}], v[{UU+4*(4*kp+2*nt+b)}:{UU+4*(4*kp+2*nt+b)+3}], {c}")
            for pp in range(2):
                e(f"v_mfma_f32_16x16x32_bf16 v[{a}:{a+3}], v[{PM+4*(2*pp+qt)}:{PM+4*(2*pp+qt)+3}], v[{ZZ+4*(2*nt+pp)}:{ZZ+4*(2*nt+pp)+3}], v[{a}:{a+3}]")
    e.nop(8)
    for k in range(4): e(f"ds_write_b128 v{vRW}, v[{ACC+4*k}:{ACC+4*k+3}] offset:{k*1024}")
    e("s_waitcnt lgkmcnt(0)"); e("s_barrier")
    for ww in range(4):
        for k in range(4): e(f"ds_read_b32 v{16+4*ww+k}, v{vRR} offset:{ww*4096 + k*16}")
    e("s_waitcnt lgkmcnt(0)")
    for k in range(4):
        e(f"v_add_f32 v{16+k}, v{16+k}, v{20+k}"); e(f"v_add_f32 v{24+k}, v{24+k}, v{28+k}"); e(f"v_add_f32 v{16+k}, v{16+k}, v{24+k}")
    for h2 in range(2):
        e(f"v_cvt_pk_bf16_f32 v32, v{16+2*h2}, v{17+2*h2}")
        e("v_lshlrev_b32 v33, 16, v32"); e("v_and_b32 v34, 0xffff0000, v32")
        e(f"v_lshlrev_b32 v35, 16, v{vRes+h2}"); e(f"v_and_b32 v36, 0xffff0000, v{vRes+h2}")
        e("v_add_f32 v33, v33, v35"); e("v_add_f32 v34, v34, v36")
        e(f"v_cvt_pk_bf16_f32 v{38+h2}, v33, v34")
    e(f"global_store_dwordx2 v{vOUTA}, v[38:39], s[{sOUT}:{sOUT+1}]")
    e(f"s_add_u32 s{sTASK}, s{sTASK}, 64"); e(f"s_cmp_lt_u32 s{sTASK}, 896"); e("s_cbranch_scc1 b_pv_task")
    dstamp(e, 15, 0, (116,117)); dstamp(e, 18, 63, (116,117)); dstamp(e, 19, 50, (116,117))
    e("s_endpgm")

def fcpv_worker(e):
    smap = {2: sROLE, 3: sWAVE}
    for k in range(6, 24): smap[k] = 70 + k
    k_fft.fc_body(e, smap, "sc1")
    e("s_waitcnt vmcnt(0)"); e("s_barrier")
    for p in range(2):
        e(f"s_lshr_b32 s{sT0}, s{sROLE}, 2"); e(f"s_lshl_b32 s{sT0}, s{sT0}, 2"); e(f"s_lshr_b32 s{sT1}, s{sROLE}, 1"); e(f"s_and_b32 s{sT1}, s{sT1}, 1")
        e(f"s_add_u32 s{sT0}, s{sT0}, s{sT1}"); e(f"s_add_u32 s{sT0}, s{sT0}, {2*p}")
        e(f"s_lshl_b32 s{sT0}, s{sT0}, 7"); e(f"s_add_u32 s{sT0}, s{sT0}, {C_XRDY}")
        signal_add(e, sT0, 4, 5)
    e(f"s_mov_b32 s{sT0}, {C_XALL}"); signal_add(e, sT0, 4, 5)
    dstamp(e, 20, 0, (116,117)); wstamp(e, 3, (116,117))
    e(f"v_lshlrev_b32 v{vL16}, 4, v{vLANE}")
    pv_loop(e)

def p_worker(e):
    if OPT.get('nopw'): e("s_endpgm")
    uid = "pw"
    worker_common_setup(e, 0)
    blocks = blocks_regs(32, 120, 17)
    e(f"s_mov_b32 s{sT0}, {C_XALL}"); wait_counter(e, sT0, 64, 4, 5, "b_pw_xall", 8)
    load_weights(e, blocks, [i*TILE for i in range(7)], 4)
    dstamp(e, 16, 0, (116,117))
    vSRC, vXB, vKA, vMA = 4, 5, 6, 7
    ACC = 8
    acc = lambda qt, i: ACC + (qt*7+i)*4
    ring = [64, 68, 72, 76]
    RB = 80
    SA = 64
    vT = 112; vT2 = 113; vT3 = 114; vMEM = 116
    e(f"v_and_b32 v{vT}, 15, v{vLANE}"); e(f"v_lshrrev_b32 v{vT2}, 4, v{vLANE}")
    e(f"v_lshlrev_b32 v{vKA}, 4, v{vT}")
    e(f"v_lshrrev_b32 v{vT3}, 1, v{vT2}"); e(f"v_lshl_add_u32 v{vKA}, v{vT3}, 8, v{vKA}")
    e(f"v_and_b32 v{vT3}, 1, v{vT2}"); e(f"v_lshl_add_u32 v{vKA}, v{vT3}, 3, v{vKA}")
    e(f"s_mul_i32 s{sT0}, s{sWAVE}, 3584"); e(f"v_add_u32 v{vKA}, s{sT0}, v{vKA}")
    e(f"v_and_b32 v{vMA}, 7, v{vT}"); e(f"v_mul_u32_u24 v{vMA}, 912, v{vMA}")
    e(f"v_lshl_add_u32 v{vMA}, v{vT2}, 3, v{vMA}")
    e(f"s_mul_i32 s{sT0}, s{sWAVE}, 224"); e(f"s_add_u32 s{sT0}, s{sT0}, {W_MEMR}"); e(f"v_add_u32 v{vMA}, s{sT0}, v{vMA}")
    seg_loop_head(e, uid, vSRC)
    e(f"v_add_u32 v{vXB}, s{sBUF}, v{vL16}")
    gemm_main(e, blocks, acc, vXB, ring, True)
    e.nop(8)
    for qt in range(2):
        for p in range(4):
            o = RB + 16*qt + 4*p
            a0 = acc(qt, 2*p)
            e(f"v_cvt_pk_bf16_f32 v{o}, v{a0}, v{a0+1}"); e(f"v_cvt_pk_bf16_f32 v{o+1}, v{a0+2}, v{a0+3}")
            if p < 3:
                a1 = acc(qt, 2*p+1)
                e(f"v_cvt_pk_bf16_f32 v{o+2}, v{a1}, v{a1+1}"); e(f"v_cvt_pk_bf16_f32 v{o+3}, v{a1+2}, v{a1+3}")
            else:
                e(f"v_mov_b64 v[{o+2}:{o+3}], 0")
    S = lambda kt, qt: 8 + (kt*2+qt)*4
    e(f"v_add_u32 v{vT}, s{sBUF}, v{vKA}")
    def key_reads(kt, p, dst):
        i0, i1 = 2*p, min(2*p+1, 6)
        if kt == 0:
            e(f"ds_read_b64 v[{dst}:{dst+1}], v{vMA} offset:{i0*32}"); e(f"ds_read_b64 v[{dst+2}:{dst+3}], v{vMA} offset:{i1*32}")
        else:
            e(f"ds_read_b64 v[{dst}:{dst+1}], v{vT} offset:{(kt-1)*14336 + i0*512}"); e(f"ds_read_b64 v[{dst+2}:{dst+3}], v{vT} offset:{(kt-1)*14336 + i1*512}")
    def s_mfmas(kts):
        for kt in kts:
            for p in range(4): key_reads(kt, p, 32+4*p)
            e("s_waitcnt lgkmcnt(0)")
            for p in range(4):
                for qt in range(2):
                    a = S(kt, qt); c = "0" if p == 0 else f"v[{a}:{a+3}]"
                    e(f"v_mfma_f32_16x16x32_bf16 v[{a}:{a+3}], v[{32+4*p}:{35+4*p}], v[{RB+16*qt+4*p}:{RB+16*qt+4*p+3}], {c}")
            e.nop(2)
    s_mfmas([1, 2])
    e(f"s_mul_i32 s{sT0}, s{sSEG}, {W.MEMX_STRIDE}")
    e(f"s_add_u32 s{sT1}, s{sT0}, 7164")
    wait_word(e, sMX, sT1, 56, 57, "b_pw_pre", OPT.get('psleep', 8), fast=(sSEG, 61))
    e(f"v_lshlrev_b32 v{vT2}, 4, v0"); e(f"v_add_u32 v{vT2}, s{sT0}, v{vT2}")
    e(f"v_add_u32 v{vT3}, 256, v0"); e(f"v_min_u32 v{vT3}, 447, v{vT3}"); e(f"v_lshlrev_b32 v{vT3}, 4, v{vT3}"); e(f"v_add_u32 v{vT3}, s{sT0}, v{vT3}")
    e.label("b_pw_wm")
    e(f"global_load_dwordx4 v[48:51], v{vT2}, s[{sMX}:{sMX+1}] sc1")
    e(f"global_load_dwordx4 v[52:55], v{vT3}, s[{sMX}:{sMX+1}] sc1")
    tmo(e)
    e("s_waitcnt vmcnt(0)")
    for l in sentinel_tree(list(range(48, 56)), 56): e(l)
    e("s_cbranch_vccz b_pw_wm_ok")
    e("s_sleep 2"); e("s_branch b_pw_wm")
    e.label("b_pw_wm_ok")
    for k,(src, dat) in enumerate(((0, 48), (1, 52))):
        if k == 0: e("v_mov_b32 v56, v0")
        else:
            e("v_add_u32 v56, 256, v0"); e("v_min_u32 v56, 447, v56")
        e(f"s_mov_b32 s{sT1}, {(2**32+55)//56}")
        e(f"v_mul_hi_u32 v57, v56, s{sT1}"); e("v_mul_u32_u24 v58, 56, v57"); e("v_sub_u32 v58, v56, v58")
        e("v_mul_u32_u24 v57, 912, v57"); e("v_lshl_add_u32 v57, v58, 4, v57")
        e(f"v_add_u32 v57, {W_MEMR}, v57")
        e(f"ds_write_b128 v57, v[{dat}:{dat+3}]")
    e("s_waitcnt lgkmcnt(0)"); e("s_barrier")
    s_mfmas([0])
    e(f"s_mul_i32 s{sT0}, s{sWAVE}, 6144"); e(f"s_add_u32 s{sT0}, s{sT0}, {W_RED}")
    e(f"v_add_u32 v{vT2}, s{sT0}, v{vL16}")
    e.nop(6)
    for k in range(6): e(f"ds_write_b128 v{vT2}, v[{8+4*k}:{11+4*k}] offset:{k*1024}")
    e("s_waitcnt lgkmcnt(0)"); e("s_barrier")
    e(f"s_cmp_ge_u32 s{sWAVE}, 2"); e("s_cbranch_scc1 b_pw_fin")
    e(f"s_lshl_b32 s{sT0}, s{sWAVE}, 10"); e(f"s_add_u32 s{sT0}, s{sT0}, {W_RED}")
    e(f"v_add_u32 v{vT2}, s{sT0}, v{vL16}")
    for ww in range(4):
        for kt in range(3): e(f"ds_read_b128 v[{64+12*ww+4*kt}:{67+12*ww+4*kt}], v{vT2} offset:{ww*6144 + kt*2048}")
    e("s_waitcnt lgkmcnt(0)")
    for k in range(12):
        e(f"v_add_f32 v{8+k}, v{64+k}, v{76+k}"); e(f"v_add_f32 v{24+k}, v{88+k}, v{100+k}"); e(f"v_add_f32 v{8+k}, v{8+k}, v{24+k}")
    e(f"v_and_b32 v40, 15, v{vLANE}"); e(f"v_lshrrev_b32 v41, 4, v{vLANE}"); e("v_lshlrev_b32 v41, 2, v41")
    e("v_mov_b32 v42, 0xf149f2ca")
    e(f"s_cmp_eq_u32 s{sWAVE}, 0"); e("s_cbranch_scc0 b_pw_q1")
    for r in range(4):
        e(f"v_add_u32 v43, {r}, v41"); e("v_cmp_le_u32 vcc, v43, v40"); e("s_nop 1")
        e(f"v_cndmask_b32 v{12+r}, v42, v{12+r}, vcc"); e(f"v_mov_b32 v{16+r}, v42")
    e("s_branch b_pw_sm")
    e.label("b_pw_q1")
    for r in range(4):
        e(f"v_add_u32 v43, {r}, v41"); e("v_cmp_le_u32 vcc, v43, v40"); e("s_nop 1")
        e(f"v_cndmask_b32 v{16+r}, v42, v{16+r}, vcc")
    e.label("b_pw_sm")
    e("v_max3_f32 v44, v8, v9, v10")
    for k in range(11, 19, 2): e(f"v_max3_f32 v44, v44, v{k}, v{k+1}")
    e("v_max_f32 v44, v44, v19")
    for sw in ("v_permlane16_swap_b32", "v_permlane32_swap_b32"):
        e("v_mov_b32 v45, v44"); e.nop(2); e(f"{sw} v44, v45"); e("v_max_f32 v44, v44, v45")
    for k in range(12): e(f"v_sub_f32 v{8+k}, v{8+k}, v44")
    for k in range(12): e(f"v_exp_f32 v{8+k}, v{8+k}")
    e.nop(1)
    e("v_add_f32 v46, v8, v9"); e("v_add_f32 v47, v10, v11"); e("v_add_f32 v46, v46, v47"); e("v_mul_f32 v46, 0.5, v46")
    for k in range(12, 20): e(f"v_add_f32 v46, v46, v{k}")
    for sw in ("v_permlane16_swap_b32", "v_permlane32_swap_b32"):
        e("v_mov_b32 v45, v46"); e.nop(2); e(f"{sw} v46, v45"); e("v_add_f32 v46, v46, v45")
    e("v_rcp_f32 v46, v46"); e.nop(1)
    for k in range(12): e(f"v_mul_f32 v{8+k}, v{8+k}, v46")
    for k in range(6): e(f"v_cvt_pk_bf16_f32 v{48+k}, v{8+2*k}, v{9+2*k}")
    e(f"s_mul_i32 s{sT0}, s{sSEG}, {W.PX_SEG}"); e(f"s_lshl_b32 s{sT1}, s{sWAVE}, 10"); e(f"s_add_u32 s{sT0}, s{sT0}, s{sT1}")
    e(f"s_lshl_b32 s{sT1}, s{sH}, 11"); e(f"s_add_u32 s{sT1}, s{sT1}, s{sT0}")
    e(f"v_add_u32 v{vT2}, s{sT1}, v{vL16}")
    e(f"v_mov_b32 v54, v50"); e("v_mov_b32 v55, v51"); e("v_mov_b32 v56, v52"); e("v_mov_b32 v57, v53")
    e(f"global_store_dwordx4 v{vT2}, v[54:57], s[{sPX}:{sPX+1}] sc1")
    e(f"s_lshr_b32 s{sT1}, s{sH}, 1"); e(f"s_lshl_b32 s{sT1}, s{sT1}, 11"); e(f"s_add_u32 s{sT1}, s{sT1}, s{sT0}")
    e(f"s_and_b32 s{sT2}, s{sH}, 1"); e(f"s_lshl_b32 s{sT2}, s{sT2}, 3"); e(f"s_add_u32 s{sT1}, s{sT1}, s{sT2}"); e(f"s_add_u32 s{sT1}, s{sT1}, 32768")
    e(f"v_add_u32 v{vT3}, s{sT1}, v{vL16}")
    e(f"global_store_dwordx2 v{vT3}, v[48:49], s[{sPX}:{sPX+1}] sc1")
    e.label("b_pw_fin")
    e("s_waitcnt vmcnt(0)"); e("s_barrier")
    e(f"s_lshl_b32 s{sT0}, s{sSEG}, 7"); e(f"s_add_u32 s{sT0}, s{sT0}, {C_RDY2}")
    signal_add(e, sT0, 48, 49)
    seg_loop_tail(e, uid)
    dstamp(e, 17, 0, (116,117))
    e("s_endpgm")

def gen(e):
    global NJ, NJU, NJZ
    NJ = OPT.get('nj', 3); NJU = OPT.get('nju', 2); NJZ = OPT.get('njz', 2)
    for L in range(2):
        kernel_head(e, f"b{L}_kernel")
        e(f"s_mov_b32 s{sLAY}, {L}")
        if L == 0: e("s_branch b_body")
    e.label("b_body")
    e("s_cmp_ge_u32 s2, 256"); e("s_cbranch_scc1 b_end")
    load_ptr(e, sWS, 'ws'); load_ptr(e, sOUT, 'out')
    if DIAG[0]:
        load_ptr(e, sDBG, 'dbg'); e("s_memrealtime s[96:97]")
    lane_wave(e, vLANE, sWAVE, 4)
    e(f"v_lshlrev_b32 v{vL16}, 4, v{vLANE}")
    e(f"s_getreg_b32 s{sXCC}, hwreg(HW_REG_XCC_ID)"); e(f"s_and_b32 s{sXCC}, s{sXCC}, 15")
    e("s_waitcnt lgkmcnt(0)")
    e(f"s_mul_i32 s{sT0}, s{sLAY}, 32768"); e(f"s_add_u32 s{sT0}, s{sT0}, {W.CNT}")
    e(f"s_add_u32 s{sCN}, s{sWS}, s{sT0}"); e(f"s_addc_u32 s{sCN+1}, s{sWS+1}, 0")
    ws_ptr(e, sW, sWS, W.WIMG); ws_ptr(e, sXP, sWS, W.XA); ws_ptr(e, sUP, sWS, W.UIMG); ws_ptr(e, sZM, sWS, W.ZM); ws_ptr(e, sPX, sWS, W.PX)
    def lay_ptr(dst, o0, o1):
        e(f"s_cmp_eq_u32 s{sLAY}, 0"); e(f"s_mov_b32 s{sT1}, {o1}"); e(f"s_cselect_b32 s{sT0}, {o0}, s{sT1}")
        e(f"s_add_u32 s{dst}, s{sWS}, s{sT0}"); e(f"s_addc_u32 s{dst+1}, s{sWS+1}, 0")
    lay_ptr(sMEM, W.MEMB[0] + 3072, W.MEMB[1] + 3072); lay_ptr(sP, W.PB[0], W.PB[1]); lay_ptr(sMX, W.MEMX[0], W.MEMX[1])
    lay_ptr(sRES, W.X1, W.X3); lay_ptr(sMXI, W.MEMXI[0], W.MEMXI[1])
    e(f"s_add_u32 s{sT0}, s{sWS}, {W.X2}"); e(f"s_addc_u32 s{sT1}, s{sWS+1}, 0")
    e(f"s_cmp_eq_u32 s{sLAY}, 0")
    e(f"s_cselect_b32 s{sOUT}, s{sT0}, s{sOUT}"); e(f"s_cselect_b32 s{sOUT+1}, s{sT1}, s{sOUT+1}")
    e(f"s_mov_b32 s{sTMO}, 4000000"); e(f"s_mov_b32 s{sSTEP}, 0")
    e(f"s_mov_b32 s{sM56}, -1"); e(f"s_mov_b32 s{sM56+1}, 0x00ffffff")
    e(f"s_mov_b32 s{sM57}, -1"); e(f"s_mov_b32 s{sM57+1}, 0x01ffffff")
    e(f"s_cmp_lg_u32 s{sWAVE}, 0"); e("s_cbranch_scc1 b_el_wait")
    e("s_mov_b64 exec, 1")
    e(f"s_lshl_b32 s{sT0}, s{sXCC}, 7"); e(f"v_mov_b32 v4, s{sT0}"); e("v_mov_b32 v5, 1")
    e(f"global_atomic_add v6, v4, v5, s[{sCN}:{sCN+1}] sc0 sc1")
    e("s_waitcnt vmcnt(0)")
    e("v_cmp_eq_u32 vcc, 31, v6"); e("s_cbranch_vccz b_el_poll")
    e(f"s_add_u32 s{sT0}, s{sXCC}, 1"); e(f"v_mov_b32 v8, s{sT0}"); e("v_mov_b32 v9, 0"); e(f"v_mov_b32 v4, {C_WIN}")
    e(f"global_atomic_cmpswap v4, v[8:9], s[{sCN}:{sCN+1}] sc1")
    e.label("b_el_poll")
    e(f"v_mov_b32 v4, {C_WIN}")
    e(f"global_load_dword v7, v4, s[{sCN}:{sCN+1}] sc1")
    tmo(e)
    e("s_waitcnt vmcnt(0)")
    e("v_cmp_eq_u32 vcc, 0, v7"); e("s_cbranch_vccnz b_el_poll")
    e(f"s_add_u32 s{sT0}, s{sXCC}, 1")
    e(f"v_cmp_eq_u32 vcc, s{sT0}, v7"); e("v_cmp_ge_u32 s[50:51], 31, v6"); e("s_and_b64 vcc, vcc, s[50:51]")
    e("s_cbranch_vccnz b_el_chain")
    e(f"v_mov_b32 v4, {C_SLOT}"); e("v_mov_b32 v5, 1")
    e(f"global_atomic_add v6, v4, v5, s[{sCN}:{sCN+1}] sc0 sc1")
    e("s_waitcnt vmcnt(0)")
    e("v_add_u32 v6, 32, v6")
    e.label("b_el_chain")
    e("v_mov_b32 v4, 0")
    e("ds_write_b32 v4, v6")
    e("s_waitcnt lgkmcnt(0)")
    e("s_mov_b64 exec, -1")
    e.label("b_el_wait")
    e("s_barrier")
    e("v_mov_b32 v4, 0"); e("ds_read_b32 v6, v4"); e("s_waitcnt lgkmcnt(0)")
    e(f"v_readfirstlane_b32 s{sROLE}, v6"); e("s_nop 3")
    e("s_barrier")
    e(f"v_and_b32 v4, 8, v{vLANE}"); e("v_cmp_ne_u32 vcc, 0, v4"); e("v_mov_b32 v5, 0x4444"); e("v_mov_b32 v6, 0xeeee"); e("s_nop 1")
    e(f"v_cndmask_b32 v{vIDX}, v5, v6, vcc")
    e(f"s_cmp_ge_u32 s{sROLE}, 32"); e("s_cbranch_scc1 b_worker")
    tr_init(e)
    e(f"s_cmp_eq_u32 s{sROLE}, 30"); e("s_cbranch_scc1 b_helper")
    e(f"s_cmp_eq_u32 s{sROLE}, 31"); e("s_cbranch_scc1 b_pub")
    e(f"s_cmp_ge_u32 s{sROLE}, 16"); e("s_cbranch_scc1 b_value")
    e(f"s_mul_i32 s{sT0}, s{sROLE}, {HEAD_IMG}"); e(f"s_add_u32 s{sW}, s{sW}, s{sT0}"); e(f"s_addc_u32 s{sW+1}, s{sW+1}, 0")
    for w in range(3):
        e(f"s_cmp_eq_u32 s{sWAVE}, {w}"); e(f"s_cbranch_scc1 b_sp{w}")
    e("s_branch b_sw")
    e.label("b_value")
    e(f"s_sub_u32 s{sT0}, s{sROLE}, 16"); e(f"s_mul_i32 s{sT0}, s{sT0}, {2*TILE}"); e(f"s_add_u32 s{sT0}, s{sT0}, {16*HEAD_IMG}")
    e(f"s_add_u32 s{sW}, s{sW}, s{sT0}"); e(f"s_addc_u32 s{sW+1}, s{sW+1}, 0")
    for w in range(3):
        e(f"s_cmp_eq_u32 s{sWAVE}, {w}"); e(f"s_cbranch_scc1 b_vw{w}")
    e("s_branch b_vw3")
    e.label("b_worker")
    e(f"s_sub_u32 s{sROLE}, s{sROLE}, 32")
    e(f"s_cmp_lt_u32 s{sROLE}, 64"); e("s_cbranch_scc1 b_fcpv")
    e(f"s_sub_u32 s{sROLE}, s{sROLE}, 64")
    e(f"s_cmp_lt_u32 s{sROLE}, {16*NJU}"); e("s_cbranch_scc1 b_uw")
    e(f"s_sub_u32 s{sROLE}, s{sROLE}, {16*NJU}")
    e(f"s_cmp_lt_u32 s{sROLE}, {16*NJZ}"); e("s_cbranch_scc1 b_zw")
    e(f"s_sub_u32 s{sROLE}, s{sROLE}, {16*NJZ}")
    e(f"s_cmp_lt_u32 s{sROLE}, {16*NJ}"); e("s_cbranch_scc1 b_pw")
    NIDLE = 224 - 64 - 16*(NJU + NJZ + NJ)
    e(f"s_cmp_lg_u32 s{sLAY}, 0"); e("s_cbranch_scc1 b_end")
    e(f"s_sub_u32 s{sROLE}, s{sROLE}, {16*NJ}")
    e(f"s_lshl_b32 s{sT0}, s{sROLE}, 8"); e(f"v_add_u32 v2, s{sT0}, v0")
    import k_prep
    k_prep.fill_layer(e, 1, NIDLE*256, "bfill")
    e("s_endpgm")
    for w in range(3):
        e.label(f"b_sp{w}"); score_producer(e, w)
    e.label("b_sw"); score_swave(e)
    for w in range(4):
        e.label(f"b_vw{w}"); value_wave(e, w)
    e.label("b_helper"); helper(e)
    e.label("b_pub"); publisher(e)
    e.label("b_uw"); u_worker(e)
    e.label("b_zw"); z_worker(e)
    e.label("b_pw"); p_worker(e)
    e.label("b_fcpv"); fcpv_worker(e)
    e.label(FAIL)
    e.label("b_end")
    e("s_endpgm")
    for L in range(2): e.raw(kernel_desc(f"b{L}_kernel", 512, 256))
```

```python
from common import *
import struct, re
def f2u(x): return struct.unpack("<I", struct.pack("<f", x))[0]
sLAY = 60
FDIAG=[False]
def fst(e, k):
    if FDIAG[0]:
        e(f"s_memtime s[{40+2*k}:{41+2*k}]")
def entries(e, base):
    kernel_head(e, f"{base}0_kernel")
    e(f"s_mov_b32 s{sLAY}, 0")
    e(f"s_branch {base}_body")
    kernel_head(e, f"{base}1_kernel")
    e(f"s_mov_b32 s{sLAY}, 1")
    e.label(f"{base}_body")

def bf16_round_f32(e, dst, src, tmp=None):
    e(f"v_cvt_pk_bf16_f32 v{dst}, v{src}, v{src}")
    e(f"v_lshlrev_b32 v{dst}, 16, v{dst}")

def ln_stats_scalar(e, vmean, vvar, vmb, vr, t):
    bf16_round_f32(e, vmb, vmean)
    bf16_round_f32(e, t, vvar)
    e(f"v_add_f32 v{t}, {hex(f2u(1e-5))}, v{t}")
    bf16_round_f32(e, t, t)
    e(f"v_sqrt_f32 v{t}, v{t}")
    e("s_nop 0")
    bf16_round_f32(e, t, t)
    e(f"v_rcp_f32 v{vr}, v{t}")
    e("s_nop 0")
    e(f"v_fma_f32 v{t}, -v{t}, v{vr}, 2.0")
    e(f"v_mul_f32 v{vr}, v{vr}, v{t}")

FA_LDS = 28*1056
def gen_fa(e, with_fold=False):
    if with_fold:
        import k_fold
        kernel_head(e, "fa0_kernel")
        e(f"s_mov_b32 s{sLAY}, 0")
        e("s_cmp_lt_u32 s2, 256"); e("s_cbranch_scc1 " + ("fa_end" if FDIAG[0] == 'nofa' else "fa_body"))
        if FDIAG[0] == 'nofold': e("s_branch fa_end")
        e("s_cmp_ge_u32 s2, 480"); e("s_cbranch_scc1 fa_end")
        load_ptr(e, 4, 'ws')
        lane_wave(e, 1, 3, 2)
        e("s_sub_u32 s40, s2, 256")
        e("s_waitcnt lgkmcnt(0)")
        k_fold.gen_body(e, 40)
        kernel_head(e, "fa1_kernel")
        e(f"s_mov_b32 s{sLAY}, 1")
        e.label("fa_body")
    else:
        entries(e, "fa")
    e("s_cmp_ge_u32 s2, 256"); e("s_cbranch_scc1 fa_end")
    load_ptr(e, 4, 'ws'); load_ptr(e, 6, 'x')
    lane_wave(e, 1, 3, 2)
    e("s_waitcnt lgkmcnt(0)")
    e(f"s_add_u32 s8, s4, {W.X2}"); e("s_addc_u32 s9, s5, 0")
    e(f"s_cmp_eq_u32 s{sLAY}, 0")
    e("s_cselect_b32 s6, s6, s8"); e("s_cselect_b32 s7, s7, s9")
    e("s_and_b32 s10, s2, 63")
    e("s_lshr_b32 s11, s2, 6")
    e("s_lshl_b32 s12, s11, 2"); e("s_add_u32 s12, s12, s3")
    e("v_lshrrev_b32 v2, 3, v0")
    e("v_and_b32 v3, 7, v0")
    e("v_lshlrev_b32 v4, 6, v2")
    e("v_add_u32 v4, s10, v4")
    e("v_mul_u32_u24 v4, 896, v4")
    e("v_lshl_add_u32 v4, v3, 4, v4")
    for i in range(7): e(f"global_load_dwordx4 v[{8+4*i}:{11+4*i}], v4, s[6:7] offset:{128*i}")
    e("s_min_u32 s13, s12, 14")
    e(f"s_mul_i32 s13, s13, {28*1024}")
    e(f"s_add_u32 s13, s13, {W.FIMG}")
    e("v_lshl_add_u32 v5, v1, 4, s13")
    for ks in range(28):
        e(f"global_load_dwordx4 v[{64+4*ks}:{67+4*ks}], v5, s[4:5] offset:{(ks%4)*1024}")
        if ks % 4 == 3: e("v_add_u32 v5, 4096, v5")
    e("s_waitcnt vmcnt(28)")
    XV = 176
    for k in range(28):
        e(f"v_lshlrev_b32 v{XV+2*k}, 16, v{8+k}")
        e(f"v_and_b32 v{XV+2*k+1}, 0xffff0000, v{8+k}")
    ln_rows(e, XV, 8, 40)
    e("v_lshrrev_b32 v5, 1, v3")
    e("v_mul_u32_u24 v5, 1056, v5")
    e("v_and_b32 v6, 1, v3")
    e("v_mul_u32_u24 v6, 528, v6")
    e("v_add_u32 v5, v5, v6")
    e("v_lshl_add_u32 v5, v2, 4, v5")
    for i in range(7): e(f"ds_write_b128 v5, v[{8+4*i}:{11+4*i}] offset:{4*1056*i}")
    e("s_waitcnt lgkmcnt(0)")
    e("s_barrier")
    e("s_cmp_ge_u32 s12, 15"); e("s_cbranch_scc1 fa_side")
    e("v_and_b32 v5, 31, v1")
    e("v_lshrrev_b32 v6, 5, v1")
    e("v_mul_u32_u24 v6, 528, v6")
    e("v_lshl_add_u32 v5, v5, 4, v6")
    NB = 8
    for ks in range(NB): e.ds(f"ds_read_b128 v[{8+4*ks}:{11+4*ks}], v5 offset:{ks*1056}", f"a{ks}")
    e("s_waitcnt vmcnt(0)")
    acc = 240
    for ks in range(28):
        e.wait_lgkm(f"a{ks}")
        c = "0" if ks == 0 else f"v[{acc}:{acc+15}]"
        r = 8+4*(ks % NB)
        e(f"v_mfma_f32_32x32x16_bf16 v[{acc}:{acc+15}], v[{r}:{r+3}], v[{64+4*ks}:{67+4*ks}], {c}")
        if ks + NB < 28: e.ds(f"ds_read_b128 v[{r}:{r+3}], v5 offset:{(ks+NB)*1056}", f"a{ks+NB}")
    e("v_and_b32 v5, 31, v1")
    e("s_lshl_b32 s13, s12, 5")
    e("v_add_u32 v5, s13, v5")
    e("v_lshlrev_b32 v5, 12, v5")
    e("v_lshrrev_b32 v6, 5, v1")
    e("v_lshl_add_u32 v5, v6, 9, v5")
    e("s_lshr_b32 s13, s10, 5"); e("s_lshl_b32 s13, s13, 11")
    e("s_and_b32 s14, s10, 31"); e("s_lshl_b32 s14, s14, 4")
    e("s_add_u32 s13, s13, s14"); e(f"s_add_u32 s13, s13, {W.XD}")
    e("v_add_u32 v5, s13, v5")
    e.nop(6)
    for k in range(8): e(f"v_cvt_pk_bf16_f32 v{8+k}, v{acc+2*k}, v{acc+2*k+1}")
    for q in range(4):
        e(f"global_store_dwordx2 v5, v[{8+2*q}:{9+2*q}], s[4:5] offset:{(q>>1)*1024 + (q&1)*8}")
    e.label("fa_side")
    if with_fold:
        import k_prep
        e(f"s_cmp_lg_u32 s{sLAY}, 0"); e("s_cbranch_scc1 fa_end")
        k_prep.side_wt_issue(e)
        e("s_lshl_b32 s11, s2, 8"); e("v_add_u32 v2, s11, v0")
        k_prep.fill_layer(e, 0, 65536, "fa")
        k_prep.side_wt_finish(e)
    e.label("fa_end")
    e("s_endpgm")
    for L in range(2): e.raw(kernel_desc(f"fa{L}_kernel", 256, 256))

def gen_fb(e):
    kernel_head(e, "fb_kernel")
    e("s_cmp_ge_u32 s2, 225"); e("s_cbranch_scc1 fb_end")
    load_ptr(e, 4, 'ws')
    e("v_lshlrev_b32 v1, 4, v0")
    e("s_waitcnt lgkmcnt(0)")
    aF32, aF64, aU = 0, 24, 120
    ACC, TW, WTR, PK, T = 0+4, 72, 136, 168, 200
    ACC = 4
    def accr(t): return ACC + 16*t
    def acci(t): return ACC + 32 + 16*t
    e("s_lshl_b32 s10, s2, 12"); e(f"s_add_u32 s10, s10, {W.XD}")
    e("v_add_u32 v2, s10, v1")
    for c in range(2):
        for i in range(4):
            e(f"global_load_dwordx4 a[{aU+16*c+4*i}:{aU+16*c+4*i+3}], v2, s[4:5] offset:{i*1024}")
        if c == 0: e(f"v_add_u32 v2, {225*4096}, v2")
    e(f"v_add_u32 v2, {W.CF32}, v1")
    for i in range(6):
        e(f"global_load_dwordx4 a[{aF32+4*i}:{aF32+4*i+3}], v2, s[4:5] offset:{(i%4)*1024}")
        if i == 3: e("v_add_u32 v2, 4096, v2")
    def load_tw(base):
        e(f"v_add_u32 v2, {base}, v1")
        for i in range(16):
            e(f"global_load_dwordx4 v[{TW+4*i}:{TW+4*i+3}], v2, s[4:5] offset:{(i%4)*1024}")
            if i % 4 == 3: e("v_add_u32 v2, 4096, v2")
    load_tw(W.TW1)
    e(f"v_add_u32 v2, {W.CF64}, v1")
    for i in range(24):
        e(f"global_load_dwordx4 a[{aF64+4*i}:{aF64+4*i+3}], v2, s[4:5] offset:{(i%4)*1024}")
        if i % 4 == 3: e("v_add_u32 v2, 4096, v2")
    e("s_lshl_b32 s10, s2, 13"); e(f"s_add_u32 s10, s10, {W.WT}")
    e("v_add_u32 v2, s10, v1")
    for i in range(8):
        e(f"global_load_dwordx4 v[{WTR+4*i}:{WTR+4*i+3}], v2, s[4:5] offset:{(i%4)*1024}")
        if i == 3: e("v_add_u32 v2, 4096, v2")
    F32 = lambda comp, ks: f"a[{aF32+8*comp+4*ks}:{aF32+8*comp+4*ks+3}]"
    F64 = lambda comp, t, ka: f"a[{aF64+32*comp+16*t+4*ka}:{aF64+32*comp+16*t+4*ka+3}]"
    U = lambda c, bt, ks: f"a[{aU+16*c+8*bt+4*ks}:{aU+16*c+8*bt+4*ks+3}]"
    PKr = lambda t, kk: f"v[{PK+8*t+4*kk}:{PK+8*t+4*kk+3}]"
    PKi = lambda t, kk: f"v[{PK+16+8*t+4*kk}:{PK+16+8*t+4*kk+3}]"
    def mf(acc, a, b, first):
        c = "0" if first else f"v[{acc}:{acc+15}]"
        e(f"v_mfma_f32_32x32x16_bf16 v[{acc}:{acc+15}], {a}, {b}, {c}")
    e("s_waitcnt vmcnt(48)")
    for bt in range(2):
        mf(accr(bt), U(0,bt,0), F32(0,0), True);  mf(acci(bt), U(0,bt,0), F32(1,0), True)
        mf(accr(bt), U(0,bt,1), F32(0,1), False); mf(acci(bt), U(0,bt,1), F32(1,1), False)
        mf(accr(bt), U(1,bt,0), F32(2,0), False); mf(acci(bt), U(1,bt,0), F32(0,0), False)
        mf(accr(bt), U(1,bt,1), F32(2,1), False); mf(acci(bt), U(1,bt,1), F32(0,1), False)
    def cmul_pack(trf, tif, order=(0,1)):
        for t in order:
            for r in range(0, 16, 2):
                ar, ai = accr(t)+r, acci(t)+r
                tr, ti = trf(t, r), tif(t, r)
                e(f"v_pk_mul_f32 v[{T}:{T+1}], v[{ar}:{ar+1}], v[{tr}:{tr+1}]")
                e(f"v_pk_mul_f32 v[{T+2}:{T+3}], v[{ar}:{ar+1}], v[{ti}:{ti+1}]")
                e(f"v_pk_fma_f32 v[{T}:{T+1}], v[{ai}:{ai+1}], v[{ti}:{ti+1}], v[{T}:{T+1}] neg_lo:[1,0,0] neg_hi:[1,0,0]")
                e(f"v_pk_fma_f32 v[{T+2}:{T+3}], v[{ai}:{ai+1}], v[{tr}:{tr+1}], v[{T+2}:{T+3}]")
                e(f"v_cvt_pk_bf16_f32 v{PK+8*t+r//2}, v{T}, v{T+1}")
                e(f"v_cvt_pk_bf16_f32 v{PK+16+8*t+r//2}, v{T+2}, v{T+3}")
    e("s_waitcnt vmcnt(32)")
    e.nop(12)
    cmul_pack(lambda t,r: TW+16*t+r, lambda t,r: TW+32+16*t+r)
    load_tw(W.TW2)
    e("s_waitcnt vmcnt(24)")
    for ft in range(2):
        first = True
        for t in range(2):
            for kk in range(2):
                ka = 2*t+kk
                mf(accr(ft), F64(0,ft,ka), PKr(t,kk), first); mf(acci(ft), F64(1,ft,ka), PKr(t,kk), first)
                first = False
                mf(accr(ft), F64(2,ft,ka), PKi(t,kk), False); mf(acci(ft), F64(0,ft,ka), PKi(t,kk), False)
    e("s_waitcnt vmcnt(16)")
    e.nop(12)
    for t in range(2):
        for r in range(0, 16, 2):
            w0, w1 = WTR+16*t+r, WTR+16*t+r+1
            e(f"v_lshlrev_b32 v{T+4}, 16, v{w0}"); e(f"v_lshlrev_b32 v{T+5}, 16, v{w1}")
            e(f"v_and_b32 v{T+6}, 0xffff0000, v{w0}"); e(f"v_and_b32 v{T+7}, 0xffff0000, v{w1}")
            ar, ai = accr(t)+r, acci(t)+r
            tr, ti = T+4, T+6
            e(f"v_pk_mul_f32 v[{T}:{T+1}], v[{ar}:{ar+1}], v[{tr}:{tr+1}]")
            e(f"v_pk_mul_f32 v[{T+2}:{T+3}], v[{ar}:{ar+1}], v[{ti}:{ti+1}]")
            e(f"v_pk_fma_f32 v[{T}:{T+1}], v[{ai}:{ai+1}], v[{ti}:{ti+1}], v[{T}:{T+1}] neg_lo:[1,0,0] neg_hi:[1,0,0]")
            e(f"v_pk_fma_f32 v[{T+2}:{T+3}], v[{ai}:{ai+1}], v[{tr}:{tr+1}], v[{T+2}:{T+3}]")
            e(f"v_cvt_pk_bf16_f32 v{PK+8*t+r//2}, v{T}, v{T+1}")
            e(f"v_cvt_pk_bf16_f32 v{PK+16+8*t+r//2}, v{T+2}, v{T+3}")
    e.nop(2)
    for bt in range(2):
        first = True
        for t in range(2):
            for kk in range(2):
                ka = 2*t+kk
                mf(accr(bt), PKr(t,kk), F64(0,bt,ka), first); mf(acci(bt), PKi(t,kk), F64(0,bt,ka), first)
                first = False
                mf(accr(bt), PKi(t,kk), F64(1,bt,ka), False); mf(acci(bt), PKr(t,kk), F64(2,bt,ka), False)
    e("s_waitcnt vmcnt(0)")
    e.nop(12)
    cmul_pack(lambda t,r: TW+16*t+r, lambda t,r: TW+32+16*t+r)
    e.nop(2)
    for bt in range(2):
        mf(accr(bt), F32(0,0), PKr(bt,0), True);  mf(acci(bt), F32(0,0), PKi(bt,0), True)
        mf(accr(bt), F32(0,1), PKr(bt,1), False); mf(acci(bt), F32(0,1), PKi(bt,1), False)
        mf(accr(bt), F32(1,0), PKi(bt,0), False); mf(acci(bt), F32(2,0), PKr(bt,0), False)
        mf(accr(bt), F32(1,1), PKi(bt,1), False); mf(acci(bt), F32(2,1), PKr(bt,1), False)
    e("v_and_b32 v2, 31, v0")
    e("v_lshlrev_b32 v2, 2, v2")
    e("v_lshrrev_b32 v3, 5, v0")
    e("v_lshl_add_u32 v2, v3, 9, v2")
    e("s_lshl_b32 s10, s2, 12"); e(f"s_add_u32 s10, s10, {W.ZD}")
    e("v_add_u32 v2, s10, v2")
    e(f"v_add_u32 v3, {225*4096}, v2")
    e.nop(8)
    for c,(va, accf) in enumerate(((2, accr), (3, acci))):
        for bt in range(2):
            for r in range(0,16,2):
                e(f"v_cvt_pk_bf16_f32 v{T+(r//2)%4}, v{accf(bt)+r}, v{accf(bt)+r+1}")
                off = (((r&3)>>1) + 4*(r>>2))*256 + bt*128
                e(f"global_store_dword v{va}, v{T+(r//2)%4}, s[4:5] offset:{off}")
    e.label("fb_end")
    e("s_endpgm")
    e.raw(kernel_desc("fb_kernel", 512, 256))

XROWS = 32768
STATS = XROWS + 32*912
FC_LDS = STATS + 1024
def gen_fc(e):
    entries(e, "fc")
    e("s_cmp_ge_u32 s2, 64"); e("s_cbranch_scc1 fc_end")
    load_ptr(e, 4, 'ws')
    lane_wave(e, 1, 3, 2)
    fc_body(e, {}, "")
    if FDIAG[0]:
        e("s_waitcnt vmcnt(0)"); fst(e, 6); e("s_waitcnt lgkmcnt(0)")
        e("s_cmp_lg_u32 s2, 5"); e("s_cbranch_scc1 fc_end"); e("s_cmp_lg_u32 s3, 0"); e("s_cbranch_scc1 fc_end")
        load_ptr(e, 6, 'dbg'); e("s_waitcnt lgkmcnt(0)")
        for k in range(7):
            e(f"v_mov_b32 v2, s{40+2*k}"); e(f"v_mov_b32 v3, {4*k}"); e("global_store_dword v3, v2, s[6:7]")
    e.label("fc_end")
    e("s_endpgm")
    for L in range(2): e.raw(kernel_desc(f"fc{L}_kernel", 416, 256))

class _Remap:
    def __init__(self, e, m): self.e = e; self.m = m
    def _r(self, txt):
        def one(mo):
            n = int(mo.group(1)); return f"s{self.m.get(n, n)}"
        def pair(mo):
            lo, hi = int(mo.group(1)), int(mo.group(2))
            l2 = self.m.get(lo, lo); assert self.m.get(hi, hi) == l2 + (hi - lo), (txt, lo, hi)
            return f"s[{l2}:{l2+hi-lo}]"
        txt = re.sub(r"s\[(\d+):(\d+)\]", pair, txt)
        return re.sub(r"(?<![\w.\[])s(\d+)\b", one, txt)
    def __call__(self, s): self.e(self._r(s))
    def __getattr__(self, k): return getattr(self.e, k)
    def vmem(self, s, tag=None): self.e.vmem(self._r(s), tag)
    def ds(self, s, tag=None): self.e.ds(self._r(s), tag)

def ln_rows(e, XV, raw_out, t):
    def reduce8(v):
        e.nop(2); e(f"v_add_f32_dpp v{v}, v{v}, v{v} quad_perm:[1,0,3,2] row_mask:0xf bank_mask:0xf")
        e.nop(2); e(f"v_add_f32_dpp v{v}, v{v}, v{v} quad_perm:[2,3,0,1] row_mask:0xf bank_mask:0xf")
        e.nop(2); e(f"v_add_f32_dpp v{v}, v{v}, v{v} row_half_mirror row_mask:0xf bank_mask:0xf")
    A, B_, M, R = t, t+2, t+4, t+6
    e(f"v_pk_add_f32 v[{A}:{A+1}], v[{XV}:{XV+1}], v[{XV+2}:{XV+3}]")
    e(f"v_pk_add_f32 v[{B_}:{B_+1}], v[{XV+4}:{XV+5}], v[{XV+6}:{XV+7}]")
    for k in range(4, 28):
        d = A if k % 2 == 0 else B_
        e(f"v_pk_add_f32 v[{d}:{d+1}], v[{d}:{d+1}], v[{XV+2*k}:{XV+2*k+1}]")
    e(f"v_pk_add_f32 v[{A}:{A+1}], v[{A}:{A+1}], v[{B_}:{B_+1}]"); e(f"v_add_f32 v{M}, v{A}, v{A+1}")
    reduce8(M)
    e(f"v_mul_f32 v{M}, {hex(f2u(1.0/448))}, v{M}")
    e(f"v_mov_b64 v[{A}:{A+1}], 0"); e(f"v_mov_b64 v[{B_}:{B_+1}], 0")
    for k in range(28):
        d = A if k % 2 == 0 else B_; tt = t+8 if k % 2 == 0 else t+10
        e(f"v_pk_add_f32 v[{tt}:{tt+1}], v[{XV+2*k}:{XV+2*k+1}], v[{M}:{M+1}] op_sel_hi:[1,0] neg_lo:[0,1] neg_hi:[0,1]")
        e(f"v_pk_fma_f32 v[{d}:{d+1}], v[{tt}:{tt+1}], v[{tt}:{tt+1}], v[{d}:{d+1}]")
    e(f"v_pk_add_f32 v[{A}:{A+1}], v[{A}:{A+1}], v[{B_}:{B_+1}]"); e(f"v_add_f32 v{A}, v{A}, v{A+1}")
    reduce8(A)
    e(f"v_mul_f32 v{A}, {hex(f2u(1.0/448))}, v{A}")
    ln_stats_scalar(e, M, A, B_, R, B_+1)
    for k in range(28):
        tt = t+8 if k % 2 == 0 else t+10
        e(f"v_pk_add_f32 v[{tt}:{tt+1}], v[{XV+2*k}:{XV+2*k+1}], v[{B_}:{B_+1}] op_sel_hi:[1,0] neg_lo:[0,1] neg_hi:[0,1]")
        e(f"v_cvt_pk_bf16_f32 v{A}, v{tt}, v{tt+1}")
        e(f"v_lshlrev_b32 v{tt}, 16, v{A}"); e(f"v_and_b32 v{tt+1}, 0xffff0000, v{A}")
        e(f"v_pk_mul_f32 v[{tt}:{tt+1}], v[{tt}:{tt+1}], v[{R}:{R+1}] op_sel_hi:[1,0]")
        e(f"v_cvt_pk_bf16_f32 v{raw_out+k}, v{tt}, v{tt+1}")

def fc_body(e0, smap, sc1):
    e = _Remap(e0, smap)
    load_ptr(e, 6, 'x')
    fst(e, 0)
    e("s_waitcnt lgkmcnt(0)")
    e(f"s_add_u32 s8, s4, {W.X2}"); e("s_addc_u32 s9, s5, 0")
    e(f"s_cmp_eq_u32 s{sLAY}, 0")
    e("s_cselect_b32 s6, s6, s8"); e("s_cselect_b32 s7, s7, s9")
    e(f"s_mov_b32 s14, {W.X3}")
    e(f"s_cselect_b32 s15, {W.X1}, s14")
    e("s_lshr_b32 s10, s2, 2")
    e("s_lshr_b32 s11, s2, 1"); e("s_and_b32 s11, s11, 1")
    e("s_and_b32 s12, s2, 1")
    e("s_lshl_b32 s16, s10, 7"); e("s_lshl_b32 s17, s11, 5"); e("s_add_u32 s16, s16, s17")
    e("s_lshl_b32 s17, s12, 4"); e("s_add_u32 s16, s16, s17")
    YR = XROWS
    e("v_mov_b64 v[4:5], 0"); e("v_mov_b64 v[6:7], 0")
    e("v_lshlrev_b32 v2, 4, v1")
    e(f"ds_write_b128 v2, v[4:7] offset:{14*1024}"); e(f"ds_write_b128 v2, v[4:7] offset:{29*1024}")
    XR = 200
    e("v_lshrrev_b32 v10, 3, v0"); e("v_and_b32 v11, 7, v0")
    e("v_lshrrev_b32 v12, 1, v10"); e("v_and_b32 v13, 1, v10"); e("v_lshl_add_u32 v12, v13, 6, v12")
    e("v_add_u32 v12, s16, v12"); e("v_mul_u32_u24 v12, 896, v12"); e("v_lshl_add_u32 v240, v11, 4, v12")
    for i in range(7): e.vmem(f"global_load_dwordx4 v[{XR+4*i}:{XR+4*i+3}], v240, s[6:7] offset:{128*i}", 'x')
    e("s_waitcnt lgkmcnt(0)")
    e("s_barrier")
    e("s_lshl_b32 s13, s10, 8"); e("s_lshl_b32 s14, s11, 7"); e("s_add_u32 s13, s13, s14")
    e("s_lshl_b32 s14, s12, 6"); e("s_add_u32 s13, s13, s14"); e(f"s_add_u32 s13, s13, {W.ZD}")
    e("v_lshrrev_b32 v2, 2, v1"); e("v_lshlrev_b32 v2, 12, v2")
    e("v_and_b32 v3, 3, v1"); e("v_lshl_add_u32 v2, v3, 4, v2")
    e("v_add_u32 v2, s13, v2")
    for w in range(4):
        if w < 3: e(f"s_cmp_eq_u32 s3, {w}");
        if w < 3: e(f"s_cbranch_scc0 fc_dm{w}")
        for i in range(w, 30, 4):
            kk0 = 16*i if i < 15 else 225 + 16*(i-15)
            if i in (14, 29): e("s_mov_b64 exec, 15")
            e(f"v_add_u32 v3, {kk0*4096}, v2")
            e(f"s_mov_b32 m0, {i*1024}")
            e("s_nop 0")
            e("global_load_lds_dwordx4 v3, s[4:5]")
            if i in (14, 29): e("s_mov_b64 exec, -1")
        if w < 3:
            e("s_branch fc_dmj"); e.label(f"fc_dm{w}")
    e.label("fc_dmj")
    GR = 0; NR = 40
    e("s_mul_i32 s17, s3, %d" % (15*1024)); e(f"s_add_u32 s17, s17, {W.GIMG}")
    e("v_lshl_add_u32 v8, v1, 4, s17")
    steps = [(tt, eo, ks) for tt in range(2) for eo in range(2) for ks in range(15)]
    def gload(n):
        tt, eo, ks = steps[n]; r = GR + 4*(n % NR)
        e(f"v_add_u32 v9, {eo*8*15*1024 + tt*4*15*1024 + ks*1024}, v8")
        e.vmem(f"global_load_dwordx4 a[{r}:{r+3}], v9, s[4:5]", f"g{n}")
    for n in range(NR): gload(n)
    e(f"s_waitcnt vmcnt({NR})")
    e("s_barrier")
    fst(e, 1)
    e("v_lshrrev_b32 v2, 5, v1"); e("v_lshlrev_b32 v2, 3, v2")
    e("v_and_b32 v3, 15, v1"); e("v_lshrrev_b32 v4, 2, v3"); e("v_add_u32 v2, v2, v4"); e("v_lshlrev_b32 v2, 6, v2")
    e("v_lshrrev_b32 v4, 4, v1"); e("v_and_b32 v4, 1, v4"); e("v_lshl_add_u32 v2, v4, 5, v2")
    e("v_and_b32 v3, 3, v3"); e("v_lshl_add_u32 v2, v3, 3, v2")
    ZB = 16
    for eo in range(2):
        for ks in range(15):
            r = ZB + 60*eo + 4*ks
            e(f"ds_read_b64_tr_b16 v[{r}:{r+1}], v2 offset:{eo*15360 + ks*1024}")
            e(f"ds_read_b64_tr_b16 v[{r+2}:{r+3}], v2 offset:{eo*15360 + ks*1024 + 256}")
    e("s_waitcnt lgkmcnt(0)")
    fst(e, 2)
    ACC = 136
    for n, (tt, eo, ks) in enumerate(steps):
        e.wait_vm(f"g{n}")
        r = GR + 4*(n % NR); a = ACC + 32*tt + 16*eo; z = ZB + 60*eo + 4*ks
        c = "0" if ks == 0 else f"v[{a}:{a+15}]"
        e(f"v_mfma_f32_32x32x16_bf16 v[{a}:{a+15}], a[{r}:{r+3}], v[{z}:{z+3}], {c}")
        if n + NR < len(steps): gload(n+NR)
    fst(e, 3)
    e("v_and_b32 v2, 31, v1"); e("v_mul_u32_u24 v2, 912, v2"); e(f"v_add_u32 v2, {YR}, v2")
    e("v_lshrrev_b32 v3, 5, v1")
    e("s_lshl_b32 s17, s3, 6")
    e("v_lshl_add_u32 v4, v3, 3, v2"); e("v_add_u32 v4, s17, v4")
    e("v_lshlrev_b32 v5, 3, v3"); e("v_sub_u32 v5, v2, v5"); e("v_subrev_u32 v5, s17, v5")
    e(f"v_add_u32 v5, {896 - 512}, v5")
    e.nop(8)
    for tt in range(2):
        E, O = ACC + 32*tt, ACC + 32*tt + 16
        last = (tt == 1)
        if last:
            e("s_cmp_eq_u32 s3, 3"); e("s_cbranch_scc1 fc_t7")
        for q in range(4):
            for h2 in range(2):
                r = 4*q + 2*h2
                e(f"v_pk_add_f32 v[10:11], v[{E+r}:{E+r+1}], v[{O+r}:{O+r+1}] neg_lo:[0,1] neg_hi:[0,1]")
                e(f"v_pk_add_f32 v[12:13], v[{E+r}:{E+r+1}], v[{O+r}:{O+r+1}]")
                e(f"v_cvt_pk_bf16_f32 v{14+h2}, v10, v11")
                e(f"v_cvt_pk_bf16_f32 v{6+h2}, v12, v13")
            e(f"ds_write_b64 v4, v[14:15] offset:{tt*256 + q*16}")
            for r in range(4):
                off = 512 - tt*256 - q*16 - r*2
                ins = "ds_write_b16" if r % 2 == 0 else "ds_write_b16_d16_hi"
                e(f"{ins} v5, v{6 + r//2} offset:{off}")
        if last:
            e("s_branch fc_t7d")
            e.label("fc_t7")
            e(f"v_sub_f32 v10, v{E}, v{O}"); e("v_cvt_pk_bf16_f32 v14, v10, v10")
            e("s_mov_b32 s20, -1"); e("s_mov_b32 s21, 0"); e("s_mov_b64 exec, s[20:21]")
            e(f"ds_write_b16 v4, v14 offset:256")
            e("s_mov_b64 exec, -1")
            e.label("fc_t7d")
    e("s_waitcnt lgkmcnt(0)"); e("s_barrier")
    fst(e, 4)
    e("v_lshrrev_b32 v10, 3, v0"); e("v_and_b32 v11, 7, v0")
    e("v_mul_u32_u24 v2, 912, v10"); e("v_lshl_add_u32 v2, v11, 4, v2"); e(f"v_add_u32 v2, {YR}, v2")
    YRW = 16
    for i in range(7): e(f"ds_read_b128 v[{YRW+4*i}:{YRW+4*i+3}], v2 offset:{128*i}")
    e("s_waitcnt vmcnt(0) lgkmcnt(0)")
    XV = 48
    for k in range(28):
        a, b = XV+2*k, XV+2*k+1
        e(f"v_lshlrev_b32 v{a}, 16, v{XR+k}"); e(f"v_and_b32 v{b}, 0xffff0000, v{XR+k}")
        e(f"v_lshlrev_b32 v104, 16, v{YRW+k}"); e(f"v_and_b32 v105, 0xffff0000, v{YRW+k}")
        e(f"v_pk_add_f32 v[{a}:{a+1}], v[{a}:{a+1}], v[104:105]")
        e(f"v_cvt_pk_bf16_f32 v{XR+k}, v{a}, v{b}")
        e(f"v_lshlrev_b32 v{a}, 16, v{XR+k}"); e(f"v_and_b32 v{b}, 0xffff0000, v{XR+k}")
    e("v_add_u32 v13, s15, v240")
    for i in range(7): e(f"global_store_dwordx4 v13, v[{XR+4*i}:{XR+4*i+3}], s[4:5] offset:{128*i} " + sc1)
    ln_rows(e, XV, YRW, 106)
    for i in range(7): e(f"ds_write_b128 v2, v[{YRW+4*i}:{YRW+4*i+3}] offset:{128*i}")
    e("s_waitcnt lgkmcnt(0)"); e("s_barrier")
    fst(e, 5)
    e("v_and_b32 v5, 15, v0"); e("v_lshrrev_b32 v6, 4, v0")
    e("v_mul_u32_u24 v7, 1824, v5"); e("v_lshl_add_u32 v7, v6, 4, v7"); e(f"v_add_u32 v7, {YR}, v7")
    for p in range(2):
        for i in range(4):
            e(f"ds_read_b128 v[{48+16*p+4*i}:{51+16*p+4*i}], v7 offset:{p*912 + i*256}")
    e("s_waitcnt lgkmcnt(0)")
    for p in range(2):
        e(f"s_add_u32 s17, s16, {64*p}"); e("s_lshr_b32 s17, s17, 5"); e("s_mul_i32 s17, s17, 28672")
        e("s_mul_i32 s18, s12, 14336"); e("s_add_u32 s17, s17, s18"); e(f"s_add_u32 s17, s17, {W.XA}")
        e("v_lshl_add_u32 v10, v0, 4, s17")
        for i in range(4):
            if i == 3: e("s_cmp_ge_u32 s3, 2");
            if i == 3: e(f"s_cbranch_scc1 fc_xa{p}")
            e(f"v_add_u32 v11, {4096*i}, v10")
            e(f"global_store_dwordx4 v11, v[{48+16*p+4*i}:{51+16*p+4*i}], s[4:5] " + sc1)
        e.label(f"fc_xa{p}")
```

```python
from common import *
import struct
N_WG = 256
FOPT = {}
LDS = 4*16384 + 32768
LOG2E_16 = 0x3db8aa3b
def f2u(x): return struct.unpack("<I", struct.pack("<f", x))[0]
sWS = 4
vL = 1

def sincos(e, vang, vcos, vsin):
    e(f"v_fract_f32 v{vang}, v{vang}")
    e(f"v_cos_f32 v{vcos}, v{vang}")
    e(f"v_sin_f32 v{vsin}, v{vang}")
    e("s_nop 0")

def side_tables(e):
    inv448 = f2u(1.0/448)
    NF, NG = 15*28*64, 2*8*15*64
    e(f"v_cmp_gt_u32 vcc, {NF}, v2")
    e("s_and_saveexec_b64 s[12:13], vcc")
    e("s_cbranch_execz P_F_done")
    e("v_and_b32 v4, 63, v2"); e("v_lshrrev_b32 v5, 6, v2")
    e(f"s_mov_b32 s14, {(2**32 + 27)//28}")
    e("v_mul_hi_u32 v6, v5, s14"); e("v_mul_u32_u24 v7, 28, v6"); e("v_sub_u32 v7, v5, v7")
    e("v_and_b32 v8, 31, v4"); e("v_lshrrev_b32 v9, 5, v4")
    e("v_lshl_add_u32 v8, v6, 5, v8")
    e("v_lshlrev_b32 v9, 3, v9"); e("v_lshl_add_u32 v9, v7, 4, v9")
    e("v_mov_b32 v17, 450"); e("v_mov_b32 v18, 0")
    e("v_cmp_le_u32 vcc, 225, v8"); e("v_subrev_u32 v11, 225, v8"); e("s_nop 0")
    e("v_cndmask_b32 v11, v8, v11, vcc")
    e("v_cmp_le_u32 s[16:17], v17, v8")
    for j in range(8):
        e(f"v_add_u32 v10, {j}, v9")
        e("v_mul_u32_u24 v12, v11, v10"); e("v_cvt_f32_u32 v12, v12"); e(f"v_mul_f32 v12, {hex(inv448)}, v12")
        sincos(e, 12, 13, 14)
        e("v_sub_f32 v14, 0, v14")
        e("v_cndmask_b32 v13, v13, v14, vcc")
        e(f"v_cndmask_b32 v{20+j}, v13, v18, s[16:17]")
    for k in range(4): e(f"v_cvt_pk_bf16_f32 v{28+k}, v{20+2*k}, v{21+2*k}")
    e("v_lshlrev_b32 v4, 4, v2"); e(f"v_add_u32 v4, {W.FIMG}, v4")
    e("global_store_dwordx4 v4, v[28:31], s[4:5]")
    e.label("P_F_done"); e("s_mov_b64 exec, s[12:13]")
    e(f"v_subrev_u32 v3, {NF}, v2")
    e(f"v_cmp_gt_u32 vcc, {NG}, v3")
    e("s_and_saveexec_b64 s[12:13], vcc")
    e("s_cbranch_execz P_G_done")
    e("v_and_b32 v4, 63, v3"); e("v_lshrrev_b32 v5, 6, v3")
    e(f"s_mov_b32 s14, {(2**32 + 14)//15}")
    e("v_mul_hi_u32 v6, v5, s14"); e("v_mul_u32_u24 v7, 15, v6"); e("v_sub_u32 v7, v5, v7")
    e("v_lshrrev_b32 v15, 3, v6"); e("v_and_b32 v6, 7, v6")
    e("v_and_b32 v8, 31, v4"); e("v_lshrrev_b32 v9, 5, v4")
    e("v_lshl_add_u32 v8, v6, 5, v8")
    e("v_lshlrev_b32 v9, 3, v9"); e("v_lshl_add_u32 v9, v7, 4, v9")
    e("v_mov_b32 v16, 224"); e("v_mov_b32 v18, 0")
    e(f"v_mov_b32 v19, {hex(f2u(2.0/448))}"); e(f"v_mov_b32 v17, {hex(f2u(1.0/448))}")
    e("v_cmp_eq_u32 s[34:35], 1, v15")
    e("v_cmp_lt_u32 s[36:37], v16, v8")
    for j in range(8):
        e(f"v_add_u32 v10, {j}, v9")
        e("v_mul_u32_u24 v12, v10, v8"); e("v_cvt_f32_u32 v12, v12"); e(f"v_mul_f32 v12, {hex(inv448)}, v12")
        sincos(e, 12, 13, 14)
        e("v_cndmask_b32 v13, v13, v14, s[34:35]")
        e("v_cmp_eq_u32 vcc, 0, v10"); e("v_cmp_eq_u32 s[16:17], v16, v10"); e("s_or_b64 vcc, vcc, s[16:17]"); e("s_nop 1")
        e("v_cndmask_b32 v14, v19, v17, vcc"); e("v_mul_f32 v13, v13, v14")
        e("v_cmp_lt_u32 vcc, v16, v10"); e("s_or_b64 vcc, vcc, s[36:37]"); e("s_nop 1")
        e(f"v_cndmask_b32 v{20+j}, v13, v18, vcc")
    for k in range(4): e(f"v_cvt_pk_bf16_f32 v{28+k}, v{20+2*k}, v{21+2*k}")
    e("v_lshlrev_b32 v4, 4, v3"); e(f"v_add_u32 v4, {W.GIMG}, v4")
    e("global_store_dwordx4 v4, v[28:31], s[4:5]")
    e.label("P_G_done"); e("s_mov_b64 exec, s[12:13]")

def side_small(e):
    o32, o64, oT1, oT2 = 53248, 53760, 55296, 56320
    for name, lo, nch, base, n in (("C32", o32, 384, W.CF32, 32), ("C64", o64, 1536, W.CF64, 64)):
        e(f"v_subrev_u32 v3, {lo}, v2")
        e(f"v_cmp_gt_u32 vcc, {nch}, v3")
        e("s_and_saveexec_b64 s[12:13], vcc")
        e(f"s_cbranch_execz P_{name}_done")
        e("v_and_b32 v4, 63, v3")
        e("v_lshrrev_b32 v5, 6, v3")
        e("v_and_b32 v8, 31, v4")
        e("v_lshrrev_b32 v9, 5, v4")
        if n == 32:
            e("v_lshrrev_b32 v6, 1, v5"); e("v_and_b32 v7, 1, v5"); e("v_lshlrev_b32 v7, 4, v7")
        else:
            e("v_lshrrev_b32 v6, 3, v5"); e("v_and_b32 v7, 7, v5"); e("v_lshrrev_b32 v10, 2, v7")
            e("v_lshl_add_u32 v8, v10, 5, v8"); e("v_and_b32 v7, 3, v7"); e("v_lshlrev_b32 v7, 4, v7")
        e("v_lshl_add_u32 v7, v9, 2, v7")
        for j in range(8):
            e(f"v_add_u32 v10, {8*(j>>2)+(j&3)}, v7")
            e("v_mul_u32_u24 v12, v10, v8")
            e("v_cvt_f32_u32 v12, v12")
            e(f"v_mul_f32 v12, {hex(f2u(1.0/n))}, v12")
            sincos(e, 12, 13, 14)
            e("v_sub_f32 v15, 0, v14")
            e("v_cmp_eq_u32 vcc, 1, v6")
            e("s_nop 1")
            e("v_cndmask_b32 v13, v13, v15, vcc")
            e("v_cmp_eq_u32 vcc, 2, v6")
            e("s_nop 1")
            e(f"v_cndmask_b32 v{20+j}, v13, v14, vcc")
        for k in range(4): e(f"v_cvt_pk_bf16_f32 v{28+k}, v{20+2*k}, v{21+2*k}")
        e("v_lshlrev_b32 v4, 4, v3")
        e(f"v_add_u32 v4, {base}, v4")
        e("global_store_dwordx4 v4, v[28:31], s[4:5]")
        e.label(f"P_{name}_done")
        e("s_mov_b64 exec, s[12:13]")
    for name, lo, base in (("T1", oT1, W.TW1), ("T2", oT2, W.TW2)):
        e(f"v_subrev_u32 v3, {lo}, v2")
        e(f"v_cmp_gt_u32 vcc, 1024, v3")
        e("s_and_saveexec_b64 s[12:13], vcc")
        e(f"s_cbranch_execz P_{name}_done")
        e("v_and_b32 v4, 63, v3")
        e("v_lshrrev_b32 v5, 6, v3")
        e("v_lshrrev_b32 v6, 3, v5")
        e("v_and_b32 v7, 3, v5")
        e("v_lshrrev_b32 v10, 2, v5")
        e("v_and_b32 v10, 1, v10")
        e("v_and_b32 v8, 31, v4")
        e("v_lshrrev_b32 v9, 5, v4")
        e("v_lshlrev_b32 v7, 3, v7")
        e("v_lshl_add_u32 v7, v9, 2, v7")
        if name == "T1": e("v_lshl_add_u32 v7, v10, 5, v7")
        else: e("v_lshl_add_u32 v8, v10, 5, v8")
        for rr in range(4):
            e(f"v_add_u32 v11, {rr}, v7")
            e("v_mul_u32_u24 v12, v11, v8")
            e("v_cvt_f32_u32 v12, v12")
            e(f"v_mul_f32 v12, {hex(f2u(1.0/2048))}, v12")
            sincos(e, 12, 13, 14)
            if name == "T1": e("v_sub_f32 v14, 0, v14")
            e("v_cmp_eq_u32 vcc, 1, v6")
            e("s_nop 1")
            e(f"v_cndmask_b32 v{20+rr}, v13, v14, vcc")
            if name == "T2": e(f"v_mul_f32 v{20+rr}, {hex(f2u(1.0/2048))}, v{20+rr}")
        e("v_lshlrev_b32 v4, 4, v3")
        e(f"v_add_u32 v4, {base}, v4")
        e("global_store_dwordx4 v4, v[20:23], s[4:5]")
        e.label(f"P_{name}_done")
        e("s_mov_b64 exec, s[12:13]")

def side_wt_issue(e):
    e("s_cmp_ge_u32 s2, 232")
    e("s_cbranch_scc1 P_wt_skip1")
    e("s_cmp_lg_u32 s3, 0")
    e("s_cbranch_scc1 P_wt_skip1")
    load_ptr(e, 40, 'wr'); load_ptr(e, 42, 'wi')
    e("s_lshr_b32 s11, s2, 3")
    e("s_lshl_b32 s11, s11, 3")
    e("s_min_u32 s44, s11, 217")
    e("s_and_b32 s45, s2, 7")
    e("v_and_b32 v2, 31, v1")
    e("v_lshrrev_b32 v3, 5, v1")
    e("v_lshlrev_b32 v3, 7, v3")
    e("v_add_u32 v2, v2, v3")
    e("s_lshl_b32 s11, s45, 8")
    e("v_add_u32 v2, s11, v2")
    e("v_mul_u32_u24 v2, 450, v2")
    e("s_lshl_b32 s11, s44, 1")
    e("v_add_u32 v2, s11, v2")
    e("s_waitcnt lgkmcnt(0)")
    for rr in range(4):
        e(f"v_add_u32 v5, {32*rr*450}, v2")
        e(f"global_load_dwordx4 v[{128+4*rr}:{131+4*rr}], v5, s[40:41]")
        e(f"global_load_dwordx4 v[{144+4*rr}:{147+4*rr}], v5, s[42:43]")
    e.label("P_wt_skip1")
def side_wt_finish(e):
    e("s_cmp_ge_u32 s2, 232")
    e("s_cbranch_scc1 P_wt_skip2")
    e("s_cmp_lg_u32 s3, 0")
    e("s_cbranch_scc1 P_wt_skip2")
    e("s_mul_i32 s11, s44, 8192")
    e("s_lshl_b32 s14, s45, 10")
    e("s_add_u32 s11, s11, s14")
    e(f"s_add_u32 s11, s11, {W.WT}")
    e("v_lshl_add_u32 v4, v1, 4, s11")
    e("s_mov_b32 s46, 0x05040100"); e("s_mov_b32 s47, 0x07060302")
    e("s_waitcnt vmcnt(0)")
    for c in range(8):
        for rr in range(4):
            e(f"v_perm_b32 v{160+rr}, v{144+4*rr+(c>>1)}, v{128+4*rr+(c>>1)}, s{46+(c&1)}")
        e(f"global_store_dwordx4 v4, v[160:163], s[4:5]")
        e("v_add_u32 v4, 8192, v4")
        e("s_nop 0")
    e.label("P_wt_skip2")

def fill_layer(e, L, NT, tag, stores_flag=""):
    e("v_mov_b32 v4, -1"); e("v_mov_b32 v5, -1"); e("v_mov_b32 v6, -1"); e("v_mov_b32 v7, -1")
    regions = [(W.MEMB[L]+W.MEM_STRIDE, 64*W.MEM_STRIDE), (W.PB[L], 65*W.P_STRIDE),
               (W.MEMX[L]+W.MEMX_STRIDE, 64*W.MEMX_STRIDE), (W.MEMXI[L]+W.MEMX_STRIDE, 64*W.MEMX_STRIDE)]
    for ri,(base, n) in enumerate(regions):
        nch = n//16
        for it in range(-(-nch // NT)):
            lab = f"{tag}_f{ri}_{it}"
            full = (it+1)*NT <= nch
            e(f"v_add_u32 v8, {it*NT}, v2")
            if not full:
                e(f"v_cmp_gt_u32 vcc, {nch}, v8"); e("s_and_saveexec_b64 s[12:13], vcc"); e(f"s_cbranch_execz {lab}")
            e("v_lshlrev_b32 v8, 4, v8"); e(f"v_add_u32 v8, {base}, v8")
            e(f"global_store_dwordx4 v8, v[4:7], s[4:5] {stores_flag}")
            if not full:
                e.label(lab); e("s_mov_b64 exec, s[12:13]")
def side_counters(e):
    e("v_mov_b32 v4, 0"); e("v_mov_b32 v5, 0"); e("v_mov_b32 v6, 0"); e("v_mov_b32 v7, 0")
    e("v_cmp_gt_u32 vcc, 4096, v2")
    e("s_and_saveexec_b64 s[12:13], vcc")
    e("s_cbranch_execz P_cnt_d")
    e("v_lshlrev_b32 v8, 4, v2")
    e(f"v_add_u32 v8, {W.CNT}, v8")
    e("global_store_dwordx4 v8, v[4:7], s[4:5]")
    e.label("P_cnt_d")
    e("s_mov_b64 exec, s[12:13]")

def side_mem0(e):
    e("s_cmp_lg_u32 s2, 255")
    e("s_cbranch_scc1 P_m0_skip")
    load_ptr(e, 40, 'mem0')
    e("s_waitcnt lgkmcnt(0)")
    e("v_lshrrev_b32 v8, 2, v0")
    e("v_and_b32 v9, 3, v0")
    e("v_lshrrev_b32 v10, 4, v8")
    e("v_lshrrev_b32 v11, 3, v8")
    e("v_and_b32 v11, 1, v11")
    e("v_and_b32 v12, 7, v8")
    e("v_lshlrev_b32 v10, 4, v10")
    e("v_lshl_add_u32 v10, v9, 2, v10")
    e("v_lshl_add_u32 v10, v11, 1, v10")
    e("v_mul_u32_u24 v12, 448, v12")
    e("v_add_u32 v10, v10, v12")
    e("v_lshlrev_b32 v10, 1, v10")
    for it in range(7): e(f"global_load_dword v{20+it}, v10, s[40:41] offset:{128*it}")
    e("v_lshlrev_b32 v3, 2, v0")
    e("s_waitcnt vmcnt(0)")
    for it in range(7):
        for L in range(2):
            e(f"v_add_u32 v14, {W.MEMB[L] + 1024*it}, v3")
            e(f"global_store_dword v14, v{20+it}, s[4:5]")
            e(f"v_add_u32 v14, {W.MEMXI[L] + 1024*it}, v3")
            e(f"global_store_dword v14, v{20+it}, s[4:5]")
    e("v_lshlrev_b32 v3, 4, v0")
    e("v_mov_b32 v4, 0"); e("v_mov_b32 v5, 0"); e("v_mov_b32 v6, 0"); e("v_mov_b32 v7, 0")
    e("v_and_b32 v15, 15, v0"); e("v_cmp_le_u32 vcc, 14, v15"); e("v_mov_b32 v16, -1"); e("s_nop 0")
    for k in range(4): e(f"v_cndmask_b32 v{4+k}, v{4+k}, v16, vcc")
    for L in range(2):
        for half in range(2):
            e(f"v_add_u32 v14, {W.MEMB[L] + 8192 + half*4096}, v3")
            e("global_store_dwordx4 v14, v[4:7], s[4:5]")
    for it in range(2):
        e(f"v_add_u32 v3, {256*it}, v0")
        e("v_cmp_gt_u32 vcc, 448, v3")
        e("s_and_saveexec_b64 s[12:13], vcc")
        e(f"s_cbranch_execz P_mx{it}")
        e("v_lshlrev_b32 v8, 4, v3")
        e("global_load_dwordx4 v[16:19], v8, s[40:41]")
        e("s_waitcnt vmcnt(0)")
        for L in range(2):
            e(f"v_add_u32 v14, {W.MEMX[L]}, v8")
            e("global_store_dwordx4 v14, v[16:19], s[4:5]")
        e.label(f"P_mx{it}")
        e("s_mov_b64 exec, s[12:13]")
    e.label("P_m0_skip")

def fold_setup(e):
    e("s_and_b32 s14, s2, 7")
    e("s_lshr_b32 s15, s2, 3")
    e("s_mul_hi_u32 s16, s15, 0x24924925")
    e("s_mul_i32 s52, s16, 7")
    e("s_sub_u32 s52, s15, s52")
    e("s_lshl_b32 s14, s14, 2")
    e("s_add_u32 s14, s14, s16")
    e("s_lshr_b32 s50, s14, 4")
    e("s_and_b32 s51, s14, 15")
    e("s_cmp_eq_u32 s50, 0")
    e(f"s_cselect_b32 s14, {KA['wq']}, {KA['wv']}")
    e(f"s_cselect_b32 s15, {KA['wk']}, {KA['wo']}")
    e("s_add_u32 s16, s0, s14"); e("s_addc_u32 s17, s1, 0")
    e("s_add_u32 s18, s0, s15"); e("s_addc_u32 s19, s1, 0")
    e("s_load_dwordx2 s[6:7], s[16:17], 0")
    e("s_load_dwordx2 s[8:9], s[18:19], 0")
    vT, vT2, vT3 = 3, 4, 5
    e("s_lshl_b32 s24, s3, 3")
    for k in range(4):
        e(f"v_lshrrev_b32 v{vT}, 5, v{vL}")
        e(f"v_add_u32 v{vT}, s24, v{vT}")
        e(f"v_add_u32 v{vT}, {2*k}, v{vT}")
        e(f"v_and_b32 v{vT2}, 3, v{vT}")
        e(f"v_lshlrev_b32 v{vT2}, 1, v{vT2}")
        e(f"v_lshrrev_b32 v{vT3}, 3, v{vT}")
        e(f"v_and_b32 v{vT3}, 1, v{vT3}")
        e(f"v_lshl_or_b32 v{vT2}, v{vT3}, 3, v{vT2}")
        e(f"v_and_b32 v{vT3}, 31, v{vL}")
        e(f"v_xor_b32 v{vT2}, v{vT2}, v{vT3}")
        e(f"v_lshlrev_b32 v{vT2}, 4, v{vT2}")
        e(f"v_lshl_add_u32 v{48+k}, v{vT}, 13, v{vT2}")
    e("s_lshl_b32 s24, s3, 12")
    for k in range(4): e(f"s_add_u32 s{20+k}, s24, {k*1024}")
    e("s_waitcnt lgkmcnt(0)")
    e("s_lshl_b32 s14, s51, 9")
    if FOPT.get('samehead'): e("s_mov_b32 s14, 0")
    e("s_add_u32 s6, s6, s14"); e("s_addc_u32 s7, s7, 0")
    e("s_lshl_b32 s53, s52, 1")
    e("s_mov_b32 s55, s53")
def dma_block(e, n):
    buf = n % 4
    e("s_lshl_b32 s54, s53, 18")
    for k in range(4):
        e(f"s_add_u32 m0, s{20+k}, {buf*16384}")
        e(f"v_add_u32 v2, s54, v{48+k}")
        e.vmem(f"global_load_lds_dwordx4 v2, s[6:7]", f"d{n}")
    e("s_add_u32 s53, s53, 1")
    e("s_cmp_eq_u32 s53, 14")
    e("s_cselect_b32 s53, 0, s53")

WO = 4*16384
def fold_bop_issue(e):
    vT, vT2 = 3, 4
    e("s_lshr_b32 s27, s3, 1"); e("s_lshl_b32 s27, s27, 1")
    e("s_lshl_b32 s26, s52, 2"); e("s_add_u32 s26, s26, s27")
    e("s_cmp_eq_u32 s50, 0")
    e("s_cbranch_scc0 P_foldB_iss")
    e(f"v_and_b32 v{vT}, 15, v{vL}"); e("s_lshl_b32 s27, s26, 4"); e(f"v_add_u32 v{vT}, s27, v{vT}")
    e(f"v_lshlrev_b32 v{vT}, 13, v{vT}")
    e(f"v_lshrrev_b32 v{vT2}, 4, v{vL}"); e(f"v_lshl_add_u32 v{vT}, v{vT2}, 4, v{vT}")
    e("s_lshl_b32 s27, s51, 9"); e(f"v_add_u32 v{vT}, s27, v{vT}")
    for t2 in range(2):
        for ke in range(8): e(f"global_load_dwordx4 v[{64+32*t2+4*ke}:{67+32*t2+4*ke}], v{vT}, s[8:9] offset:{64*ke}")
        if t2 == 0: e(f"v_add_u32 v{vT}, {16*8192}, v{vT}")
    e("s_branch P_fold_iss_d")
    e.label("P_foldB_iss")
    e("s_mul_i32 s27, s51, 229376"); e("s_lshl_b32 s28, s52, 7"); e("s_add_u32 s27, s27, s28")
    e(f"v_lshrrev_b32 v{vT}, 3, v{vL}"); e(f"v_mul_u32_u24 v{vT}, 896, v{vT}")
    e(f"v_and_b32 v{vT2}, 7, v{vL}"); e(f"v_lshl_add_u32 v{vT}, v{vT2}, 4, v{vT}")
    e(f"v_add_u32 v{vT}, s27, v{vT}")
    e("s_mul_i32 s28, s3, 57344"); e(f"v_add_u32 v{vT}, s28, v{vT}")
    e("s_lshl_b32 s29, s3, 13"); e(f"s_add_u32 s29, s29, {WO}")
    for k in range(8):
        e(f"s_add_u32 m0, s29, {k*1024}"); e("s_nop 0")
        e(f"global_load_lds_dwordx4 v{vT}, s[8:9]")
        e(f"v_add_u32 v{vT}, {8*896}, v{vT}")
    e.label("P_fold_iss_d")

def fold_main(e):
    vT, vT2, vT3, vOA = 3, 4, 5, 7
    e("s_barrier")
    e("s_cmp_eq_u32 s50, 0")
    e("s_cbranch_scc1 P_fold_go")
    e(f"v_lshrrev_b32 v{vT}, 4, v{vL}"); e(f"v_lshlrev_b32 v{vT}, 3, v{vT}")
    e(f"v_and_b32 v{vT2}, 15, v{vL}"); e(f"v_lshrrev_b32 v{vT3}, 2, v{vT2}")
    e(f"v_add_u32 v{vT}, v{vT}, v{vT3}"); e(f"v_lshlrev_b32 v{vT}, 7, v{vT}")
    e(f"v_and_b32 v{vT2}, 3, v{vT2}"); e(f"v_lshl_add_u32 v{vT}, v{vT2}, 3, v{vT}")
    e("s_lshr_b32 s28, s3, 1"); e("s_lshl_b32 s28, s28, 6")
    e(f"v_add_u32 v{vT}, s28, v{vT}"); e(f"v_add_u32 v{vT}, {WO}, v{vT}")
    for t2 in range(2):
        for ke in range(8):
            r = 64+32*t2+4*ke
            e(f"ds_read_b64_tr_b16 v[{r}:{r+1}], v{vT} offset:{ke*4096 + t2*32}")
            e(f"ds_read_b64_tr_b16 v[{r+2}:{r+3}], v{vT} offset:{ke*4096+512 + t2*32}")
        e("s_waitcnt lgkmcnt(0)")
    e.label("P_fold_go")
    e(f"v_and_b32 v{vT}, 15, v{vL}"); e(f"v_lshrrev_b32 v{vT2}, 2, v{vT}"); e(f"v_and_b32 v{vT3}, 3, v{vT}")
    e(f"v_lshl_add_u32 v8, v{vT2}, 3, v{vT3}")
    e(f"v_lshlrev_b32 v9, 1, v{vT3}"); e(f"v_and_b32 v10, 1, v{vT2}"); e(f"v_lshl_or_b32 v9, v10, 3, v9")
    e(f"v_lshrrev_b32 v10, 4, v{vL}")
    e("s_and_b32 s27, s3, 1"); e("s_lshl_b32 s28, s27, 11")
    for ke in range(8):
        e(f"v_add_u32 v11, {4*ke}, v10"); e(f"v_xor_b32 v11, v11, v9"); e(f"v_lshlrev_b32 v11, 4, v11")
        e(f"v_lshl_add_u32 v{52+ke}, v8, 9, v11"); e(f"v_add_u32 v{52+ke}, s28, v{52+ke}")
    e(f"s_mul_i32 s28, s50, {16*W.HEAD_IMG}"); e(f"s_mul_i32 s29, s51, {W.HEAD_IMG}"); e("s_add_u32 s28, s28, s29")
    e(f"s_mul_i32 s29, s26, {W.TILE}"); e("s_add_u32 s28, s28, s29"); e(f"s_add_u32 s28, s28, {W.WIMG}")
    e("s_lshl_b32 s27, s27, 3"); e("s_add_u32 s28, s28, s27")
    e(f"v_lshl_add_u32 v{vOA}, v{vL}, 4, s28")
    e("s_cmp_eq_u32 s50, 0")
    e(f"s_cselect_b32 s30, {LOG2E_16}, 1.0")
    e.vm = []
    AR = [128, 160]
    ACC = 192
    def rd(n, ke): return f"ds_read_b128 v[{AR[n%2]+4*ke}:{AR[n%2]+4*ke+3}], v{52+ke} offset:{(n % 4)*16384}"
    for ke in range(8): e(rd(0, ke))
    for n in range(14):
        if n + 1 < 14 and n + 1 >= 3 and not FOPT.get('nodma'): e.wait_vm(f"d{n+1}")
        e("s_barrier")
        side = []
        if n + 1 < 14: side += [rd(n+1, ke) for ke in range(8)]
        dma = []
        if n + 3 < 14 and not FOPT.get('nodma'):
            buf = (n+3) % 4
            dma.append("s_lshl_b32 s54, s53, 18")
            for k in range(4):
                dma += [f"s_add_u32 m0, s{20+k}, {buf*16384}", f"v_add_u32 v2, s54, v{48+k}", ("vm", f"global_load_lds_dwordx4 v2, s[6:7]", f"d{n+3}")]
            dma += ["s_add_u32 s53, s53, 1", "s_cmp_eq_u32 s53, 14", "s_cselect_b32 s53, 0, s53"]
        e(f"s_waitcnt lgkmcnt(0)")
        si = di = 0
        for t2 in range(2):
            for ke in range(8):
                a = ACC + 4*t2
                c = "0" if ke == 0 else f"v[{a}:{a+3}]"
                e(f"v_mfma_f32_16x16x32_bf16 v[{a}:{a+3}], v[{AR[n%2]+4*ke}:{AR[n%2]+4*ke+3}], v[{64+32*t2+4*ke}:{67+32*t2+4*ke}], {c}")
                if si < len(side): e(side[si]); si += 1
                elif di < len(dma):
                    for _ in range(2):
                        if di < len(dma):
                            x = dma[di]; di += 1
                            if isinstance(x, tuple): e.vmem(x[1], x[2])
                            else: e(x)
        while di < len(dma):
            x = dma[di]; di += 1
            if isinstance(x, tuple): e.vmem(x[1], x[2])
            else: e(x)
        e("s_lshl_b32 s54, s55, 10"); e("v_add_u32 v6, s54, v7"); e(f"v_add_u32 v12, {W.TILE}, v6")
        e("s_add_u32 s55, s55, 1"); e("s_cmp_eq_u32 s55, 14"); e("s_cselect_b32 s55, 0, s55")
        e.nop(2)
        for k in range(4): e(f"v_pk_mul_f32 v[{ACC+2*k}:{ACC+2*k+1}], v[{ACC+2*k}:{ACC+2*k+1}], s[30:31] op_sel_hi:[1,0]")
        for k in range(4): e(f"v_cvt_pk_bf16_f32 v{200+k}, v{ACC+2*k}, v{ACC+2*k+1}")
        if not FOPT.get('nostore'):
            e.vmem("global_store_dwordx2 v6, v[200:201], s[4:5]", 'st')
            e.vmem("global_store_dwordx2 v12, v[202:203], s[4:5]", 'st')

def gen(e, name="prep_kernel", skip=()):
    kernel_head(e, name)
    e(f"s_cmp_ge_u32 s2, {N_WG}")
    e("s_cbranch_scc1 P_end")
    load_ptr(e, 4, 'ws')
    lane_wave(e, 1, 3, 2)
    e("s_waitcnt lgkmcnt(0)")
    e("s_lshl_b32 s11, s2, 8"); e("v_add_u32 v2, s11, v0")
    for k,(key, nbytes) in enumerate((("wq",3670016),("wk",3670016),("wv",3670016),("wo",3670016),("x",1835008),("wr",921600),("wi",921600))):
        load_ptr(e, 20+2*k, key)
    e("s_waitcnt lgkmcnt(0)")
    e("v_lshlrev_b32 v40, 7, v2")
    for k,(key, nbytes) in enumerate((("wq",3670016),("wk",3670016),("wv",3670016),("wo",3670016),("x",1835008),("wr",921600),("wi",921600))):
        rot = {0:0, 1:28672, 2:0, 3:28672, 4:57344-14336, 5:28672+14336, 6:57344}[k]
        e(f"v_subrev_u32 v41, {rot}, v2"); e("v_and_b32 v41, 0xffff, v41")
        e(f"v_cmp_gt_u32 vcc, {nbytes//128}, v41"); e("s_and_saveexec_b64 s[12:13], vcc"); e(f"s_cbranch_execz P_pf{k}")
        e("v_lshlrev_b32 v41, 7, v41")
        e(f"global_load_dword v{32+k}, v41, s[{20+2*k}:{21+2*k}]")
        e.label(f"P_pf{k}"); e("s_mov_b64 exec, s[12:13]")
    side_counters(e)
    side_mem0(e)
    e("s_lshl_b32 s11, s2, 8"); e("v_add_u32 v2, s11, v0")
    side_tables(e)
    side_small(e)
    e("s_waitcnt vmcnt(0)")
    e.label("P_end")
    e("s_endpgm")
    e.raw(kernel_desc(name, 48, 48))
```

```python
from common import *
import k_fft
NSTEP = 63
MEM_STRIDE, P_STRIDE, U_SEG, TILE, HEAD_IMG = W.MEM_STRIDE, W.P_STRIDE, W.U_SEG, W.TILE, W.HEAD_IMG
XSEG = 28672
C_TICK, C_WIN, C_SLOT, C_XALL, C_URDY, C_RDY2, C_XRDY = 0, 1024, 1152, 1280, 2048, 4096, 16384
sWS=4; sW=6; sXP=8; sUP=10; sMEM=12; sP=14; sCN=16; sMX=18; sZM=20
sROLE=22; sWAVE=23; sSTEP=24; sTMO=25; sT0=26; sT1=27; sT2=28; sTGT=29
sM56=30; sEVEN=32; sOUT=34; sRES=36; sPX=38; sMXI=52; sPREV=54; sM57=56; sLAY=60; sXCC=40; sSEG=41; sBUF=42; sH=43; sJ=44; sT3=45; sT4=46; sSV=48
vLANE=1; vL16=2; vIDX=3
FAIL="b_fail"
DIAG=[False]
OPT={}
sDBG=70
def dstamp(e, slot, role, regs, sreg=None, step=None):
    if not DIAG[0]: return
    dstamp.n += 1; lab = f".Lds{dstamp.n}"
    e(f"s_cmp_lg_u32 s{sROLE}, {role}"); e(f"s_cbranch_scc1 {lab}")
    if step is not None:
        e(f"s_cmp_lg_u32 s{sSTEP}, {step}"); e(f"s_cbranch_scc1 {lab}")
    if sreg is None:
        e("s_memrealtime s[72:73]"); e("s_waitcnt lgkmcnt(0)"); sreg = 72
    e(f"s_mov_b64 s[74:75], exec"); e("s_mov_b64 exec, 1")
    e(f"v_mov_b32 v{regs[0]}, s{sreg}"); e(f"v_mov_b32 v{regs[1]}, {slot*4}")
    e(f"global_store_dword v{regs[1]}, v{regs[0]}, s[{sDBG}:{sDBG+1}]")
    e("s_waitcnt vmcnt(0)")
    e("s_mov_b64 exec, s[74:75]")
    e.label(lab)
dstamp.n = 0
def wstamp(e, base, regs):
    if not DIAG[0]: return
    e("s_memrealtime s[72:73]"); e("s_waitcnt lgkmcnt(0)")
    e(f"s_lshl_b32 s73, s{sROLE}, 2"); e(f"s_add_u32 s73, s73, {W.TRACE + 32768 + base*1024}")
    e("s_mov_b64 s[74:75], exec"); e("s_mov_b64 exec, 1")
    e(f"v_mov_b32 v{regs[0]}, s72"); e(f"v_mov_b32 v{regs[1]}, s73")
    e(f"global_store_dword v{regs[1]}, v{regs[0]}, s[{sWS}:{sWS+1}]")
    e("s_waitcnt vmcnt(0)"); e("s_mov_b64 exec, s[74:75]")
def dly(e, name):
    d = OPT.get('dly')
    if d and d[0] == name: e.nop(d[1])
def tr(e, k):
    st = OPT.get('trace')
    if st is None: return
    tr.n += 1
    e(f"s_cmp_lg_u32 s{sSTEP}, {st}"); e(f"s_cbranch_scc1 .Ltr{tr.n}")
    e(f"s_memtime s[{78+2*k}:{79+2*k}]")
    e.label(f".Ltr{tr.n}")
tr.n = 0
def tr_init(e):
    if OPT.get('trace') is None: return
    for k in range(78, 94): e(f"s_mov_b32 s{k}, 0")
    e("s_mov_b32 s94, 0"); e("s_mov_b32 s95, 0")
    e("s_memrealtime s[96:97]"); e("s_memtime s[98:99]"); e("s_waitcnt lgkmcnt(0)")
    for k in range(8):
        e("s_mov_b32 s100, s96"); e("s_mov_b32 s101, s98")
        e("s_memrealtime s[96:97]"); e("s_memtime s[98:99]"); e("s_waitcnt lgkmcnt(0)")
        e("s_cmp_lg_u32 s96, s100"); e("s_cselect_b32 s100, 1, 0"); e("s_cmp_eq_u32 s94, 0"); e("s_cselect_b32 s100, s100, 0")
        e("s_cmp_lg_u32 s100, 0"); e("s_cselect_b32 s94, s96, s94"); e("s_cselect_b32 s95, s98, s95")
def tr_dump(e, regs):
    if OPT.get('trace') is None: return
    a, d = regs
    e("s_waitcnt vmcnt(0) lgkmcnt(0)")
    e(f"s_lshl_b32 s{sT0}, s{sROLE}, 2"); e(f"s_add_u32 s{sT0}, s{sT0}, s{sWAVE}"); e(f"s_lshl_b32 s{sT0}, s{sT0}, 6")
    e(f"s_add_u32 s{sT0}, s{sT0}, {W.TRACE}")
    e("s_mov_b64 exec, 1")
    for k in range(10):
        src = 78+2*k if k < 8 else (94 if k == 8 else 95)
        e(f"v_mov_b32 v{a}, s{sT0}"); e(f"v_mov_b32 v{d}, s{src}")
        e(f"global_store_dword v{a}, v{d}, s[{sWS}:{sWS+1}] offset:{4*k}")
    e("s_waitcnt vmcnt(0)")
RT_TILE=768
S_WT=0; S_RT=3*TILE; S_FLAG=S_RT+28*RT_TILE
V_LMEM=0; V_RED=8192; V_WT=16384
B_LDS = V_WT + 8*TILE
def blocks_regs(na, vstart=None, nv=0): return [('a', 8*i) for i in range(na)] + [('v', vstart+8*i) for i in range(nv)]
def tmo(e):
    e(f"s_sub_u32 s{sTMO}, s{sTMO}, 1"); e(f"s_cbranch_scc1 {FAIL}")
def zero4(a): return [f"v_mov_b64 v[{a}:{a+1}], 0", f"v_mov_b64 v[{a+2}:{a+3}], 0"]
def sentinel_tree(regs, t):
    out = []; rs = list(regs)
    out.append(f"v_max3_u32 v{t}, v{rs[0]}, v{rs[1]}, v{rs[2]}"); rs = rs[3:]
    while len(rs) >= 2:
        out.append(f"v_max3_u32 v{t}, v{t}, v{rs[0]}, v{rs[1]}"); rs = rs[2:]
    if rs: out.append(f"v_max_u32 v{t}, v{t}, v{rs[0]}")
    out.append(f"v_cmp_eq_u32 vcc, -1, v{t}")
    return out
def bell_wait57(e, vaddr, sbase, regs, lab, sres):
    d = len(regs)
    ld = lambda r: e(f"global_load_dword v{r}, v{vaddr}, s[{sbase}:{sbase+1}] sc1")
    e(f"s_mov_b64 exec, s[{sM57}:{sM57+1}]")
    for r in regs[:-1]:
        ld(r); e.nop(OPT.get('stag', 64) // d)
    e.label(lab)
    for k in range(d):
        ld(regs[(k-1) % d])
        e(f"s_waitcnt vmcnt({d-1})")
        e(f"v_cmp_eq_u32 s[{sres}:{sres+1}], -1, v{regs[k]}")
        if k == d-1: tmo(e)
        e(f"s_and_b64 vcc, s[{sres}:{sres+1}], s[{sM56}:{sM56+1}]")
        e(f"s_cbranch_scc0 {lab}_ok")
    e(f"s_branch {lab}")
    e.label(f"{lab}_ok")
    e("s_mov_b64 exec, -1")
def bell_wait(e, vaddr, sbase, regs, lab, nl):
    d = len(regs)
    ld = lambda r: e(f"global_load_dword v{r}, v{vaddr}, s[{sbase}:{sbase+1}] sc1")
    e(f"s_mov_b64 exec, {hex((1<<nl)-1) if nl <= 16 else (f's[{sM56}:{sM56+1}]' if nl == 56 else f's[{sM57}:{sM57+1}]')}")
    for r in regs[:-1]:
        ld(r); e.nop(OPT.get('stag', 64) // d)
    e.label(lab)
    for k in range(d):
        ld(regs[(k-1) % d])
        e(f"s_waitcnt vmcnt({d-1})")
        e(f"v_cmp_eq_u32 vcc, -1, v{regs[k]}")
        if k == d-1: tmo(e)
        e(f"s_cbranch_vccz {lab}_ok")
    e(f"s_branch {lab}")
    e.label(f"{lab}_ok")
    e("s_mov_b64 exec, -1")
def load_weights(e, blocks, tiles, vtmp, soff=None):
    n = 0; bi = 0
    for toff in tiles:
        for t in range(7):
            b = blocks[bi]; bi += 1
            e(f"v_add_u32 v{vtmp}, {toff + t*2048}, v{vL16}")
            if soff is not None: e(f"v_add_u32 v{vtmp}, s{soff}, v{vtmp}")
            e(f"global_load_dwordx4 {reg(b,4)}, v{vtmp}, s[{sW}:{sW+1}]")
            e(f"global_load_dwordx4 {reg((b[0], b[1]+4),4)}, v{vtmp}, s[{sW}:{sW+1}] offset:1024")
            n += 2
            if n % 32 == 0: e("s_waitcnt vmcnt(32)")
    e("s_waitcnt vmcnt(0)")
def load_lds_tiles(e, tiles, ldsoffs, stg, v0_, v1_):
    for toff, lo in zip(tiles, ldsoffs):
        for k in range(14):
            e(f"v_add_u32 v{v0_}, {toff + k*1024}, v{vL16}")
            e(f"global_load_dwordx4 v[{stg+4*k}:{stg+4*k+3}], v{v0_}, s[{sW}:{sW+1}]")
        e(f"v_add_u32 v{v1_}, {lo}, v{vL16}")
        e("s_waitcnt vmcnt(0)")
        for k in range(14):
            e(f"ds_write_b128 v{v1_}, v[{stg+4*k}:{stg+4*k+3}] offset:{k*1024}")
        e("s_waitcnt lgkmcnt(0)")
def bell2_addr(e, vBL, last=55):
    e(f"v_min_u32 v{vBL}, {last}, v{vLANE}")
    e(f"v_lshlrev_b32 v{vBL}, 2, v{vBL}")
    e(f"s_and_b32 s{sT0}, s{sROLE}, 7")
    e(f"s_lshl_b32 s{sT0}, s{sT0}, 8")
    e(f"s_add_u32 s{sT0}, s{sT0}, {8192-3072}")
    e(f"v_add_u32 v{vBL}, s{sT0}, v{vBL}")
def rt_write_addr(e, vRTW, t0, t1, t2):
    e(f"v_and_b32 v{t0}, 15, v{vLANE}")
    e(f"v_lshrrev_b32 v{t1}, 4, v{vLANE}")
    e(f"v_lshrrev_b32 v{t2}, 2, v{t0}")
    e(f"v_xor_b32 v{t1}, v{t1}, v{t2}")
    e(f"v_lshlrev_b32 v{t1}, 3, v{t1}")
    e(f"v_lshl_add_u32 v{t1}, v{t0}, 5, v{t1}")
    e(f"v_lshrrev_b32 v{t2}, 3, v{t0}")
    e(f"v_lshl_add_u32 v{vRTW}, v{t2}, 7, v{t1}")
    e(f"v_add_u32 v{vRTW}, {S_RT}, v{vRTW}")
def adv(e, s, n):
    e(f"s_add_u32 s{s}, s{s}, {n}"); e(f"s_addc_u32 s{s+1}, s{s+1}, 0")
def gload(am, t):
    return f"global_load_dwordx4 v[{am+4*t}:{am+4*t+3}], v{vL16}, s[{sMEM}:{sMEM+1}] offset:{t*1024-3072} sc1"
PACE_N, PACE_NOP = 4, 12
def direct_gather(e, am):
    for t in range(PACE_N):
        e(gload(am, t))
        if t+1 < PACE_N: e.nop(PACE_NOP)
def kmajor(e, am, accs, wregs, vtmp):
    chk = sentinel_tree([am+k for k in range(28)], vtmp)
    ci = 0; issued = PACE_N
    for t in range(7):
        e(f"s_waitcnt vmcnt({issued-1-t})")
        for j in range(4):
            e(f"v_smfmac_f32_16x16x64_bf16 v[{accs[j]}:{accs[j]+3}], v[{am+4*t}:{am+4*t+3}], {reg(wregs(j,t),8)}, v{vIDX}")
            if j == 0 and issued < 7:
                e(gload(am, issued)); issued += 1
            elif ci < len(chk) and (ci == len(chk)-1 and t == 6 or (ci < len(chk)-1 and min(2*ci+2, 27) < 4*(t+1))):
                e(chk[ci]); ci += 1
    while ci < len(chk): e(chk[ci]); ci += 1

S_TILES = {0:[4,7,10,13,16,19,22,25], 1:[5,8,11,14,17,20,23,26], 2:[6,9,12,15,18,21,24,27], 3:[0,1,2,3]}
FLAG_AFTER = {1:0, 2:1, 3:2, 5:3, 6:4}
NCP = 5
def score_producer(e, w):
    uid = f"sp{w}"
    tiles = S_TILES[w]
    blocks = blocks_regs(32, 120, 17)
    load_lds_tiles(e, [tiles[0]*TILE], [S_WT + w*TILE], 60, 4, 5)
    load_weights(e, blocks, [t*TILE for t in tiles[1:]], 4)
    vFV, vBL, vRTW, vFA = 0, 1, 4, 5
    vC = [6, 8]; vBR = [6, 7, 8, 9, 10, 11][:OPT.get('pdepth', 3)]
    am = 12; acc = [40, 44, 48, 52, 56, 116]; stg = 60
    rt_write_addr(e, vRTW, 8, 9, 10)
    e(f"v_lshlrev_b32 v{vFA}, 2, v{vLANE}")
    e(f"v_add_u32 v{vFA}, {S_FLAG + 256*w}, v{vFA}")
    e(f"v_mov_b32 v{vFV}, 0")
    for cp in range(NCP): e(f"ds_write_b32 v{vFA}, v{vFV} offset:{cp*1024}")
    bell2_addr(e, vBL)
    def stage():
        for k in range(14): e(f"ds_read_b128 v[{stg+4*k}:{stg+4*k+3}], v{vL16} offset:{S_WT + w*TILE + k*1024}")
    stage()
    for a in acc:
        for l in zero4(a): e(l)
    e("s_waitcnt lgkmcnt(0)"); e("s_barrier")
    e.label(f"b_{uid}_step")
    e(f"v_add_u32 v{vFV}, 1, v{vFV}")
    if OPT.get('sleep_p'):
        e(f"s_cmp_eq_u32 s{sSTEP}, 0"); e(f"s_cbranch_scc1 b_{uid}_ns"); e(f"s_sleep {OPT['sleep_p']}"); e.label(f"b_{uid}_ns")
    if OPT.get('onepoll', 0): e("s_barrier")
    else: bell_wait(e, vBL, sMEM, vBR, f"b_{uid}_bell", 56)
    tr(e, 0)
    e.label(f"b_{uid}_gather")
    direct_gather(e, am); tmo(e)
    kmajor(e, am, acc[:4], lambda j,t: ('v', stg+8*t) if j == 0 else blocks[(j-1)*7+t], vC[0])
    defer = OPT.get('defer', 1)
    if not defer: e(f"s_cbranch_vccnz b_{uid}_redo")
    tr(e, 1)
    dly(e, 'p_kmaj')
    accof = {0:acc[0],1:acc[1],2:acc[2],3:acc[3],4:acc[4],5:acc[5],6:acc[0],7:acc[1]}
    def wr(j, c):
        a = accof[j]
        l = [f"v_cvt_pk_bf16_f32 v{c}, v{a}, v{a+1}", f"v_cvt_pk_bf16_f32 v{c+1}, v{a+2}, v{a+3}",
             f"ds_write_b64 v{vRTW}, v[{c}:{c+1}] offset:{tiles[j]*RT_TILE}"]
        if j in FLAG_AFTER: l.append(f"ds_write_b32 v{vFA}, v{vFV} offset:{FLAG_AFTER[j]*1024}")
        return l
    if OPT.get('burst', 1):
        e.nop(3)
        w01 = wr(0, vC[0]) + wr(1, vC[1])
        for l in w01[:-1]: e(l)
        if defer: e(f"s_cbranch_vccnz b_{uid}_redo")
        e(w01[-1])
        Q = {4: wr(2, vC[0]) + wr(3, vC[1]),
             5: zero4(acc[0]) + wr(4, vC[0]),
             6: zero4(acc[1]) + wr(5, vC[1]),
             7: [None, None] + wr(6, vC[0])}
    else:
        Q = {4: ["s_nop 0"] + wr(0, vC[0]) + wr(1, vC[1]) + wr(2, vC[0]),
             5: wr(3, vC[1]) + zero4(acc[0]) + wr(4, vC[0]),
             6: zero4(acc[1]) + wr(5, vC[1]),
             7: [None, None] + wr(6, vC[0])}
    for r in range(4, 8):
        q = Q[r]; n = len(q); qi = 0
        for t in range(7):
            if not (OPT.get('abl_r') and r in OPT['abl_r']):
                e(f"v_smfmac_f32_16x16x64_bf16 v[{accof[r]}:{accof[r]+3}], v[{am+4*t}:{am+4*t+3}], {reg(blocks[(r-1)*7+t],8)}, v{vIDX}")
            upto = -(-n*(t+1) // 7) if n > 7 else min(n, t+1)
            while qi < upto:
                if q[qi]: e(q[qi])
                qi += 1
            if defer and r == 4 and t == 1 and not OPT.get('burst', 1): e(f"s_cbranch_vccnz b_{uid}_redo")
    tr(e, 2)
    dly(e, 'p_rend')
    e.nop(8)
    for l in wr(7, vC[0])[:3]: e(l)
    e("s_waitcnt lgkmcnt(0)"); e("s_barrier")
    tr(e, 3)
    stage()
    for a in acc:
        for l in zero4(a): e(l)
    adv(e, sMEM, MEM_STRIDE)
    e(f"s_add_u32 s{sSTEP}, s{sSTEP}, 1")
    e(f"s_cmp_lt_u32 s{sSTEP}, {NSTEP}")
    e("s_waitcnt lgkmcnt(0)")
    e(f"s_cbranch_scc1 b_{uid}_step")
    tr_dump(e, (8, 9))
    e("s_endpgm")
    e.label(f"b_{uid}_redo")
    e.nop(8)
    for a in acc[:5]:
        for l in zero4(a): e(l)
    e(f"s_branch b_{uid}_gather")

def score_swave(e):
    uid = "sw"
    tiles = S_TILES[3]
    blocks = blocks_regs(28)
    dstamp(e, 0, 0, (102,103), sreg=96); dstamp(e, 1, 0, (102,103))
    load_weights(e, blocks, [t*TILE for t in tiles], 4)
    dstamp(e, 2, 0, (102,103))
    vX = 144; vB = [60, 76, 92]; vS = 108
    vFV, vBL2, vRTW, vTR0, vTR1, vFA = 0, 1, 4, 5, 6, 7
    vC = [8, 56]; vPX, vPM = 10, 11
    am = 12; acc = [40, 44, 48, 52]
    vBL, vF = 122, 123
    vXA = [120, 121, 104, 105]; vBR = [124, 125, 100, 101][:OPT.get('sdepth', 3)]
    vV, vE, vM, vT, vR, vL, vML, vF2, vO = 126, 132, 138, 139, 140, 141, 142, 143, 58
    vHF = 106
    T, A0, A1, A2, A3, G, N15 = 60, 61, 62, 63, 64, 65, 66
    rt_write_addr(e, vRTW, A0, A1, A2)
    e(f"v_and_b32 v{N15}, 15, v{vLANE}")
    e(f"v_lshrrev_b32 v{G}, 4, v{vLANE}")
    e(f"v_lshrrev_b32 v{A0}, 2, v{N15}")
    e(f"v_mul_u32_u24 v{A1}, 384, v{G}")
    e(f"v_lshl_add_u32 v{A1}, v{A0}, 5, v{A1}")
    e(f"v_and_b32 v{A2}, 3, v{N15}")
    e(f"v_lshlrev_b32 v{A3}, 1, v{G}")
    e(f"v_and_b32 v{A3}, 3, v{A3}")
    e(f"v_xor_b32 v{T}, v{A2}, v{A3}")
    e(f"v_lshl_add_u32 v{vTR0}, v{T}, 3, v{A1}")
    e(f"v_add_u32 v{vTR0}, {S_RT}, v{vTR0}")
    e(f"v_xor_b32 v{T}, 1, v{T}")
    e(f"v_lshl_add_u32 v{vTR1}, v{T}, 3, v{A1}")
    e(f"v_add_u32 v{vTR1}, {S_RT + 4*32}, v{vTR1}")
    e(f"v_and_b32 v{A0}, 3, v{vLANE}")
    e(f"v_min_u32 v{A0}, 2, v{A0}")
    e(f"v_lshlrev_b32 v{vFA}, 8, v{A0}")
    e(f"v_add_u32 v{vFA}, {S_FLAG}, v{vFA}")
    e(f"s_lshl_b32 s{sT0}, s{sROLE}, 9")
    e(f"v_lshrrev_b32 v{A1}, 3, v{N15}")
    e(f"v_and_b32 v{A0}, 7, v{vLANE}")
    e(f"v_lshrrev_b32 v{A3}, 1, v{G}")
    e(f"v_and_b32 v{T}, 1, v{G}")
    e(f"v_lshlrev_b32 v{A2}, 4, v{A0}")
    e(f"v_lshl_add_u32 v{A2}, v{A3}, 8, v{A2}")
    e(f"v_lshl_add_u32 v{A2}, v{T}, 3, v{A2}")
    e(f"v_lshl_add_u32 v{vPX}, v{A1}, 2, v{A2}")
    e(f"v_add_u32 v{vPX}, s{sT0}, v{vPX}")
    e(f"s_lshr_b32 s{sT0}, s{sROLE}, 1"); e(f"s_lshl_b32 s{sT0}, s{sT0}, 8")
    e(f"s_and_b32 s{sT1}, s{sROLE}, 1"); e(f"s_lshl_b32 s{sT1}, s{sT1}, 2")
    e(f"s_add_u32 s{sT0}, s{sT0}, s{sT1}"); e(f"s_add_u32 s{sT0}, s{sT0}, 8192")
    e(f"v_lshlrev_b32 v{A2}, 4, v{A0}")
    e(f"v_lshl_add_u32 v{A2}, v{A3}, 7, v{A2}")
    e(f"v_lshl_add_u32 v{vPM}, v{T}, 3, v{A2}")
    e(f"v_add_u32 v{vPM}, s{sT0}, v{vPM}")
    e(f"s_lshr_b32 s{sT0}, s{sROLE}, 2"); e(f"s_lshl_b32 s{sT0}, s{sT0}, 9")
    e(f"s_and_b32 s{sT1}, s{sROLE}, 3"); e(f"s_lshl_b32 s{sT1}, s{sT1}, 2")
    e(f"s_add_u32 s{sT0}, s{sT0}, s{sT1}"); e(f"s_add_u32 s{sT0}, s{sT0}, 10240")
    e(f"v_and_b32 v{A0}, 3, v{vLANE}")
    e(f"v_lshlrev_b32 v{vBL}, 7, v{A0}")
    e(f"v_add_u32 v{vBL}, s{sT0}, v{vBL}")
    bell2_addr(e, vBL2)
    for k in range(4): e(f"v_add_u32 v{vXA[k]}, {8192*k + 4096}, v{vL16}")
    def xloads():
        for u in range(14):
            for kt in range(2):
                o = kt*14336 + u*1024
                e(f"global_load_dwordx4 v[{vX+kt*56+4*u}:{vX+kt*56+4*u+3}], v{vXA[o//8192]}, s[{sXP}:{sXP+1}] offset:{o%8192-4096}")
    if OPT.get('cnt'):
        for t in range(64, 70): e(f"s_mov_b32 s{t}, 0")
    wait_xall_wave(e, 102, 103, "b_sw_x0", C_XRDY, 2)
    xloads()
    for a in acc + [vS]:
        for l in zero4(a): e(l)
    e(f"v_mov_b32 v{vFV}, 0"); e(f"v_mov_b32 v{vHF}, 0.5")
    e("s_waitcnt vmcnt(0)"); e("s_barrier")
    BUF = [60, 68, 76]; FLG = [84, 85, 86]
    CP = {0: None, 1: 0, 2: 1, 3: 2, 4: 3, 5: 4, 6: None}
    def reads(t):
        buf = BUF[t % 3]
        l = [f"ds_read_b32 v{FLG[t % 3]}, v{vFA} offset:{CP[t]*1024}"] if CP[t] is not None else []
        for hh in range(2):
            u = 2*t+hh
            l.append(f"ds_read_b64_tr_b16 v[{buf+4*hh}:{buf+4*hh+1}], v{vTR0} offset:{2*RT_TILE*u}")
            l.append(f"ds_read_b64_tr_b16 v[{buf+4*hh+2}:{buf+4*hh+3}], v{vTR1} offset:{2*RT_TILE*u}")
        return l
    def mfmas(t):
        buf = BUF[t % 3]
        l = [f"v_smfmac_f32_16x16x64_bf16 v[{vS}:{vS+3}], v[{am+4*t}:{am+4*t+3}], v[{buf}:{buf+7}], v{vIDX}"]
        for hh in range(2):
            u = 2*t+hh
            for kt in (1,2):
                a_ = f"v[{vX+(kt-1)*56+4*u}:{vX+(kt-1)*56+4*u+3}]"
                c = "0" if u == 0 else f"v[{vS+4*kt}:{vS+4*kt+3}]"
                l.append(f"v_mfma_f32_16x16x32_bf16 v[{vS+4*kt}:{vS+4*kt+3}], {a_}, v[{buf+4*hh}:{buf+4*hh+3}], {c}")
        return l
    retries = []
    e.label(f"b_{uid}_step")
    for k,st in enumerate((0,1,2,OPT.get('s0',10),32,OPT.get('s1',62))): dstamp(e, 4+k, 0, (102,103), step=st)
    if DIAG[0]:
        for k,st in enumerate((OPT.get('s0',10),OPT.get('s1',62))):
            e(f"s_cmp_lg_u32 s{sSTEP}, {st}"); e(f"s_cbranch_scc1 .Lmt{k}")
            e("s_memtime s[98:99]"); e("s_waitcnt lgkmcnt(0)")
            dstamp(e, 21+k, 0, (102,103), sreg=98)
            e.label(f".Lmt{k}")
    e(f"v_add_u32 v{vFV}, 1, v{vFV}")
    e(f"s_add_u32 s{sTGT}, s{sSTEP}, 1")
    bell_wait(e, vBL2, sMEM, vBR, f"b_{uid}_bell", 56)
    if OPT.get('onepoll', 0): e("s_barrier")
    tr(e, 0)
    e.label(f"b_{uid}_gather")
    direct_gather(e, am); tmo(e)
    kmajor(e, am, acc, lambda j,t: blocks[j*7+t], vC[0])
    defer = OPT.get('defer', 1)
    if not defer: e(f"s_cbranch_vccnz b_{uid}_redo")
    tr(e, 1)
    dly(e, 's_kmaj')
    e.nop(3 if not defer else 4)
    for j in range(4):
        a = acc[j]; c = vC[j % 2]
        e(f"v_cvt_pk_bf16_f32 v{c}, v{a}, v{a+1}")
        e(f"v_cvt_pk_bf16_f32 v{c+1}, v{a+2}, v{a+3}")
        e(f"ds_write_b64 v{vRTW}, v[{c}:{c+1}] offset:{tiles[j]*RT_TILE}")
        if defer and j == 1: e(f"s_cbranch_vccnz b_{uid}_redo")
    def chk(t): return f"v_cmp_gt_u32 vcc, s{sTGT}, v{FLG[t % 3]}"
    def retry(t):
        lab = f"b_{uid}_cp{t}"
        e(f"s_cbranch_vccnz {lab}_retry"); e.label(f"{lab}_ok"); retries.append((lab, t))
    def batch(t, rd, mid=None, midpos=2):
        i = 0
        for j, m_ in enumerate(mfmas(t)):
            e(m_)
            for _ in range(2 if 'smfmac' not in m_ else 1):
                if i < len(rd): e(rd[i]); i += 1
            if mid and j == midpos:
                for l in mid(i): e(l)
        while i < len(rd): e(rd[i]); i += 1
    if OPT.get('t0first', 2):
        for l in reads(0): e(l)
        e("s_waitcnt lgkmcnt(0)")
        tr(e, 2)
        ml = mfmas(0); r1_ = reads(1); pos = OPT.get('t0pos', 3)
        for j, m_ in enumerate(ml):
            e(m_)
            if j == pos:
                for l in r1_[:3]: e(l)
            if j == pos + 1 or (j == len(ml)-1 and pos + 1 > len(ml)-1):
                for l in r1_[3:]: e(l)
        e("s_waitcnt lgkmcnt(0)"); e(chk(1)); retry(1)
        if OPT.get('t0first', 2) == 2:
            batch(1, reads(2) + reads(3), lambda i: [f"s_waitcnt lgkmcnt({max(i-5,0)})", chk(2)], midpos=3); retry(2)
            batch(2, [], lambda i: ["s_waitcnt lgkmcnt(0)", chk(3)]); retry(3)
        else:
            batch(1, reads(2) , lambda i: ["s_waitcnt lgkmcnt(0)", chk(2)], midpos=3); retry(2)
            batch(2, reads(3), lambda i: ["s_waitcnt lgkmcnt(0)", chk(3)], midpos=3); retry(3)
        batch(3, reads(4), lambda i: ["s_waitcnt lgkmcnt(0)", chk(4)], midpos=3); retry(4)
        batch(4, reads(5), lambda i: ["s_waitcnt lgkmcnt(0)", chk(5)], midpos=3); retry(5)
    else:
        for l in reads(0): e(l)
        for l in reads(1): e(l)
        e("s_waitcnt lgkmcnt(0)"); e(chk(1)); retry(1)
        tr(e, 2)
        batch(0, reads(2))
        batch(1, reads(3), lambda i: [f"s_waitcnt lgkmcnt({i})", chk(2)]); retry(2)
    if OPT.get('t0first', 2):
        pass
    elif OPT.get('d45', 0):
        batch(2, reads(4), lambda i: [f"s_waitcnt lgkmcnt({i})", chk(3)]); retry(3)
        batch(3, reads(5), lambda i: [f"s_waitcnt lgkmcnt({i})", chk(4)]); retry(4)
        batch(4, [], lambda i: ["s_waitcnt lgkmcnt(0)", chk(5)]); retry(5)
    else:
        batch(2, [], lambda i: ["s_waitcnt lgkmcnt(0)", chk(3)]); retry(3)
        dly(e, 's_mid')
        batch(3, reads(4), lambda i: ["s_waitcnt lgkmcnt(0)", chk(4)], midpos=3); retry(4)
        batch(4, reads(5), lambda i: ["s_waitcnt lgkmcnt(0)", chk(5)], midpos=3); retry(5)
    tr(e, 3)
    e("s_barrier")
    tr(e, 4)
    batch(5, reads(6))
    e("s_waitcnt lgkmcnt(0)")
    batch(6, [])
    def ring1():
        e("s_mov_b64 exec, 15")
        e(f"global_store_dword v{vBL}, v{vFV}, s[{sP}:{sP+1}]")
        e("s_mov_b64 exec, -1")
    tr(e, 5)
    dly(e, 's_done')
    T0, T1, T2 = vS, vS+4, vS+8
    D = "row_ror:8"
    if OPT.get('sm3', 1):
        e(f"v_permlane32_swap_b32 v{T0}, v{T0+2}")
        e(f"v_permlane32_swap_b32 v{T0+1}, v{T0+3}")
        e(f"v_add_f32 v{T0}, v{T0}, v{T0+2}"); e(f"v_add_f32 v{T0+1}, v{T0+1}, v{T0+3}")
        e.nop(1)
        e(f"v_add_f32_dpp v{vV+4}, v{T0}, v{T0} {D} row_mask:0xf bank_mask:0xf")
        e(f"v_add_f32_dpp v{vV+5}, v{T0+1}, v{T0+1} {D} row_mask:0xf bank_mask:0xf")
        for r in range(4): e(f"v_add_f32_dpp v{vV+r}, v{T1+r}, v{T1+r} {D} row_mask:0xf bank_mask:0x3")
        for r in range(4): e(f"v_add_f32_dpp v{vV+r}, v{T2+r}, v{T2+r} {D} row_mask:0xf bank_mask:0xc")
    else:
        e.nop(8)
        e(f"v_permlane32_swap_b32 v{T0}, v{T0+2}")
        e(f"v_permlane32_swap_b32 v{T0+1}, v{T0+3}")
        for r in range(4): e(f"v_add_f32_dpp v{vV+r}, v{T1+r}, v{T1+r} {D} row_mask:0xf bank_mask:0x3")
        e(f"v_add_f32 v{T0}, v{T0}, v{T0+2}"); e(f"v_add_f32 v{T0+1}, v{T0+1}, v{T0+3}")
        for r in range(4): e(f"v_add_f32_dpp v{vV+r}, v{T2+r}, v{T2+r} {D} row_mask:0xf bank_mask:0xc")
        e(f"v_add_f32_dpp v{vV+4}, v{T0}, v{T0} {D} row_mask:0xf bank_mask:0xf")
        e(f"v_add_f32_dpp v{vV+5}, v{T0+1}, v{T0+1} {D} row_mask:0xf bank_mask:0xf")
    if OPT.get('ring1', 4) == 3: ring1()
    PK = "op_sel_hi:[1,0]"; neg = "neg_lo:[0,1] neg_hi:[0,1]"
    e(f"v_max3_f32 v{vML}, v{vV}, v{vV+1}, v{vV+2}")
    e(f"v_max3_f32 v{vML}, v{vML}, v{vV+3}, v{vV+4}")
    e(f"v_max_f32 v{vML}, v{vML}, v{vV+5}")
    e(f"v_pk_add_f32 v[{vE}:{vE+1}], v[{vV}:{vV+1}], v[{vML}:{vML+1}] {PK} {neg}")
    e(f"v_pk_add_f32 v[{vE+2}:{vE+3}], v[{vV+2}:{vV+3}], v[{vML}:{vML+1}] {PK} {neg}")
    e(f"v_max_f32_dpp v{vM}, v{vML}, v{vML} {D} row_mask:0xf bank_mask:0xf")
    e(f"v_pk_add_f32 v[{vE+4}:{vE+5}], v[{vV+4}:{vV+5}], v[{vML}:{vML+1}] {PK} {neg}")
    e(f"v_mov_b32 v{vT}, v{vM}")
    e(f"v_exp_f32 v{vE}, v{vE}"); e(f"v_exp_f32 v{vE+1}, v{vE+1}")
    e(f"v_permlane16_swap_b32 v{vM}, v{vT}")
    e(f"v_exp_f32 v{vE+2}, v{vE+2}")
    e(f"v_max_f32 v{vM}, v{vM}, v{vT}")
    if OPT.get('ring1', 4) == 1: ring1()
    e(f"v_exp_f32 v{vE+3}, v{vE+3}")
    e(f"v_mov_b32 v{vT}, v{vM}")
    e(f"v_exp_f32 v{vE+4}, v{vE+4}"); e(f"v_exp_f32 v{vE+5}, v{vE+5}")
    e(f"v_permlane32_swap_b32 v{vM}, v{vT}")
    e(f"v_pk_add_f32 v[{vV}:{vV+1}], v[{vE}:{vE+1}], v[{vE+2}:{vE+3}]")
    e(f"v_max_f32 v{vM}, v{vM}, v{vT}")
    e(f"v_pk_fma_f32 v[{vV}:{vV+1}], v[{vE+4}:{vE+5}], v[{vHF}:{vHF+1}], v[{vV}:{vV+1}] op_sel_hi:[1,0,1]")
    e(f"v_sub_f32 v{vF2}, v{vML}, v{vM}")
    if OPT.get('ring1', 4) == 4: ring1()
    e(f"v_add_f32 v{vL}, v{vV}, v{vV+1}")
    e(f"v_exp_f32 v{vF2}, v{vF2}")
    e.nop(1)
    e(f"v_mul_f32 v{vL}, v{vL}, v{vF2}")
    e.nop(2)
    e(f"v_add_f32_dpp v{vL}, v{vL}, v{vL} {D} row_mask:0xf bank_mask:0xf")
    e(f"v_mov_b32 v{vT}, v{vL}")
    if OPT.get('ring1', 4) == 5: ring1()
    else: e.nop(2)
    e(f"v_permlane16_swap_b32 v{vL}, v{vT}"); e(f"v_add_f32 v{vL}, v{vL}, v{vT}")
    e(f"v_mov_b32 v{vT}, v{vL}")
    if OPT.get('ring1', 4) == 6: ring1()
    else: e.nop(2)
    e(f"v_permlane32_swap_b32 v{vL}, v{vT}"); e(f"v_add_f32 v{vL}, v{vL}, v{vT}")
    e(f"v_rcp_f32 v{vR}, v{vL}"); e.nop(1)
    e(f"v_mul_f32 v{vR}, v{vR}, v{vF2}")
    for k in range(3): e(f"v_pk_mul_f32 v[{vE+2*k}:{vE+2*k+1}], v[{vE+2*k}:{vE+2*k+1}], v[{vR}:{vR+1}] {PK}")
    e(f"v_cvt_pk_bf16_f32 v{vO}, v{vE}, v{vE+1}")
    e(f"v_cvt_pk_bf16_f32 v{vO+1}, v{vE+2}, v{vE+3}")
    e(f"v_cvt_pk_bf16_f32 v{vC[0]}, v{vE+4}, v{vE+5}")
    e(f"global_store_dword v{vPX}, v{vO}, s[{sP}:{sP+1}]")
    e(f"global_store_dword v{vPX}, v{vO+1}, s[{sP}:{sP+1}] offset:128")
    e(f"global_store_dword v{vPM}, v{vC[0]}, s[{sP}:{sP+1}]")
    tr(e, 6)
    adv(e, sXP, XSEG)
    e(f"s_cmp_lg_u32 s{sSTEP}, 0"); e(f"s_cbranch_scc1 b_{uid}_xk")
    wait_xall_wave(e, 102, 103, "b_sw_xall")
    e.label(f"b_{uid}_xk")
    if OPT.get('sleep_x', 5): e(f"s_sleep {OPT.get('sleep_x', 5)}")
    xloads()
    for a in acc + [vS]:
        for l in zero4(a): e(l)
    adv(e, sP, P_STRIDE); adv(e, sMEM, MEM_STRIDE)
    e(f"s_add_u32 s{sSTEP}, s{sSTEP}, 1")
    e(f"s_cmp_lt_u32 s{sSTEP}, {NSTEP}")
    e(f"s_cbranch_scc1 b_{uid}_step")
    dstamp(e, 3, 0, (102,103))
    if OPT.get('cnt'):
        for t in range(1, 6): dstamp(e, 30+t, 0, (102,103), sreg=63+t)
        dstamp(e, 36, 0, (102,103), sreg=69)
    tr_dump(e, (8, 9))
    e("s_endpgm")
    e.label(f"b_{uid}_redo")
    if OPT.get('cnt'): e("s_add_u32 s69, s69, 1")
    e.nop(8)
    for a in acc:
        for l in zero4(a): e(l)
    e(f"s_branch b_{uid}_gather")
    for lab, t in retries:
        e.label(f"{lab}_retry")
        if OPT.get('cnt'): e(f"s_add_u32 s{63+t}, s{63+t}, 1")
        for l in reads(t): e(l)
        tmo(e)
        e("s_waitcnt lgkmcnt(0)")
        e(f"v_cmp_gt_u32 vcc, s{sTGT}, v{FLG[t % 3]}")
        e(f"s_cbranch_vccnz {lab}_retry")
        e(f"s_branch {lab}_ok")

def helper(e):
    uid = "hp"
    e(f"s_lshl_b32 s{sT0}, s{sWAVE}, 13")
    e(f"v_lshlrev_b32 v8, 7, v{vLANE}"); e(f"v_add_u32 v8, s{sT0}, v8"); e(f"v_min_u32 v8, {MEM_STRIDE-128}, v8")
    e(f"s_lshl_b32 s{sT0}, s{sWAVE}, 12")
    e(f"v_and_b32 v9, 31, v{vLANE}"); e("v_lshlrev_b32 v9, 7, v9"); e(f"v_add_u32 v9, s{sT0}, v9")
    e(f"v_min_u32 v9, {P_STRIDE-128}, v9")
    e(f"s_mul_i32 s{sT0}, s{sWAVE}, {75*128}")
    e(f"v_lshlrev_b32 v5, 7, v{vLANE}"); e(f"v_add_u32 v5, s{sT0}, v5"); e(f"v_add_u32 v7, {64*128}, v5")
    e(f"v_min_u32 v5, {XSEG-128}, v5"); e(f"v_min_u32 v7, {XSEG-128}, v7")
    e("v_mov_b32 v6, 0")
    e(f"s_sub_u32 s64, s{sMEM}, 3072"); e(f"s_subb_u32 s65, s{sMEM+1}, 0")
    e(f"s_mov_b64 s[66:67], s[{sP}:{sP+1}]")
    e(f"s_mov_b64 s[68:69], s[{sXP}:{sXP+1}]")
    def pfx():
        e("global_load_dword v41, v8, s[64:65]"); e("global_load_dword v42, v9, s[66:67]")
        adv(e, 64, MEM_STRIDE); adv(e, 66, P_STRIDE)
    def pfa():
        e("global_load_dword v40, v5, s[68:69]")
        e("s_mov_b64 exec, 0xfff"); e("global_load_dword v43, v7, s[68:69]"); e("s_mov_b64 exec, -1")
        adv(e, 68, XSEG)
    e(f"v_and_b32 v12, 7, v{vLANE}"); e("v_lshlrev_b32 v12, 8, v12"); e(f"v_add_u32 v12, {8192 + 56*4}, v12")
    e(f"s_cmp_eq_u32 s{sWAVE}, 3"); e(f"s_cbranch_scc1 b_{uid}_relay")
    pfx(); pfx(); pfx()
    wait_xall_wave(e, 10, 11, "b_hp_xall")
    pfa(); pfa()
    e("s_waitcnt vmcnt(0)")
    e.label(f"b_{uid}_step")
    e(f"global_load_dword v2, v6, s[{sMEM}:{sMEM+1}] offset:-3072 sc1")
    tmo(e)
    e("s_waitcnt vmcnt(0)")
    e("v_cmp_eq_u32 vcc, -1, v2")
    e(f"s_cbranch_vccz b_{uid}_go")
    e("s_sleep 4"); e(f"s_branch b_{uid}_step")
    e.label(f"b_{uid}_go")
    e(f"s_add_u32 s{sT1}, s{sSTEP}, 2"); e(f"s_cmp_ge_u32 s{sT1}, 64"); e(f"s_cbranch_scc1 b_{uid}_skip")
    pfx(); pfa()
    e.label(f"b_{uid}_skip")
    adv(e, sMEM, MEM_STRIDE)
    e(f"s_add_u32 s{sSTEP}, s{sSTEP}, 1"); e(f"s_cmp_lt_u32 s{sSTEP}, {NSTEP}")
    e(f"s_cbranch_scc1 b_{uid}_step")
    e("s_endpgm")
    e.label(f"b_{uid}_relay")
    e(f"v_mov_b32 v13, {C_URDY}"); e("v_mov_b32 v14, 1")
    e(f"s_sub_u32 s64, s{sMEM}, 3072"); e(f"s_subb_u32 s65, s{sMEM+1}, 0")
    e(f"s_mov_b64 s[66:67], s[{sUP}:{sUP+1}]")
    e(f"v_lshrrev_b32 v17, 4, v{vLANE}"); e("v_lshlrev_b32 v17, 13, v17"); e(f"v_and_b32 v18, 15, v{vLANE}"); e("v_lshl_add_u32 v17, v18, 7, v17")
    e.label(f"b_{uid}_rl")
    e(f"global_load_dword v15, v13, s[{sCN}:{sCN+1}] sc1")
    tmo(e)
    e("s_waitcnt vmcnt(0)")
    e("v_cmp_ne_u32 vcc, 16, v15")
    e(f"s_cbranch_vccz b_{uid}_rl1")
    e("s_sleep 4"); e(f"s_branch b_{uid}_rl")
    e.label(f"b_{uid}_rl1")
    npf = OPT.get('upf', 0)
    if npf:
        for part in range(npf // 2):
            for c in range(14):
                e(f"v_add_u32 v18, {c*32768 + part*2048}, v17")
                e(f"global_load_dword v19, v18, s[66:67]")
        adv(e, 66, U_SEG)
    e("s_mov_b64 exec, 0xff")
    e("global_load_dword v16, v12, s[64:65]")
    e("s_waitcnt vmcnt(0)")
    e("global_store_dword v12, v14, s[64:65]")
    e("s_mov_b64 exec, -1")
    adv(e, 64, MEM_STRIDE)
    e("v_add_u32 v13, 4, v13")
    e(f"s_add_u32 s{sSTEP}, s{sSTEP}, 1")
    e(f"s_cmp_lt_u32 s{sSTEP}, 4"); e(f"s_cbranch_scc1 b_{uid}_rl2")
    e.label(f"b_{uid}_rl3")
    e(f"global_load_dword v16, v6, s[{sMEM}:{sMEM+1}] offset:-3072 sc1")
    tmo(e)
    e("s_waitcnt vmcnt(0)")
    e("v_cmp_eq_u32 vcc, -1, v16")
    e(f"s_cbranch_vccz b_{uid}_rl4")
    e("s_sleep 6"); e(f"s_branch b_{uid}_rl3")
    e.label(f"b_{uid}_rl4")
    adv(e, sMEM, MEM_STRIDE)
    e.label(f"b_{uid}_rl2")
    e(f"s_cmp_lt_u32 s{sSTEP}, {NSTEP}"); e(f"s_cbranch_scc1 b_{uid}_rl")
    e("s_endpgm")

def publisher(e):
    uid = "pb"
    own = {0:[0,4], 1:[1,5], 2:[2,6], 3:[3]}
    def chunk_addr(dstL, dstG, first):
        if first: e("v_mov_b32 v20, v0")
        else:
            e("v_add_u32 v20, 256, v0"); e("v_min_u32 v20, 447, v20")
        e(f"s_mov_b32 s{sT1}, {(2**32+55)//56}")
        e(f"v_mul_hi_u32 v21, v20, s{sT1}")
        e("v_mul_u32_u24 v22, 56, v21"); e("v_sub_u32 v22, v20, v22")
        e(f"v_lshlrev_b32 v{dstG}, 4, v20")
        e("v_lshrrev_b32 v23, 3, v22"); e("v_lshlrev_b32 v23, 10, v23")
        e("v_and_b32 v24, 7, v22"); e("v_lshrrev_b32 v24, 1, v24"); e("v_lshl_add_u32 v23, v24, 8, v23")
        e("v_lshl_add_u32 v23, v21, 4, v23")
        e("v_and_b32 v24, 1, v22"); e(f"v_lshl_add_u32 v{dstL}, v24, 3, v23")
    chunk_addr(30, 31, True); chunk_addr(32, 33, False)
    adv(e, sMEM, MEM_STRIDE); adv(e, sMX, W.MEMX_STRIDE); adv(e, sMXI, W.MEMX_STRIDE)
    e(f"s_mov_b32 s{sSTEP}, 1")
    e.label(f"b_{uid}_step")
    for w in range(4):
        lab = f"b_{uid}_w{w}"
        if w < 3:
            e(f"s_cmp_eq_u32 s{sWAVE}, {w}"); e(f"s_cbranch_scc0 {lab}_n")
        e.label(lab)
        for k,t in enumerate(own[w]): e(f"global_load_dwordx4 v[{8+4*k}:{11+4*k}], v{vL16}, s[{sMEM}:{sMEM+1}] offset:{t*1024-3072} sc1")
        tmo(e)
        e("s_waitcnt vmcnt(0)")
        for l in sentinel_tree([8+j for j in range(4*len(own[w]))], 16): e(l)
        e(f"s_cbranch_vccz {lab}_ok")
        e(f"s_sleep {OPT.get('pubsleep', 2)}"); e(f"s_branch {lab}")
        e.label(f"{lab}_ok")
        for k,t in enumerate(own[w]):
            e(f"ds_write_b128 v{vL16}, v[{8+4*k}:{11+4*k}] offset:{t*1024}")
            e(f"v_add_u32 v17, {t*1024}, v{vL16}")
            e(f"global_store_dwordx4 v17, v[{8+4*k}:{11+4*k}], s[{sMXI}:{sMXI+1}] sc1")
        if w < 3:
            e(f"s_branch b_{uid}_j"); e.label(f"{lab}_n")
    e.label(f"b_{uid}_j")
    e("s_waitcnt lgkmcnt(0)"); e("s_barrier")
    for (aL, aG, d) in ((30, 31, 40), (32, 33, 44)):
        e(f"ds_read_b32 v{d}, v{aL}"); e(f"ds_read_b32 v{d+1}, v{aL} offset:128")
        e(f"ds_read_b32 v{d+2}, v{aL} offset:4"); e(f"ds_read_b32 v{d+3}, v{aL} offset:132")
    e("s_waitcnt lgkmcnt(0)")
    e(f"global_store_dwordx4 v31, v[40:43], s[{sMX}:{sMX+1}] sc1")
    e(f"global_store_dwordx4 v33, v[44:47], s[{sMX}:{sMX+1}] sc1")
    e("s_barrier")
    adv(e, sMEM, MEM_STRIDE); adv(e, sMX, W.MEMX_STRIDE); adv(e, sMXI, W.MEMX_STRIDE)
    e(f"s_add_u32 s{sSTEP}, s{sSTEP}, 1"); e(f"s_cmp_lt_u32 s{sSTEP}, {NSTEP}")
    e(f"s_cbranch_scc1 b_{uid}_step")
    e("s_endpgm")

V_OWN = {0:[0,4], 1:[1,5], 2:[2,6], 3:[3]}
def value_wave(e, w):
    uid = f"vw{w}"
    vAM, vACC, vSTG = 12, 40, 52
    tl = [(hh, nt) for hh in range(4) for nt in range(2)]
    def toff(hh, nt): return (4*w+hh)*HEAD_IMG + nt*TILE
    blocks = blocks_regs(32, 176, 10)
    load_lds_tiles(e, [toff(*tl[0]), toff(*tl[1])], [V_WT + (2*w)*TILE, V_WT + (2*w+1)*TILE], vSTG, 4, 5)
    load_weights(e, blocks, [toff(*x) for x in tl[2:]], 4)
    if w == 0: dstamp(e, 10, 16, (174,175))
    vSA, vSB = 4, 5
    vT0, vT1, vT2, vT3 = 8, 9, 10, 11
    vZB = 108; vP = vACC; vO = vAM; vR = vAM+8; vU = 124
    vRW, vRR, vMS, vUA, vPA, vPMA, vZA, vMX = 156, 157, 158, 159, 160, 161, 162, 163
    vBL1, vBL2, vBS, vMI, vFA = 164, 165, 166, 167, 168
    vBR = [169,170,171,172,173][:OPT.get('vdepth', 3)]
    e(f"v_add_u32 v{vSA}, {V_WT + (2*w)*TILE}, v{vL16}")
    e(f"v_add_u32 v{vSB}, {V_WT + (2*w+1)*TILE}, v{vL16}")
    e(f"v_add_u32 v{vRW}, {V_RED + w*2048}, v{vL16}")
    nt_w, hf_w = w >> 1, w & 1
    e(f"v_lshrrev_b32 v{vT0}, 3, v{vLANE}")
    e(f"v_and_b32 v{vT1}, 7, v{vLANE}")
    e(f"v_lshrrev_b32 v{vT2}, 1, v{vT1}"); e(f"v_lshlrev_b32 v{vT2}, 2, v{vT2}")
    e(f"v_and_b32 v{vT1}, 1, v{vT1}")
    e(f"v_add_u32 v{vT2}, v{vT2}, v{vT1}"); e(f"v_add_u32 v{vT2}, {2*hf_w}, v{vT2}")
    e(f"s_sub_u32 s{sT0}, s{sROLE}, 16")
    e(f"s_lshl_b32 s{sT1}, s{sT0}, 6"); e(f"s_add_u32 s{sT1}, s{sT1}, {63*W.MEMX_STRIDE + 32*nt_w}")
    e(f"v_mul_u32_u24 v{vMX}, 896, v{vT0}"); e(f"v_lshl_add_u32 v{vMX}, v{vT2}, 1, v{vMX}"); e(f"v_add_u32 v{vMX}, s{sT1}, v{vMX}")
    e(f"v_lshrrev_b32 v{vT3}, 2, v{vT0}")
    e(f"v_lshl_add_u32 v{vT2}, v{vT3}, 4, v{vT2}"); e(f"v_lshlrev_b32 v{vT2}, 4, v{vT2}")
    e(f"v_and_b32 v{vT0}, 3, v{vT0}")
    e(f"v_lshl_add_u32 v{vRR}, v{vT0}, 2, v{vT2}"); e(f"v_add_u32 v{vRR}, {V_RED + nt_w*1024}, v{vRR}")
    e(f"s_lshr_b32 s{sT1}, s{sT0}, 1"); e(f"s_lshl_b32 s{sT1}, s{sT1}, 10")
    e(f"s_and_b32 s{sT2}, s{sT0}, 1"); e(f"s_lshl_b32 s{sT2}, s{sT2}, 9")
    e(f"s_add_u32 s{sT1}, s{sT1}, s{sT2}"); e(f"s_add_u32 s{sT1}, s{sT1}, {nt_w*256 + hf_w*128 + MEM_STRIDE - 3072}")
    e(f"v_lshl_add_u32 v{vMS}, v{vLANE}, 1, s{sT1}")
    e(f"v_add_u32 v{vMI}, {63*W.MEMX_STRIDE - (MEM_STRIDE - 3072)}, v{vMS}")
    e(f"s_lshl_b32 s{sT1}, s{sT0}, 15"); e(f"s_add_u32 s{sT1}, s{sT1}, {w*8192 + 4096}")
    e(f"v_add_u32 v{vUA}, s{sT1}, v{vL16}")
    e(f"v_add_u32 v{vPA}, {w*2048}, v{vL16}")
    e(f"v_lshrrev_b32 v{vT0}, 5, v{vLANE}"); e(f"v_lshlrev_b32 v{vT0}, 8, v{vT0}")
    e(f"v_and_b32 v{vT1}, 15, v{vLANE}")
    e(f"v_lshl_add_u32 v{vPMA}, v{vT1}, 4, v{vT0}"); e(f"v_add_u32 v{vPMA}, {8192 + w*512}, v{vPMA}")
    e(f"s_and_b32 s{sT1}, s{sT0}, 3"); e(f"s_lshl_b32 s{sT1}, s{sT1}, 7"); e(f"s_add_u32 s{sT1}, s{sT1}, {10240 + w*512}")
    e(f"v_and_b32 v{vT0}, 3, v{vLANE}")
    e(f"v_lshl_add_u32 v{vBL1}, v{vT0}, 2, s{sT1}")
    if OPT.get('onepoll1', 0) and w == 0:
        e(f"v_lshrrev_b32 v{vT0}, 2, v{vLANE}"); e(f"v_and_b32 v{vT0}, 3, v{vT0}"); e(f"v_lshl_add_u32 v{vBL1}, v{vT0}, 9, v{vBL1}")
    bell2_addr(e, vBL2, 56)
    e(f"s_sub_u32 s{sT0}, s{sROLE}, 16")
    e(f"s_lshl_b32 s{sT1}, s{sT0}, 4"); e(f"s_add_u32 s{sT1}, s{sT1}, {MEM_STRIDE + 8192 - 3072 + 4*w}")
    e(f"v_and_b32 v{vT0}, 7, v{vLANE}"); e(f"v_lshlrev_b32 v{vT0}, 8, v{vT0}")
    e(f"v_add_u32 v{vBS}, s{sT1}, v{vT0}")
    e(f"s_mov_b32 s{sEVEN}, 0x55555555"); e(f"s_mov_b32 s{sEVEN+1}, 0x55555555")
    def stg_read(vaddr, blk, tag):
        e.ds(f"ds_read_b128 v[{vSTG+8*blk}:{vSTG+8*blk+3}], v{vaddr} offset:{blk*2048}", tag)
        e.ds(f"ds_read_b128 v[{vSTG+8*blk+4}:{vSTG+8*blk+7}], v{vaddr} offset:{blk*2048+1024}", tag)
    e.lgkm = []
    for t in range(7): stg_read(vSA, t, 'sa')
    for l in zero4(vACC): e(l)
    if OPT.get('cnt'): e("s_mov_b32 s64, 0")
    e.wait_lgkm_all(); e("s_barrier")
    vsplit = OPT.get('vsplit', 0)
    own = ({0:[0,2,4,6], 1:[1,3,5], 2:[], 3:[]} if vsplit else V_OWN)[w]; others = [t for t in range(7) if t not in own]
    prefetcher = vsplit and w >= 2
    def cvt(r):
        hh, nt = tl[r]; accp = vACC + 4*(r % 3)
        return [f"v_cvt_pk_bf16_f32 v{vZB+8*nt+2*hh}, v{accp}, v{accp+1}", f"v_cvt_pk_bf16_f32 v{vZB+8*nt+2*hh+1}, v{accp+2}, v{accp+3}"]
    def uload(k):
        if OPT.get('nou'): return
        e(f"global_load_dwordx4 v[{vU+4*k}:{vU+4*k+3}], v{vUA}, s[{sUP}:{sUP+1}] offset:{k*1024-4096} {OPT.get('uflag','sc1')}")
    def zphase(tag, with_u):
        lab = f"b_{uid}_poll{tag}"
        if prefetcher:
            e("s_mov_b64 exec, 1")
            e(f"v_add_u32 v{vT0}, {56*4}, v{vBL2}")
            e(f"global_load_dword v{vT1}, v{vT0}, s[{sMEM}:{sMEM+1}] sc1")
            e("s_waitcnt vmcnt(0)")
            e(f"v_cmp_eq_u32 vcc, -1, v{vT1}")
            e("s_mov_b64 exec, -1")
            e(f"s_mov_b32 s63, 0"); e(f"s_cbranch_vccz b_{uid}_pfU")
            e(f"s_mov_b32 s63, {1 << 24}"); e(f"s_branch b_{uid}_pfUd")
            e.label(f"b_{uid}_pfU")
            for k in range(8): uload(k)
            e.label(f"b_{uid}_pfUd")
            e.lgkm = []
            e("s_barrier")
        else:
            e(f"s_cmp_le_u32 s{sSTEP}, {OPT.get('earlysteps', 1)}"); e(f"s_cbranch_scc1 b_{uid}_b57")
            bell_wait(e, vBL2, sMEM, vBR, f"b_{uid}_bell2{tag}", 57); e("s_mov_b32 s63, 0")
            e.label(f"b_{uid}_b57d")
            tr(e, 0)
            e.label(lab)
            for t in own: e(gload(vAM, t))
            tmo(e)
            e("s_waitcnt vmcnt(0)")
            for l in sentinel_tree([vAM+4*t+k for t in own for k in range(4)], vT0): e(l)
            e(f"s_cbranch_vccnz {lab}")
            e.lgkm = []
            for t in own: e.ds(f"ds_write_b128 v{vL16}, v[{vAM+4*t}:{vAM+4*t+3}] offset:{V_LMEM+t*1024}", 'mw')
            if with_u and OPT.get('upre', 1):
                e(f"s_bitcmp1_b32 s63, 24"); e(f"s_cbranch_scc1 b_{uid}_noU")
                for k in range(8): uload(k)
                e.label(f"b_{uid}_noU")
            e.wait_lgkm_all(); e("s_barrier")
        dly(e, 'v_memg')
        for t in others: e.ds(f"ds_read_b128 v[{vAM+4*t}:{vAM+4*t+3}], v{vL16} offset:{V_LMEM+t*1024}", f"am{t}")
        if with_u and not prefetcher and not OPT.get('upre', 1):
            e(f"s_bitcmp1_b32 s63, 24"); e(f"s_cbranch_scc1 b_{uid}_noU")
            for k in range(8): uload(k)
            e.label(f"b_{uid}_noU")
        order = own + others
        zlast = OPT.get('zlast', 1)
        rt = [0, 2, 3, 4, 5, 6, 7, 1] if zlast else list(range(8))
        sbq = [(t, h) for t in range(7) for h in range(2)]
        def sb_read(t, h):
            e.ds(f"ds_read_b128 v[{vSTG+8*t+4*h}:{vSTG+8*t+4*h+3}], v{vSB} offset:{t*2048 + h*1024}", f"sb{t}")
        def cvt_r(r):
            hh, nt = tl[rt[r]]; accp = vACC + 4*(r % 3)
            return [f"v_cvt_pk_bf16_f32 v{vZB+8*nt+2*hh}, v{accp}, v{accp+1}", f"v_cvt_pk_bf16_f32 v{vZB+8*nt+2*hh+1}, v{accp+2}, v{accp+3}"]
        for r in range(8):
            acc = vACC + 4*(r % 3); accn = vACC + 4*((r+1) % 3)
            fill = [None]*7
            if r + 1 < 8: fill[0], fill[1] = zero4(accn)
            if r > 0: fill[3], fill[4] = cvt_r(r-1)
            for k, t in enumerate(order if r == 0 else range(7)):
                if r == 0 and t in others: e.wait_lgkm(f"am{t}")
                if rt[r] == 0: b = ('v', vSTG+8*t)
                elif rt[r] == 1:
                    e.wait_lgkm(f"sb{t}"); b = ('v', vSTG+8*t)
                else: b = blocks[(rt[r]-2)*7+t]
                e(f"v_smfmac_f32_16x16x64_bf16 v[{acc}:{acc+3}], v[{vAM+4*t}:{vAM+4*t+3}], {reg(b,8)}, v{vIDX}")
                if not zlast:
                    if r == 0: stg_read(vSB, t, f"sb{t}")
                    if fill[k]: e(fill[k])
                else:
                    if fill[k]: e(fill[k])
                    elif r >= 1 and sbq: sb_read(*sbq.pop(0))
        assert not zlast or not sbq
        e.nop(4)
        for k in range(4): e(f"v_mov_b64 v[{vO+2*k}:{vO+2*k+1}], 0")
        for l in cvt_r(7): e(l)
        if with_u:
            e(f"s_bitcmp1_b32 s63, 24"); e(f"s_cbranch_scc1 b_{uid}_lateU")
            e.label(f"b_{uid}_Uok")
    e.label(f"b_{uid}_step")
    zphase("", True)
    tr(e, 1)
    dly(e, 'v_zdone')
    if OPT.get('sleep_v'): e(f"s_sleep {OPT['sleep_v']}")
    if OPT.get('onepoll1', 0):
        if w == 0: bell_wait(e, vBL1, sP, vBR, f"b_{uid}_bell1", 16)
        e("s_barrier")
    else:
        bell_wait(e, vBL1, sP, vBR, f"b_{uid}_bell1", 4)
    tr(e, 2)
    lab = f"b_{uid}_pollp"
    e.label(lab)
    e(f"global_load_dwordx4 v[{vP+8}:{vP+11}], v{vPMA}, s[{sP}:{sP+1}] sc1")
    e(f"global_load_dwordx4 v[{vP}:{vP+3}], v{vPA}, s[{sP}:{sP+1}] sc1")
    e(f"global_load_dwordx4 v[{vP+4}:{vP+7}], v{vPA}, s[{sP}:{sP+1}] offset:1024 sc1")
    tmo(e)
    smf2 = lambda nt, a_, b_: f"v_smfmac_f32_16x16x64_bf16 v[{vO+4*nt}:{vO+4*nt+3}], v[{a_}:{a_+3}], v[{b_}:{b_+7}], v{vIDX}"
    if OPT.get('prog', 1):
        e("s_waitcnt vmcnt(2)")
        e(smf2(0, vP+8, vZB)); e(f"v_max3_u32 v{vT0}, v{vP+8}, v{vP+9}, v{vP+10}")
        e(smf2(1, vP+8, vZB+8))
        e("s_waitcnt vmcnt(1)")
        e(smf2(0, vP, vU)); e(f"v_max3_u32 v{vT0}, v{vT0}, v{vP+11}, v{vP}")
        e(smf2(1, vP, vU+8)); e(f"v_max3_u32 v{vT0}, v{vT0}, v{vP+1}, v{vP+2}")
        e("s_waitcnt vmcnt(0)")
        e(smf2(0, vP+4, vU+16)); e(f"v_max3_u32 v{vT0}, v{vT0}, v{vP+3}, v{vP+4}")
        e(smf2(1, vP+4, vU+24)); e(f"v_max3_u32 v{vT0}, v{vT0}, v{vP+5}, v{vP+6}")
        e(f"v_max_u32 v{vT0}, v{vT0}, v{vP+7}")
        e(f"v_cmp_eq_u32 vcc, -1, v{vT0}")
        if not OPT.get('defer', 1): e(f"s_cbranch_vccnz {lab}_retry")
        tr(e, 3)
        dly(e, 'v_pg')
        e.nop(3 if not OPT.get('defer', 1) else 4)
        e(f"ds_write_b128 v{vRW}, v[{vO}:{vO+3}]")
        e.nop(1)
        e(f"ds_write_b128 v{vRW}, v[{vO+4}:{vO+7}] offset:1024")
        if OPT.get('defer', 1): e(f"s_cbranch_vccnz {lab}_retry")
    else:
        e("s_waitcnt vmcnt(0)")
        chk = sentinel_tree(list(range(vP, vP+12)), vT0)
        ms = [smf2(0, vP+8, vZB), smf2(0, vP, vU), smf2(0, vP+4, vU+16), smf2(1, vP+8, vZB+8), smf2(1, vP, vU+8), smf2(1, vP+4, vU+24)]
        ci = 0
        for m_ in ms:
            e(m_)
            if ci < len(chk): e(chk[ci]); ci += 1
        while ci < len(chk): e(chk[ci]); ci += 1
        e(f"s_cbranch_vccnz {lab}_retry")
        e.nop(2)
        e(f"ds_write_b128 v{vRW}, v[{vO}:{vO+3}]")
        e.nop(4)
        e(f"ds_write_b128 v{vRW}, v[{vO+4}:{vO+7}] offset:1024")
    def ring2():
        e("s_mov_b64 exec, 0xff")
        e(f"global_store_dword v{vBS}, v{vLANE}, s[{sMEM}:{sMEM+1}]")
        e("s_mov_b64 exec, -1")
    r2 = OPT.get('ring2', 1)
    if r2 == 0: ring2()
    e("s_waitcnt lgkmcnt(0)")
    if r2 == 3: ring2()
    e("s_barrier")
    tr(e, 4)
    if r2 == 1: ring2()
    for ww in range(4): e(f"ds_read2st64_b32 v[{vR+2*ww}:{vR+2*ww+1}], v{vRR} offset0:{ww*8} offset1:{ww*8+2}")
    if r2 == 4: ring2()
    e("s_waitcnt lgkmcnt(0)")
    if r2 == 5: ring2()
    e(f"v_pk_add_f32 v[{vR}:{vR+1}], v[{vR}:{vR+1}], v[{vR+2}:{vR+3}]")
    e(f"v_pk_add_f32 v[{vR+4}:{vR+5}], v[{vR+4}:{vR+5}], v[{vR+6}:{vR+7}]")
    e(f"v_pk_add_f32 v[{vR}:{vR+1}], v[{vR}:{vR+1}], v[{vR+4}:{vR+5}]")
    e(f"v_add_f32 v{vR}, v{vR}, v{vR+1}")
    if OPT.get('short', 0):
        e(f"v_cvt_pk_bf16_f32 v{vR+2}, v{vR}, v{vR}")
        e(f"global_store_short v{vMS}, v{vR+2}, s[{sMEM}:{sMEM+1}]")
    else:
        e.nop(2)
        e(f"v_mov_b32_dpp v{vR+1}, v{vR} quad_perm:[1,0,3,2] row_mask:0xf bank_mask:0xf")
        e(f"v_cvt_pk_bf16_f32 v{vR+2}, v{vR}, v{vR+1}")
        e(f"s_mov_b64 exec, s[{sEVEN}:{sEVEN+1}]")
        e(f"global_store_dword v{vMS}, v{vR+2}, s[{sMEM}:{sMEM+1}]")
        e("s_mov_b64 exec, -1")
    e(f"s_cmp_lg_u32 s{sSTEP}, {NSTEP-1}"); e(f"s_cbranch_scc1 b_{uid}_nolast")
    if OPT.get('short', 0): raise Exception("short not supported with direct publication")
    e(f"s_mov_b64 exec, s[{sEVEN}:{sEVEN+1}]")
    e(f"global_store_dword v{vMI}, v{vR+2}, s[{sMXI}:{sMXI+1}] sc1")
    e(f"global_store_dword v{vMX}, v{vR+2}, s[{sMX}:{sMX+1}] sc1")
    e("s_mov_b64 exec, -1")
    e.label(f"b_{uid}_nolast")
    tr(e, 5)
    e.lgkm = []
    for t in range(7): stg_read(vSA, t, 'sa')
    for l in zero4(vACC): e(l)
    adv(e, sMEM, MEM_STRIDE); adv(e, sP, P_STRIDE); adv(e, sUP, U_SEG)
    e(f"s_add_u32 s{sSTEP}, s{sSTEP}, 1")
    e(f"s_cmp_lt_u32 s{sSTEP}, {NSTEP}")
    e.wait_lgkm_all()
    e(f"s_cbranch_scc1 b_{uid}_step")
    if w == 0: dstamp(e, 11, 16, (174,175))
    if OPT.get('cnt'): dstamp(e, 40+w, 20, (174,175), sreg=64)
    tr_dump(e, (8, 9))
    e("s_endpgm")
    if not prefetcher:
        e.label(f"b_{uid}_b57")
        bell_wait57(e, vBL2, sMEM, vBR, f"b_{uid}_bell2x", 62)
        e(f"s_branch b_{uid}_b57d")
    e.label(f"b_{uid}_lateU")
    e("s_mov_b64 exec, 1")
    e(f"v_add_u32 v{vT0}, {56*4}, v{vBL2}")
    e.label(f"b_{uid}_lateU1")
    e(f"global_load_dword v{vT1}, v{vT0}, s[{sMEM}:{sMEM+1}] sc1")
    tmo(e)
    e("s_waitcnt vmcnt(0)")
    e(f"v_cmp_eq_u32 vcc, -1, v{vT1}")
    e(f"s_cbranch_vccnz b_{uid}_lateU1")
    e("s_mov_b64 exec, -1")
    for k in range(8):
        e(f"global_load_dwordx4 v[{vU+4*k}:{vU+4*k+3}], v{vUA}, s[{sUP}:{sUP+1}] offset:{k*1024-4096} sc1")
    e(f"s_branch b_{uid}_Uok")
    e.label(f"{lab}_retry")
    if OPT.get('cnt'): e("s_add_u32 s64, s64, 1")
    e.nop(8)
    for k in range(4): e(f"v_mov_b64 v[{vO+2*k}:{vO+2*k+1}], 0")
    e(f"s_branch {lab}")

NJ = 3; NJU = 3; NJZ = 2
XB0, XB1 = 0, XSEG
W_RED = 2*XSEG
W_MEMR = W_RED + 24576
def worker_common_setup(e, which):
    e(f"s_and_b32 s{sH}, s{sROLE}, 15"); e(f"s_lshr_b32 s{sJ}, s{sROLE}, 4")
    e(f"s_mul_i32 s{sT0}, s{sH}, {HEAD_IMG}")
    e(f"s_add_u32 s{sT0}, s{sT0}, {which*16*HEAD_IMG}")
    e(f"s_mul_i32 s{sT1}, s{sWAVE}, {7*TILE}")
    e(f"s_add_u32 s{sT0}, s{sT0}, s{sT1}")
    e(f"s_add_u32 s{sW}, s{sW}, s{sT0}"); e(f"s_addc_u32 s{sW+1}, s{sW+1}, 0")
def dma_xa(e, vsrc):
    e(f"s_mul_i32 s{sT0}, s{sT3}, {XSEG}")
    e(f"s_mul_i32 s{sT1}, s{sWAVE}, 7168")
    e(f"s_add_u32 s{sT0}, s{sT0}, s{sT1}")
    e(f"v_add_u32 v{vsrc}, s{sT0}, v{vL16}")
    e(f"s_add_u32 s{sT1}, s{sT1}, s{sT4}")
    for k in range(7):
        e(f"s_add_u32 m0, s{sT1}, {k*1024}")
        e("s_nop 0")
        e(f"global_load_lds_dwordx4 v{vsrc}, s[{sXP}:{sXP+1}] sc1")
        e(f"v_add_u32 v{vsrc}, 1024, v{vsrc}")
def gemm_main(e, blocks, acc, vXB, ring, swap):
    e.lgkm = []
    steps = [(u, kt) for u in range(14) for kt in range(2)]
    NR = len(ring)
    def rd(n):
        u, kt = steps[n]; r = ring[n % NR]
        e.ds(f"ds_read_b128 v[{r}:{r+3}], v{vXB} offset:{kt*14336 + u*1024}", f"x{n}")
    for n in range(NR): rd(n)
    for n, (u, kt) in enumerate(steps):
        e.wait_lgkm(f"x{n}")
        r = ring[n % NR]
        for i in range(7):
            b = blocks[i*7 + (u >> 1)]; wv = reg((b[0], b[1] + 4*(u & 1)), 4)
            a = acc(kt, i); c = "0" if u == 0 else f"v[{a}:{a+3}]"
            if swap: e(f"v_mfma_f32_16x16x32_bf16 v[{a}:{a+3}], {wv}, v[{r}:{r+3}], {c}")
            else:    e(f"v_mfma_f32_16x16x32_bf16 v[{a}:{a+3}], v[{r}:{r+3}], {wv}, {c}")
        if n + NR < len(steps): rd(n + NR)

def seg_loop_head(e, uid, vsrc):
    e(f"s_mov_b32 s{sSEG}, s{sJ}"); e(f"s_mov_b32 s{sBUF}, 0")
    e(f"s_mov_b32 s{sT3}, s{sSEG}"); e(f"s_mov_b32 s{sT4}, 0")
    dma_xa(e, vsrc)
    e.label(f"b_{uid}_seg")
    e("s_waitcnt vmcnt(0)"); e("s_barrier")
    e(f"s_add_u32 s{sT3}, s{sSEG}, {NJ}"); e(f"s_cmp_ge_u32 s{sT3}, 64"); e(f"s_cbranch_scc1 b_{uid}_nopf")
    e(f"s_xor_b32 s{sT4}, s{sBUF}, {XSEG}")
    dma_xa(e, vsrc)
    e.label(f"b_{uid}_nopf")
def seg_loop_tail(e, uid):
    e(f"s_add_u32 s{sSEG}, s{sSEG}, {NJ}"); e(f"s_xor_b32 s{sBUF}, s{sBUF}, {XSEG}")
    e(f"s_cmp_lt_u32 s{sSEG}, 64"); e(f"s_cbranch_scc1 b_{uid}_seg")

def signal_u(e, sseg, vA, vB_):
    e(f"s_lshl_b32 s{sT0}, s{sseg}, 2"); e(f"s_add_u32 s{sT0}, s{sT0}, {C_URDY}")
    signal_add(e, sT0, vA, vB_)
    e(f"s_lshl_b32 s{sT0}, s{sseg}, 7"); e(f"s_add_u32 s{sT0}, s{sT0}, {C_RDY2}")
    signal_add(e, sT0, vA, vB_)
def signal_add(e, soff, vA, vB_):
    signal_add.n += 1
    e(f"s_cmp_lg_u32 s{sWAVE}, 0"); e(f"s_cbranch_scc1 .Lsig{signal_add.n}")
    e(f"v_mov_b32 v{vA}, s{soff}"); e(f"v_mov_b32 v{vB_}, 1")
    e("s_mov_b64 exec, 1")
    e(f"global_atomic_add v{vA}, v{vB_}, s[{sCN}:{sCN+1}] sc1")
    e("s_mov_b64 exec, -1")
    e.label(f".Lsig{signal_add.n}")
signal_add.n = 0
def poll_sleep(e, sleep, fast, lab):
    if fast is not None:
        e(f"s_cmp_ge_u32 s{fast[0]}, {fast[1]}"); e(f"s_cbranch_scc1 {lab}")
    e(f"s_sleep {sleep}"); e(f"s_branch {lab}")
def wait_counter(e, soff, target, vA, vB_, lab, sleep=8, fast=None):
    e(f"s_cmp_lg_u32 s{sWAVE}, 0"); e(f"s_cbranch_scc1 {lab}_ok")
    e(f"v_mov_b32 v{vA}, s{soff}")
    e("s_mov_b64 exec, 1")
    e.label(lab)
    e(f"global_load_dword v{vB_}, v{vA}, s[{sCN}:{sCN+1}] sc1")
    tmo(e)
    e("s_waitcnt vmcnt(0)")
    e(f"v_cmp_ne_u32 vcc, {target}, v{vB_}")
    e(f"s_cbranch_vccz {lab}_got")
    poll_sleep(e, sleep, fast, lab)
    e.label(f"{lab}_got")
    e("s_mov_b64 exec, -1")
    e.label(f"{lab}_ok")
    e("s_barrier")

def wait_xall_wave(e, vA, vB_, lab, off=None, target=64):
    e(f"v_mov_b32 v{vA}, {C_XALL if off is None else off}")
    e("s_mov_b64 exec, 1")
    e.label(lab)
    e(f"global_load_dword v{vB_}, v{vA}, s[{sCN}:{sCN+1}] sc1")
    tmo(e)
    e("s_waitcnt vmcnt(0)")
    e(f"v_cmp_ne_u32 vcc, {target}, v{vB_}")
    e(f"s_cbranch_vccz {lab}_got")
    e("s_sleep 4"); e(f"s_branch {lab}")
    e.label(f"{lab}_got")
    e("s_mov_b64 exec, -1")

def wait_word(e, sbase, soff, vA, vB_, lab, sleep, fast=None):
    e(f"s_cmp_lg_u32 s{sWAVE}, 0"); e(f"s_cbranch_scc1 {lab}_ok")
    e(f"v_mov_b32 v{vA}, s{soff}")
    e("s_mov_b64 exec, 1")
    e.label(lab)
    e(f"global_load_dword v{vB_}, v{vA}, s[{sbase}:{sbase+1}] sc1")
    tmo(e)
    e("s_waitcnt vmcnt(0)")
    e(f"v_cmp_eq_u32 vcc, -1, v{vB_}")
    e(f"s_cbranch_vccz {lab}_got")
    poll_sleep(e, sleep, fast, lab)
    e.label(f"{lab}_got")
    e("s_mov_b64 exec, -1")
    e.label(f"{lab}_ok")
    e("s_barrier")

def u_worker(e):
    uid = "uw"
    worker_common_setup(e, 1)
    blocks = blocks_regs(32, 120, 17)
    load_weights(e, blocks, [i*TILE for i in range(7)], 4)
    dstamp(e, 12, 0, (116,117))
    wstamp(e, 0, (116,117))
    e(f"s_lshl_b32 s{sT0}, s{sJ}, 7"); e(f"s_add_u32 s{sT0}, s{sT0}, {C_XRDY}")
    wait_counter(e, sT0, 2, 4, 5, "b_uw_x0", 2)
    wstamp(e, 1, (116,117))
    vSRC, vXB, vUA = 4, 5, 6
    ACC = 8
    acc = lambda kt, i: ACC + (kt*7+i)*4
    ring = [64, 68, 72, 76]; vO = 80
    e(f"s_mov_b32 s{sPREV}, 255")
    e(f"s_mov_b32 s{sSEG}, s{sJ}"); e(f"s_mov_b32 s{sBUF}, 0")
    e(f"s_mov_b32 s{sT3}, s{sSEG}"); e(f"s_mov_b32 s{sT4}, 0")
    dma_xa(e, vSRC)
    e("s_waitcnt vmcnt(0)")
    e.label(f"b_{uid}_seg")
    e("s_barrier")
    e(f"s_add_u32 s{sT3}, s{sSEG}, {NJU}"); e(f"s_cmp_ge_u32 s{sT3}, 64"); e(f"s_cbranch_scc1 b_{uid}_nopf")
    e(f"s_cmp_lt_u32 s{sSEG}, {NJU}"); e(f"s_cbranch_scc1 b_{uid}_nopf")
    e(f"s_cmp_ge_u32 s{sSEG}, {3*NJU}"); e(f"s_cbranch_scc1 b_{uid}_xok")
    e(f"s_lshl_b32 s{sT0}, s{sT3}, 7"); e(f"s_add_u32 s{sT0}, s{sT0}, {C_XRDY}")
    wait_counter(e, sT0, 2, 4, 5, "b_uw_x1", 2)
    e(f"s_branch b_{uid}_xok2")
    e.label(f"b_{uid}_xok")
    e(f"s_cmp_ge_u32 s{sSEG}, {4*NJU}"); e(f"s_cbranch_scc1 b_{uid}_xok2")
    e(f"s_mov_b32 s{sT0}, {C_XALL}"); wait_counter(e, sT0, 64, 4, 5, "b_uw_x2", 8)
    e.label(f"b_{uid}_xok2")
    e(f"s_xor_b32 s{sT4}, s{sBUF}, {XSEG}")
    dma_xa(e, vSRC)
    e.label(f"b_{uid}_nopf")
    e(f"v_add_u32 v{vXB}, s{sBUF}, v{vL16}")
    gemm_main(e, blocks, acc, vXB, ring, False)
    e("s_waitcnt vmcnt(0)"); e("s_barrier")
    e(f"s_cmp_eq_u32 s{sPREV}, 255"); e(f"s_cbranch_scc1 b_{uid}_nosig")
    signal_u(e, sPREV, 80, 81)
    e.label(f"b_{uid}_nosig")
    e(f"s_mul_i32 s{sT0}, s{sSEG}, {U_SEG}")
    e(f"s_lshr_b32 s{sT1}, s{sH}, 1"); e(f"s_lshl_b32 s{sT1}, s{sT1}, 12"); e(f"s_add_u32 s{sT0}, s{sT0}, s{sT1}")
    e(f"s_and_b32 s{sT1}, s{sH}, 1"); e(f"s_lshl_b32 s{sT1}, s{sT1}, 10"); e(f"s_add_u32 s{sT0}, s{sT0}, s{sT1}")
    e(f"s_mul_i32 s{sT2}, s{sWAVE}, 7")
    for i in range(7):
        e(f"s_add_u32 s{sT1}, s{sT2}, {i}")
        e(f"s_lshr_b32 s{sT3}, s{sT1}, 1"); e(f"s_lshl_b32 s{sT3}, s{sT3}, 15")
        e(f"s_and_b32 s{sT1}, s{sT1}, 1"); e(f"s_lshl_b32 s{sT1}, s{sT1}, 11")
        e(f"s_add_u32 s{sT3}, s{sT3}, s{sT1}"); e(f"s_add_u32 s{sT3}, s{sT3}, s{sT0}")
        e(f"v_add_u32 v{vUA}, s{sT3}, v{vL16}")
        o = vO + 4*(i % 2)
        a0, a1 = acc(0,i), acc(1,i)
        e(f"v_cvt_pk_bf16_f32 v{o}, v{a0}, v{a0+1}"); e(f"v_cvt_pk_bf16_f32 v{o+1}, v{a0+2}, v{a0+3}")
        e(f"v_cvt_pk_bf16_f32 v{o+2}, v{a1}, v{a1+1}"); e(f"v_cvt_pk_bf16_f32 v{o+3}, v{a1+2}, v{a1+3}")
        e(f"global_store_dwordx4 v{vUA}, v[{o}:{o+3}], s[{sUP}:{sUP+1}] sc1")
    e(f"s_mov_b32 s{sPREV}, s{sSEG}")
    e(f"s_cmp_ge_u32 s{sSEG}, {2*NJU}"); e(f"s_cbranch_scc1 b_{uid}_lazy")
    e("s_waitcnt vmcnt(0)"); e("s_barrier")
    signal_u(e, sPREV, 80, 81)
    e(f"s_mov_b32 s{sPREV}, 255")
    e(f"s_cmp_ge_u32 s{sSEG}, {NJU}"); e(f"s_cbranch_scc1 b_{uid}_lazy")
    e(f"s_add_u32 s{sT3}, s{sSEG}, {NJU}")
    e(f"s_lshl_b32 s{sT0}, s{sT3}, 7"); e(f"s_add_u32 s{sT0}, s{sT0}, {C_XRDY}")
    wait_counter(e, sT0, 2, 4, 5, "b_uw_x3", 2)
    e(f"s_add_u32 s{sT3}, s{sSEG}, {NJU}"); e(f"s_xor_b32 s{sT4}, s{sBUF}, {XSEG}")
    dma_xa(e, vSRC)
    e("s_waitcnt vmcnt(0)")
    e.label(f"b_{uid}_lazy")
    if DIAG[0]:
        e(f"s_mov_b32 s{sSTEP}, s{sSEG}"); dstamp(e, 13, 0, (116,117), step=0)
        e(f"s_cmp_ge_u32 s{sSEG}, {NJU}"); e("s_cbranch_scc1 .Lws2"); wstamp(e, 2, (116,117)); e.label(".Lws2")
    e(f"s_add_u32 s{sSEG}, s{sSEG}, {NJU}"); e(f"s_xor_b32 s{sBUF}, s{sBUF}, {XSEG}")
    e(f"s_cmp_lt_u32 s{sSEG}, 64"); e(f"s_cbranch_scc1 b_{uid}_seg")
    e("s_waitcnt vmcnt(0)"); e("s_barrier")
    e(f"s_cmp_eq_u32 s{sPREV}, 255"); e(f"s_cbranch_scc1 b_{uid}_fin")
    signal_u(e, sPREV, 80, 81)
    e.label(f"b_{uid}_fin")
    dstamp(e, 14, 0, (116,117))
    e("s_endpgm")

def z_worker(e):
    worker_common_setup(e, 1)
    blocks = blocks_regs(32, 120, 17)
    e(f"s_mov_b32 s{sT0}, {C_XALL}"); wait_counter(e, sT0, 64, 4, 5, "b_zw_xall", 8)
    load_weights(e, blocks, [i*TILE for i in range(7)], 4)
    vIDX_, am = vIDX, 12
    ACC = 40
    vZA, vT = 4, 5
    e(f"s_mov_b32 s{sSEG}, s{sJ}")
    e.label("b_zw_seg")
    e(f"s_mul_i32 s{sT0}, s{sSEG}, {W.MEMX_STRIDE}")
    e(f"s_add_u32 s{sT1}, s{sT0}, 7164")
    wait_word(e, sMXI, sT1, 6, 7, "b_zw_pre", OPT.get('zsleep', 8), fast=(sSEG, 61))
    e(f"v_add_u32 v{vT}, s{sT0}, v{vL16}"); e(f"v_add_u32 v6, 4096, v{vT}")
    e.label("b_zw_poll")
    for t in range(7):
        if t < 4: e(f"global_load_dwordx4 v[{am+4*t}:{am+4*t+3}], v{vT}, s[{sMXI}:{sMXI+1}] offset:{t*1024} sc1")
        else:     e(f"global_load_dwordx4 v[{am+4*t}:{am+4*t+3}], v6, s[{sMXI}:{sMXI+1}] offset:{(t-4)*1024} sc1")
    tmo(e)
    for i in range(7):
        for l in zero4(ACC+4*i): e(l)
    e("s_waitcnt vmcnt(0)")
    for l in sentinel_tree([am+k for k in range(28)], 7): e(l)
    e("s_cbranch_vccz b_zw_ok")
    e("s_sleep 2"); e("s_branch b_zw_poll")
    e.label("b_zw_ok")
    for t in range(7):
        for i in range(7):
            e(f"v_smfmac_f32_16x16x64_bf16 v[{ACC+4*i}:{ACC+4*i+3}], v[{am+4*t}:{am+4*t+3}], {reg(blocks[i*7+t],8)}, v{vIDX_}")
    e(f"s_mul_i32 s{sT0}, s{sSEG}, {W.ZM_SEG}")
    e(f"s_lshr_b32 s{sT1}, s{sH}, 2"); e(f"s_lshl_b32 s{sT1}, s{sT1}, 12"); e(f"s_add_u32 s{sT0}, s{sT0}, s{sT1}")
    e(f"s_lshr_b32 s{sT1}, s{sH}, 1"); e(f"s_and_b32 s{sT1}, s{sT1}, 1"); e(f"s_lshl_b32 s{sT1}, s{sT1}, 10"); e(f"s_add_u32 s{sT0}, s{sT0}, s{sT1}")
    e(f"s_and_b32 s{sT1}, s{sH}, 1"); e(f"s_lshl_b32 s{sT1}, s{sT1}, 3"); e(f"s_add_u32 s{sT0}, s{sT0}, s{sT1}")
    e(f"s_mul_i32 s{sT2}, s{sWAVE}, 7")
    e.nop(2)
    for i in range(7):
        e(f"s_add_u32 s{sT1}, s{sT2}, {i}")
        e(f"s_lshr_b32 s{sT3}, s{sT1}, 1"); e(f"s_lshl_b32 s{sT3}, s{sT3}, 14")
        e(f"s_and_b32 s{sT1}, s{sT1}, 1"); e(f"s_lshl_b32 s{sT1}, s{sT1}, 11")
        e(f"s_add_u32 s{sT3}, s{sT3}, s{sT1}"); e(f"s_add_u32 s{sT3}, s{sT3}, s{sT0}")
        e(f"v_add_u32 v{vZA}, s{sT3}, v{vL16}")
        a = ACC+4*i; o = 8 + 2*(i % 2)
        e(f"v_cvt_pk_bf16_f32 v{o}, v{a}, v{a+1}"); e(f"v_cvt_pk_bf16_f32 v{o+1}, v{a+2}, v{a+3}")
        e(f"global_store_dwordx2 v{vZA}, v[{o}:{o+1}], s[{sZM}:{sZM+1}] sc1")
    e("s_waitcnt vmcnt(0)"); e("s_barrier")
    e(f"s_lshl_b32 s{sT0}, s{sSEG}, 7"); e(f"s_add_u32 s{sT0}, s{sT0}, {C_RDY2}")
    signal_add(e, sT0, 80, 81)
    e(f"s_add_u32 s{sSEG}, s{sSEG}, {NJZ}"); e(f"s_cmp_lt_u32 s{sSEG}, 64"); e("s_cbranch_scc1 b_zw_seg")
    e("s_endpgm")

def pv_loop(e):
    vA, vB_, vT, vRes = 4, 5, 6, 8
    PX, PM, UU, ZZ, ACC = 16, 48, 64, 96, 112
    vRW, vRR, vXO, vOUTA = 128, 129, 130, 131
    sTASK, sC = sPREV, sJ
    e(f"s_mov_b32 s{sTASK}, s{sROLE}")
    e(f"s_lshl_b32 s{sT0}, s{sWAVE}, 12"); e(f"v_add_u32 v{vRW}, s{sT0}, v{vL16}")
    e("v_lshrrev_b32 v10, 3, v0"); e("v_and_b32 v11, 7, v0")
    e("v_lshrrev_b32 v12, 4, v10"); e("v_lshlrev_b32 v12, 11, v12")
    e("v_lshrrev_b32 v13, 2, v11"); e("v_lshl_add_u32 v12, v13, 10, v12")
    e("v_and_b32 v13, 15, v10"); e("v_lshrrev_b32 v13, 2, v13"); e("v_lshl_add_u32 v12, v13, 8, v12")
    e("v_and_b32 v13, 3, v11"); e("v_lshl_add_u32 v12, v13, 6, v12")
    e("v_and_b32 v13, 3, v10"); e(f"v_lshl_add_u32 v{vRR}, v13, 2, v12")
    e(f"v_mul_u32_u24 v{vXO}, 896, v10"); e(f"v_lshl_add_u32 v{vXO}, v11, 3, v{vXO}")
    e.label("b_pv_task")
    e(f"s_mul_hi_u32 s{sSEG}, s{sTASK}, {(2**32+13)//14}")
    e(f"s_mul_i32 s{sT0}, s{sSEG}, 14"); e(f"s_sub_u32 s{sC}, s{sTASK}, s{sT0}")
    e(f"s_lshl_b32 s{sT0}, s{sSEG}, 2"); e(f"s_add_u32 s{sT0}, s{sT0}, {C_URDY}")
    wait_counter(e, sT0, 16, vA, vB_, "b_pv_wu", 10)
    e(f"s_mul_i32 s{sT0}, s{sSEG}, {U_SEG}"); e(f"s_lshl_b32 s{sT1}, s{sC}, 15"); e(f"s_add_u32 s{sT0}, s{sT0}, s{sT1}")
    e(f"s_lshl_b32 s{sT1}, s{sWAVE}, 13"); e(f"s_add_u32 s{sT0}, s{sT0}, s{sT1}")
    e(f"v_add_u32 v{vT}, s{sT0}, v{vL16}")
    for k in range(8):
        e(f"global_load_dwordx4 v[{UU+4*k}:{UU+4*k+3}], v{vT}, s[{sUP}:{sUP+1}] offset:{(k%4)*1024} sc1")
        if k == 3: e(f"v_add_u32 v{vT}, 4096, v{vT}")
    e(f"s_mul_i32 s{sT0}, s{sSEG}, {32*896}"); e(f"s_lshl_b32 s{sT1}, s{sC}, 6"); e(f"s_add_u32 s{sT0}, s{sT0}, s{sT1}")
    e(f"v_add_u32 v{vOUTA}, s{sT0}, v{vXO}")
    e(f"global_load_dwordx2 v[{vRes}:{vRes+1}], v{vOUTA}, s[{sRES}:{sRES+1}] sc1")
    e(f"s_lshl_b32 s{sT0}, s{sSEG}, 7"); e(f"s_add_u32 s{sT0}, s{sT0}, {C_RDY2}")
    wait_counter(e, sT0, 48, vA, vB_, "b_pv_wp", OPT.get('pvsleep', 10), fast=(sSEG, 61))
    e(f"s_mul_i32 s{sT0}, s{sSEG}, {W.PX_SEG}"); e(f"s_lshl_b32 s{sT1}, s{sWAVE}, 13"); e(f"s_add_u32 s{sT1}, s{sT1}, s{sT0}")
    e(f"v_add_u32 v{vT}, s{sT1}, v{vL16}")
    for k in range(8):
        e(f"global_load_dwordx4 v[{PX+4*k}:{PX+4*k+3}], v{vT}, s[{sPX}:{sPX+1}] offset:{(k%4)*1024} sc1")
        if k == 3: e(f"v_add_u32 v{vT}, 4096, v{vT}")
    e(f"s_lshl_b32 s{sT1}, s{sWAVE}, 12"); e(f"s_add_u32 s{sT1}, s{sT1}, s{sT0}"); e(f"s_add_u32 s{sT1}, s{sT1}, 32768")
    e(f"v_add_u32 v{vT}, s{sT1}, v{vL16}")
    for k in range(4): e(f"global_load_dwordx4 v[{PM+4*k}:{PM+4*k+3}], v{vT}, s[{sPX}:{sPX+1}] offset:{k*1024} sc1")
    e(f"s_mul_i32 s{sT0}, s{sSEG}, {W.ZM_SEG}"); e(f"s_lshl_b32 s{sT1}, s{sC}, 14"); e(f"s_add_u32 s{sT0}, s{sT0}, s{sT1}")
    e(f"s_lshl_b32 s{sT1}, s{sWAVE}, 12"); e(f"s_add_u32 s{sT0}, s{sT0}, s{sT1}")
    e(f"v_add_u32 v{vT}, s{sT0}, v{vL16}")
    for k in range(4): e(f"global_load_dwordx4 v[{ZZ+4*k}:{ZZ+4*k+3}], v{vT}, s[{sZM}:{sZM+1}] offset:{k*1024} sc1")
    e("s_waitcnt vmcnt(0)")
    for qt in range(2):
        for nt in range(2):
            a = ACC + 4*(2*qt+nt); first = True
            for hh in range(4):
                kp, b = hh >> 1, hh & 1
                c = "0" if first else f"v[{a}:{a+3}]"; first = False
                e(f"v_mfma_f32_16x16x32_bf16 v[{a}:{a+3}], v[{PX+4*(2*hh+qt)}:{PX+4*(2*hh+qt)+3}], v[{UU+4*(4*kp+2*nt+b)}:{UU+4*(4*kp+2*nt+b)+3}], {c}")
            for pp in range(2):
                e(f"v_mfma_f32_16x16x32_bf16 v[{a}:{a+3}], v[{PM+4*(2*pp+qt)}:{PM+4*(2*pp+qt)+3}], v[{ZZ+4*(2*nt+pp)}:{ZZ+4*(2*nt+pp)+3}], v[{a}:{a+3}]")
    e.nop(8)
    for k in range(4): e(f"ds_write_b128 v{vRW}, v[{ACC+4*k}:{ACC+4*k+3}] offset:{k*1024}")
    e("s_waitcnt lgkmcnt(0)"); e("s_barrier")
    for ww in range(4):
        for k in range(4): e(f"ds_read_b32 v{16+4*ww+k}, v{vRR} offset:{ww*4096 + k*16}")
    e("s_waitcnt lgkmcnt(0)")
    for k in range(4):
        e(f"v_add_f32 v{16+k}, v{16+k}, v{20+k}"); e(f"v_add_f32 v{24+k}, v{24+k}, v{28+k}"); e(f"v_add_f32 v{16+k}, v{16+k}, v{24+k}")
    for h2 in range(2):
        e(f"v_cvt_pk_bf16_f32 v32, v{16+2*h2}, v{17+2*h2}")
        e("v_lshlrev_b32 v33, 16, v32"); e("v_and_b32 v34, 0xffff0000, v32")
        e(f"v_lshlrev_b32 v35, 16, v{vRes+h2}"); e(f"v_and_b32 v36, 0xffff0000, v{vRes+h2}")
        e("v_add_f32 v33, v33, v35"); e("v_add_f32 v34, v34, v36")
        e(f"v_cvt_pk_bf16_f32 v{38+h2}, v33, v34")
    e(f"global_store_dwordx2 v{vOUTA}, v[38:39], s[{sOUT}:{sOUT+1}]")
    e(f"s_add_u32 s{sTASK}, s{sTASK}, 64"); e(f"s_cmp_lt_u32 s{sTASK}, 896"); e("s_cbranch_scc1 b_pv_task")
    dstamp(e, 15, 0, (116,117)); dstamp(e, 18, 63, (116,117)); dstamp(e, 19, 50, (116,117))
    e("s_endpgm")

def fcpv_worker(e):
    smap = {2: sROLE, 3: sWAVE}
    for k in range(6, 24): smap[k] = 70 + k
    k_fft.fc_body(e, smap, "sc1")
    e("s_waitcnt vmcnt(0)"); e("s_barrier")
    for p in range(2):
        e(f"s_lshr_b32 s{sT0}, s{sROLE}, 2"); e(f"s_lshl_b32 s{sT0}, s{sT0}, 2"); e(f"s_lshr_b32 s{sT1}, s{sROLE}, 1"); e(f"s_and_b32 s{sT1}, s{sT1}, 1")
        e(f"s_add_u32 s{sT0}, s{sT0}, s{sT1}"); e(f"s_add_u32 s{sT0}, s{sT0}, {2*p}")
        e(f"s_lshl_b32 s{sT0}, s{sT0}, 7"); e(f"s_add_u32 s{sT0}, s{sT0}, {C_XRDY}")
        signal_add(e, sT0, 4, 5)
    e(f"s_mov_b32 s{sT0}, {C_XALL}"); signal_add(e, sT0, 4, 5)
    dstamp(e, 20, 0, (116,117)); wstamp(e, 3, (116,117))
    e(f"v_lshlrev_b32 v{vL16}, 4, v{vLANE}")
    pv_loop(e)

def p_worker(e):
    if OPT.get('nopw'): e("s_endpgm")
    uid = "pw"
    worker_common_setup(e, 0)
    blocks = blocks_regs(32, 120, 17)
    e(f"s_mov_b32 s{sT0}, {C_XALL}"); wait_counter(e, sT0, 64, 4, 5, "b_pw_xall", 8)
    load_weights(e, blocks, [i*TILE for i in range(7)], 4)
    dstamp(e, 16, 0, (116,117))
    vSRC, vXB, vKA, vMA = 4, 5, 6, 7
    ACC = 8
    acc = lambda qt, i: ACC + (qt*7+i)*4
    ring = [64, 68, 72, 76]
    RB = 80
    SA = 64
    vT = 112; vT2 = 113; vT3 = 114; vMEM = 116
    e(f"v_and_b32 v{vT}, 15, v{vLANE}"); e(f"v_lshrrev_b32 v{vT2}, 4, v{vLANE}")
    e(f"v_lshlrev_b32 v{vKA}, 4, v{vT}")
    e(f"v_lshrrev_b32 v{vT3}, 1, v{vT2}"); e(f"v_lshl_add_u32 v{vKA}, v{vT3}, 8, v{vKA}")
    e(f"v_and_b32 v{vT3}, 1, v{vT2}"); e(f"v_lshl_add_u32 v{vKA}, v{vT3}, 3, v{vKA}")
    e(f"s_mul_i32 s{sT0}, s{sWAVE}, 3584"); e(f"v_add_u32 v{vKA}, s{sT0}, v{vKA}")
    e(f"v_and_b32 v{vMA}, 7, v{vT}"); e(f"v_mul_u32_u24 v{vMA}, 912, v{vMA}")
    e(f"v_lshl_add_u32 v{vMA}, v{vT2}, 3, v{vMA}")
    e(f"s_mul_i32 s{sT0}, s{sWAVE}, 224"); e(f"s_add_u32 s{sT0}, s{sT0}, {W_MEMR}"); e(f"v_add_u32 v{vMA}, s{sT0}, v{vMA}")
    seg_loop_head(e, uid, vSRC)
    e(f"v_add_u32 v{vXB}, s{sBUF}, v{vL16}")
    gemm_main(e, blocks, acc, vXB, ring, True)
    e.nop(8)
    for qt in range(2):
        for p in range(4):
            o = RB + 16*qt + 4*p
            a0 = acc(qt, 2*p)
            e(f"v_cvt_pk_bf16_f32 v{o}, v{a0}, v{a0+1}"); e(f"v_cvt_pk_bf16_f32 v{o+1}, v{a0+2}, v{a0+3}")
            if p < 3:
                a1 = acc(qt, 2*p+1)
                e(f"v_cvt_pk_bf16_f32 v{o+2}, v{a1}, v{a1+1}"); e(f"v_cvt_pk_bf16_f32 v{o+3}, v{a1+2}, v{a1+3}")
            else:
                e(f"v_mov_b64 v[{o+2}:{o+3}], 0")
    S = lambda kt, qt: 8 + (kt*2+qt)*4
    e(f"v_add_u32 v{vT}, s{sBUF}, v{vKA}")
    def key_reads(kt, p, dst):
        i0, i1 = 2*p, min(2*p+1, 6)
        if kt == 0:
            e(f"ds_read_b64 v[{dst}:{dst+1}], v{vMA} offset:{i0*32}"); e(f"ds_read_b64 v[{dst+2}:{dst+3}], v{vMA} offset:{i1*32}")
        else:
            e(f"ds_read_b64 v[{dst}:{dst+1}], v{vT} offset:{(kt-1)*14336 + i0*512}"); e(f"ds_read_b64 v[{dst+2}:{dst+3}], v{vT} offset:{(kt-1)*14336 + i1*512}")
    def s_mfmas(kts):
        for kt in kts:
            for p in range(4): key_reads(kt, p, 32+4*p)
            e("s_waitcnt lgkmcnt(0)")
            for p in range(4):
                for qt in range(2):
                    a = S(kt, qt); c = "0" if p == 0 else f"v[{a}:{a+3}]"
                    e(f"v_mfma_f32_16x16x32_bf16 v[{a}:{a+3}], v[{32+4*p}:{35+4*p}], v[{RB+16*qt+4*p}:{RB+16*qt+4*p+3}], {c}")
            e.nop(2)
    s_mfmas([1, 2])
    e(f"s_mul_i32 s{sT0}, s{sSEG}, {W.MEMX_STRIDE}")
    e(f"s_add_u32 s{sT1}, s{sT0}, 7164")
    wait_word(e, sMX, sT1, 56, 57, "b_pw_pre", OPT.get('psleep', 8), fast=(sSEG, 61))
    e(f"v_lshlrev_b32 v{vT2}, 4, v0"); e(f"v_add_u32 v{vT2}, s{sT0}, v{vT2}")
    e(f"v_add_u32 v{vT3}, 256, v0"); e(f"v_min_u32 v{vT3}, 447, v{vT3}"); e(f"v_lshlrev_b32 v{vT3}, 4, v{vT3}"); e(f"v_add_u32 v{vT3}, s{sT0}, v{vT3}")
    e.label("b_pw_wm")
    e(f"global_load_dwordx4 v[48:51], v{vT2}, s[{sMX}:{sMX+1}] sc1")
    e(f"global_load_dwordx4 v[52:55], v{vT3}, s[{sMX}:{sMX+1}] sc1")
    tmo(e)
    e("s_waitcnt vmcnt(0)")
    for l in sentinel_tree(list(range(48, 56)), 56): e(l)
    e("s_cbranch_vccz b_pw_wm_ok")
    e("s_sleep 2"); e("s_branch b_pw_wm")
    e.label("b_pw_wm_ok")
    for k,(src, dat) in enumerate(((0, 48), (1, 52))):
        if k == 0: e("v_mov_b32 v56, v0")
        else:
            e("v_add_u32 v56, 256, v0"); e("v_min_u32 v56, 447, v56")
        e(f"s_mov_b32 s{sT1}, {(2**32+55)//56}")
        e(f"v_mul_hi_u32 v57, v56, s{sT1}"); e("v_mul_u32_u24 v58, 56, v57"); e("v_sub_u32 v58, v56, v58")
        e("v_mul_u32_u24 v57, 912, v57"); e("v_lshl_add_u32 v57, v58, 4, v57")
        e(f"v_add_u32 v57, {W_MEMR}, v57")
        e(f"ds_write_b128 v57, v[{dat}:{dat+3}]")
    e("s_waitcnt lgkmcnt(0)"); e("s_barrier")
    s_mfmas([0])
    e(f"s_mul_i32 s{sT0}, s{sWAVE}, 6144"); e(f"s_add_u32 s{sT0}, s{sT0}, {W_RED}")
    e(f"v_add_u32 v{vT2}, s{sT0}, v{vL16}")
    e.nop(6)
    for k in range(6): e(f"ds_write_b128 v{vT2}, v[{8+4*k}:{11+4*k}] offset:{k*1024}")
    e("s_waitcnt lgkmcnt(0)"); e("s_barrier")
    e(f"s_cmp_ge_u32 s{sWAVE}, 2"); e("s_cbranch_scc1 b_pw_fin")
    e(f"s_lshl_b32 s{sT0}, s{sWAVE}, 10"); e(f"s_add_u32 s{sT0}, s{sT0}, {W_RED}")
    e(f"v_add_u32 v{vT2}, s{sT0}, v{vL16}")
    for ww in range(4):
        for kt in range(3): e(f"ds_read_b128 v[{64+12*ww+4*kt}:{67+12*ww+4*kt}], v{vT2} offset:{ww*6144 + kt*2048}")
    e("s_waitcnt lgkmcnt(0)")
    for k in range(12):
        e(f"v_add_f32 v{8+k}, v{64+k}, v{76+k}"); e(f"v_add_f32 v{24+k}, v{88+k}, v{100+k}"); e(f"v_add_f32 v{8+k}, v{8+k}, v{24+k}")
    e(f"v_and_b32 v40, 15, v{vLANE}"); e(f"v_lshrrev_b32 v41, 4, v{vLANE}"); e("v_lshlrev_b32 v41, 2, v41")
    e("v_mov_b32 v42, 0xf149f2ca")
    e(f"s_cmp_eq_u32 s{sWAVE}, 0"); e("s_cbranch_scc0 b_pw_q1")
    for r in range(4):
        e(f"v_add_u32 v43, {r}, v41"); e("v_cmp_le_u32 vcc, v43, v40"); e("s_nop 1")
        e(f"v_cndmask_b32 v{12+r}, v42, v{12+r}, vcc"); e(f"v_mov_b32 v{16+r}, v42")
    e("s_branch b_pw_sm")
    e.label("b_pw_q1")
    for r in range(4):
        e(f"v_add_u32 v43, {r}, v41"); e("v_cmp_le_u32 vcc, v43, v40"); e("s_nop 1")
        e(f"v_cndmask_b32 v{16+r}, v42, v{16+r}, vcc")
    e.label("b_pw_sm")
    e("v_max3_f32 v44, v8, v9, v10")
    for k in range(11, 19, 2): e(f"v_max3_f32 v44, v44, v{k}, v{k+1}")
    e("v_max_f32 v44, v44, v19")
    for sw in ("v_permlane16_swap_b32", "v_permlane32_swap_b32"):
        e("v_mov_b32 v45, v44"); e.nop(2); e(f"{sw} v44, v45"); e("v_max_f32 v44, v44, v45")
    for k in range(12): e(f"v_sub_f32 v{8+k}, v{8+k}, v44")
    for k in range(12): e(f"v_exp_f32 v{8+k}, v{8+k}")
    e.nop(1)
    e("v_add_f32 v46, v8, v9"); e("v_add_f32 v47, v10, v11"); e("v_add_f32 v46, v46, v47"); e("v_mul_f32 v46, 0.5, v46")
    for k in range(12, 20): e(f"v_add_f32 v46, v46, v{k}")
    for sw in ("v_permlane16_swap_b32", "v_permlane32_swap_b32"):
        e("v_mov_b32 v45, v46"); e.nop(2); e(f"{sw} v46, v45"); e("v_add_f32 v46, v46, v45")
    e("v_rcp_f32 v46, v46"); e.nop(1)
    for k in range(12): e(f"v_mul_f32 v{8+k}, v{8+k}, v46")
    for k in range(6): e(f"v_cvt_pk_bf16_f32 v{48+k}, v{8+2*k}, v{9+2*k}")
    e(f"s_mul_i32 s{sT0}, s{sSEG}, {W.PX_SEG}"); e(f"s_lshl_b32 s{sT1}, s{sWAVE}, 10"); e(f"s_add_u32 s{sT0}, s{sT0}, s{sT1}")
    e(f"s_lshl_b32 s{sT1}, s{sH}, 11"); e(f"s_add_u32 s{sT1}, s{sT1}, s{sT0}")
    e(f"v_add_u32 v{vT2}, s{sT1}, v{vL16}")
    e(f"v_mov_b32 v54, v50"); e("v_mov_b32 v55, v51"); e("v_mov_b32 v56, v52"); e("v_mov_b32 v57, v53")
    e(f"global_store_dwordx4 v{vT2}, v[54:57], s[{sPX}:{sPX+1}] sc1")
    e(f"s_lshr_b32 s{sT1}, s{sH}, 1"); e(f"s_lshl_b32 s{sT1}, s{sT1}, 11"); e(f"s_add_u32 s{sT1}, s{sT1}, s{sT0}")
    e(f"s_and_b32 s{sT2}, s{sH}, 1"); e(f"s_lshl_b32 s{sT2}, s{sT2}, 3"); e(f"s_add_u32 s{sT1}, s{sT1}, s{sT2}"); e(f"s_add_u32 s{sT1}, s{sT1}, 32768")
    e(f"v_add_u32 v{vT3}, s{sT1}, v{vL16}")
    e(f"global_store_dwordx2 v{vT3}, v[48:49], s[{sPX}:{sPX+1}] sc1")
    e.label("b_pw_fin")
    e("s_waitcnt vmcnt(0)"); e("s_barrier")
    e(f"s_lshl_b32 s{sT0}, s{sSEG}, 7"); e(f"s_add_u32 s{sT0}, s{sT0}, {C_RDY2}")
    signal_add(e, sT0, 48, 49)
    seg_loop_tail(e, uid)
    dstamp(e, 17, 0, (116,117))
    e("s_endpgm")

def gen(e):
    global NJ, NJU, NJZ
    NJ = OPT.get('nj', 3); NJU = OPT.get('nju', 3); NJZ = OPT.get('njz', 2)
    for L in range(2):
        kernel_head(e, f"b{L}_kernel")
        e(f"s_mov_b32 s{sLAY}, {L}")
        if L == 0: e("s_branch b_body")
    e.label("b_body")
    e("s_cmp_ge_u32 s2, 256"); e("s_cbranch_scc1 b_end")
    load_ptr(e, sWS, 'ws'); load_ptr(e, sOUT, 'out')
    if DIAG[0]:
        load_ptr(e, sDBG, 'dbg'); e("s_memrealtime s[96:97]")
    lane_wave(e, vLANE, sWAVE, 4)
    e(f"v_lshlrev_b32 v{vL16}, 4, v{vLANE}")
    e(f"s_getreg_b32 s{sXCC}, hwreg(HW_REG_XCC_ID)"); e(f"s_and_b32 s{sXCC}, s{sXCC}, 15")
    e("s_waitcnt lgkmcnt(0)")
    e(f"s_mul_i32 s{sT0}, s{sLAY}, 32768"); e(f"s_add_u32 s{sT0}, s{sT0}, {W.CNT}")
    e(f"s_add_u32 s{sCN}, s{sWS}, s{sT0}"); e(f"s_addc_u32 s{sCN+1}, s{sWS+1}, 0")
    ws_ptr(e, sW, sWS, W.WIMG); ws_ptr(e, sXP, sWS, W.XA); ws_ptr(e, sUP, sWS, W.UIMG); ws_ptr(e, sZM, sWS, W.ZM); ws_ptr(e, sPX, sWS, W.PX)
    def lay_ptr(dst, o0, o1):
        e(f"s_cmp_eq_u32 s{sLAY}, 0"); e(f"s_mov_b32 s{sT1}, {o1}"); e(f"s_cselect_b32 s{sT0}, {o0}, s{sT1}")
        e(f"s_add_u32 s{dst}, s{sWS}, s{sT0}"); e(f"s_addc_u32 s{dst+1}, s{sWS+1}, 0")
    lay_ptr(sMEM, W.MEMB[0] + 3072, W.MEMB[1] + 3072); lay_ptr(sP, W.PB[0], W.PB[1]); lay_ptr(sMX, W.MEMX[0], W.MEMX[1])
    lay_ptr(sRES, W.X1, W.X3); lay_ptr(sMXI, W.MEMXI[0], W.MEMXI[1])
    e(f"s_add_u32 s{sT0}, s{sWS}, {W.X2}"); e(f"s_addc_u32 s{sT1}, s{sWS+1}, 0")
    e(f"s_cmp_eq_u32 s{sLAY}, 0")
    e(f"s_cselect_b32 s{sOUT}, s{sT0}, s{sOUT}"); e(f"s_cselect_b32 s{sOUT+1}, s{sT1}, s{sOUT+1}")
    e(f"s_mov_b32 s{sTMO}, 4000000"); e(f"s_mov_b32 s{sSTEP}, 0")
    e(f"s_mov_b32 s{sM56}, -1"); e(f"s_mov_b32 s{sM56+1}, 0x00ffffff")
    e(f"s_mov_b32 s{sM57}, -1"); e(f"s_mov_b32 s{sM57+1}, 0x01ffffff")
    e(f"s_cmp_lg_u32 s{sWAVE}, 0"); e("s_cbranch_scc1 b_el_wait")
    e("s_mov_b64 exec, 1")
    e(f"s_lshl_b32 s{sT0}, s{sXCC}, 7"); e(f"v_mov_b32 v4, s{sT0}"); e("v_mov_b32 v5, 1")
    e(f"global_atomic_add v6, v4, v5, s[{sCN}:{sCN+1}] sc0 sc1")
    e("s_waitcnt vmcnt(0)")
    e("v_cmp_eq_u32 vcc, 31, v6"); e("s_cbranch_vccz b_el_poll")
    e(f"s_add_u32 s{sT0}, s{sXCC}, 1"); e(f"v_mov_b32 v8, s{sT0}"); e("v_mov_b32 v9, 0"); e(f"v_mov_b32 v4, {C_WIN}")
    e(f"global_atomic_cmpswap v4, v[8:9], s[{sCN}:{sCN+1}] sc1")
    e.label("b_el_poll")
    e(f"v_mov_b32 v4, {C_WIN}")
    e(f"global_load_dword v7, v4, s[{sCN}:{sCN+1}] sc1")
    tmo(e)
    e("s_waitcnt vmcnt(0)")
    e("v_cmp_eq_u32 vcc, 0, v7"); e("s_cbranch_vccnz b_el_poll")
    e(f"s_add_u32 s{sT0}, s{sXCC}, 1")
    e(f"v_cmp_eq_u32 vcc, s{sT0}, v7"); e("v_cmp_ge_u32 s[50:51], 31, v6"); e("s_and_b64 vcc, vcc, s[50:51]")
    e("s_cbranch_vccnz b_el_chain")
    e(f"v_mov_b32 v4, {C_SLOT}"); e("v_mov_b32 v5, 1")
    e(f"global_atomic_add v6, v4, v5, s[{sCN}:{sCN+1}] sc0 sc1")
    e("s_waitcnt vmcnt(0)")
    e("v_add_u32 v6, 32, v6")
    e.label("b_el_chain")
    e("v_mov_b32 v4, 0")
    e("ds_write_b32 v4, v6")
    e("s_waitcnt lgkmcnt(0)")
    e("s_mov_b64 exec, -1")
    e.label("b_el_wait")
    e("s_barrier")
    e("v_mov_b32 v4, 0"); e("ds_read_b32 v6, v4"); e("s_waitcnt lgkmcnt(0)")
    e(f"v_readfirstlane_b32 s{sROLE}, v6"); e("s_nop 3")
    e("s_barrier")
    e(f"v_and_b32 v4, 8, v{vLANE}"); e("v_cmp_ne_u32 vcc, 0, v4"); e("v_mov_b32 v5, 0x4444"); e("v_mov_b32 v6, 0xeeee"); e("s_nop 1")
    e(f"v_cndmask_b32 v{vIDX}, v5, v6, vcc")
    e(f"s_cmp_ge_u32 s{sROLE}, 32"); e("s_cbranch_scc1 b_worker")
    tr_init(e)
    e(f"s_cmp_eq_u32 s{sROLE}, 30"); e("s_cbranch_scc1 b_helper")
    e(f"s_cmp_eq_u32 s{sROLE}, 31"); e("s_cbranch_scc1 b_pub")
    e(f"s_cmp_ge_u32 s{sROLE}, 16"); e("s_cbranch_scc1 b_value")
    e(f"s_mul_i32 s{sT0}, s{sROLE}, {HEAD_IMG}"); e(f"s_add_u32 s{sW}, s{sW}, s{sT0}"); e(f"s_addc_u32 s{sW+1}, s{sW+1}, 0")
    for w in range(3):
        e(f"s_cmp_eq_u32 s{sWAVE}, {w}"); e(f"s_cbranch_scc1 b_sp{w}")
    e("s_branch b_sw")
    e.label("b_value")
    e(f"s_sub_u32 s{sT0}, s{sROLE}, 16"); e(f"s_mul_i32 s{sT0}, s{sT0}, {2*TILE}"); e(f"s_add_u32 s{sT0}, s{sT0}, {16*HEAD_IMG}")
    e(f"s_add_u32 s{sW}, s{sW}, s{sT0}"); e(f"s_addc_u32 s{sW+1}, s{sW+1}, 0")
    for w in range(3):
        e(f"s_cmp_eq_u32 s{sWAVE}, {w}"); e(f"s_cbranch_scc1 b_vw{w}")
    e("s_branch b_vw3")
    e.label("b_worker")
    e(f"s_sub_u32 s{sROLE}, s{sROLE}, 32")
    e(f"s_cmp_lt_u32 s{sROLE}, 64"); e("s_cbranch_scc1 b_fcpv")
    e(f"s_sub_u32 s{sROLE}, s{sROLE}, 64")
    e(f"s_cmp_lt_u32 s{sROLE}, {16*NJU}"); e("s_cbranch_scc1 b_uw")
    e(f"s_sub_u32 s{sROLE}, s{sROLE}, {16*NJU}")
    e(f"s_cmp_lt_u32 s{sROLE}, {16*NJZ}"); e("s_cbranch_scc1 b_zw")
    e(f"s_sub_u32 s{sROLE}, s{sROLE}, {16*NJZ}")
    e(f"s_cmp_lt_u32 s{sROLE}, {16*NJ}"); e("s_cbranch_scc1 b_pw")
    NIDLE = 224 - 64 - 16*(NJU + NJZ + NJ)
    e(f"s_cmp_lg_u32 s{sLAY}, 0"); e("s_cbranch_scc1 b_end")
    e(f"s_sub_u32 s{sROLE}, s{sROLE}, {16*NJ}")
    e(f"s_lshl_b32 s{sT0}, s{sROLE}, 8"); e(f"v_add_u32 v2, s{sT0}, v0")
    import k_prep
    k_prep.fill_layer(e, 1, NIDLE*256, "bfill")
    e("s_endpgm")
    for w in range(3):
        e.label(f"b_sp{w}"); score_producer(e, w)
    e.label("b_sw"); score_swave(e)
    for w in range(4):
        e.label(f"b_vw{w}"); value_wave(e, w)
    e.label("b_helper"); helper(e)
    e.label("b_pub"); publisher(e)
    e.label("b_uw"); u_worker(e)
    e.label("b_zw"); z_worker(e)
    e.label("b_pw"); p_worker(e)
    e.label("b_fcpv"); fcpv_worker(e)
    e.label(FAIL)
    e.label("b_end")
    e("s_endpgm")
    for L in range(2): e.raw(kernel_desc(f"b{L}_kernel", 512, 256))
```

```python
import numpy as np
D=448; H=16; M=8; SEG=32; S=2048; NSEG=64
def bf16_round(x):
    x = np.asarray(x, dtype=np.float32)
    u = x.view(np.uint32)
    r = ((u + 0x7FFF + ((u >> 16) & 1)) >> 16).astype(np.uint16)
    return r
def bf16_to_f32(u):
    return (u.astype(np.uint32) << 16).view(np.float32)
def rb(x): return bf16_to_f32(bf16_round(x))
def f_of(t, ga, hf, v):
    q=v>>1; e=v&1
    return 64*t+16*ga+4*q+2*hf+e
PERM = np.zeros(D, dtype=np.int64)
for t in range(7):
    for ga in range(4):
        for hf in range(2):
            for v in range(8):
                PERM[8*(8*t+2*ga+hf)+v] = f_of(t,ga,hf,v)
def mem_to_img(mem):
    out = np.zeros((7,64,8), dtype=mem.dtype)
    for t in range(7):
        for ga in range(4):
            for hf in range(2):
                for i in range(8):
                    for v in range(8):
                        out[t,16*ga+8*hf+i,v] = mem[i, f_of(t,ga,hf,v)]
    return out
_MI = None
def mem_img_index():
    global _MI
    if _MI is None:
        idx = np.arange(8*448).reshape(8,448)
        _MI = mem_to_img(idx)
    return _MI
def img_to_mem(img):
    mi = mem_img_index()
    out = np.zeros(8*448, dtype=img.dtype)
    out[mi.reshape(-1)] = img.reshape(-1)
    return out.reshape(8,448)
def w_img(W):
    Wr = W.reshape(7,2,4,8,28,16)
    return np.ascontiguousarray(Wr.transpose(4,0,1,2,5,3)).reshape(28,7,2,64,8)
def ukey(gb, j):
    return 4*gb+j if j<4 else 16+4*gb+(j-4)
def u_img(Useg):
    out = np.zeros((14,4,2,2,2,64,8), dtype=Useg.dtype)
    keys = np.array([[ukey(gb,j) for j in range(8)] for gb in range(4)])
    for c in range(14):
        for w in range(4):
            for k in range(2):
                for nt in range(2):
                    for b in range(2):
                        h = 4*w+2*k+b
                        cols = 32*c+16*nt+np.arange(16)
                        blk = Useg[keys.reshape(-1)][:, h][:, cols].reshape(4,8,16)
                        out[c,w,k,nt,b] = blk.transpose(0,2,1).reshape(64,8)
    return out
def chi(half, g, r):
    return (r>>1)*16 + 8*half + 4*(g&1) + 2*(g>>1) + (r&1)
```

```python
import sys, os, importlib
import numpy as np
import gen_final, k_b
from harness import *
from layouts import img_to_mem
k_b.DIAG[0] = True
ref = None
for o in eval(sys.argv[1]):
    k_b.OPT.clear(); k_b.OPT.update(o)
    k_b.dstamp.n = 0; k_b.signal_add.n = 0; k_b.tr.n = 0
    L = gen_final.launches()[:4]
    fn = "chain_t.s"; open(fn, "w").write(gen_final.text(L))
    if not HAVE_GPU:
        assemble(fn, [(k,256) for k in ("prep_kernel","fa0_kernel","fa1_kernel","fb_kernel","b0_kernel","b1_kernel")], 104); continue
    d = Dev(fn)
    res = []
    for rep in range(4):
        d.run(poison=(rep == 0))
        x = d.dbg.download(np.uint32, 128*4).reshape(4,128)[3].astype(np.int64)
        res.append(((x[22]-x[21])/float(o.get('s1',62)-o.get('s0',10)), (x[4]-x[0])/100.0, (max(x[15],x[18],x[19])-x[3])/100.0, (x[3]-x[0])/100.0, (x[22]-x[21])/((x[9]-x[7])*10.0)))
    X2 = d.wsget(W.X2, 2048*448)
    if ref is None: ref = X2
    r = np.array(res)
    print(o, "cycles/step %.0f (min %.0f)  start %.1f  tail %.1f  chain end %.1f  clk %.3f GHz same=%s" % (np.median(r[:,0]), r[:,0].min(), np.median(r[:,1]), np.median(r[:,2]), np.median(r[:,3]), np.median(r[:,4]), (X2==ref).mean()))
    if o.get('cnt'): print('   retries cp1..5:', x[31:36], 'redo', x[36], 'value P retries', x[40:44])
    if o.get('trace') is not None:
        T = d.wsget(W.TRACE, 32*4*16, np.uint32).reshape(32,4,16).astype(np.int64)[:30]
        real, mt = T[:,:,8], T[:,:,9]
        clk = np.median(r[:,4])
        st = T[:,:,:8]
        g = np.where(st > 0, ((st - mt[:,:,None]) & 0xffffffff) + ((real - real.min())*10*clk)[:,:,None].astype(np.int64), -1)
        base = g[:16,:3,0].min()
        def sm(x):
            x = x[x>=0]; return "-" if len(x)==0 else "%d..%d(%d)" % (x.min()-base, x.max()-base, np.median(x)-base)
        print("  prod: bell", sm(g[:16,:3,0]), "kmaj", sm(g[:16,:3,1]), "Rend", sm(g[:16,:3,2]), "bar", sm(g[:16,:3,3]))
        print("  sw  : bell", sm(g[:16,3,0]), "kmaj", sm(g[:16,3,1]), "cp0", sm(g[:16,3,2]), "t5iss", sm(g[:16,3,3]), "bar", sm(g[:16,3,4]), "Sdone", sm(g[:16,3,5]), "Pst", sm(g[:16,3,6]))
        print("  val : bell2", sm(g[16:,:,0]), "Zdone", sm(g[16:,:,1]), "bell1", sm(g[16:,:,2]), "Pg", sm(g[16:,:,3]), "bar", sm(g[16:,:,4]), "stored", sm(g[16:,:,5]))
    d.mod.unload()
```
